```python
import torch

def _softmax(x, axis=-1):
    return torch.softmax(x, dim=axis)

def _gelu(x):
    return torch.nn.functional.gelu(x, approximate='tanh')

def _silu(x):
    return torch.nn.functional.silu(x)

def _sigmoid(x):
    return torch.sigmoid(x)

def _layernorm(x, axis=-1, eps=1e-05):
    m = x.mean(dim=axis, keepdim=True)
    v = x.var(dim=axis, keepdim=True, unbiased=False)
    return (x - m) / torch.sqrt(v + eps)

def _scatter_add(tgt, idx, src, axis=0):
    return tgt.clone().index_add_(axis, idx, src)

def _segment_sum(src, seg, n):
    out = torch.zeros((n,) + src.shape[1:], dtype=src.dtype)
    return out.index_add_(0, seg, src)

def _pad(x, pw):
    flat = tuple((v for pair in reversed(pw) for v in pair))
    return torch.nn.functional.pad(x, flat)
kernel_name = 'adaLN_cond__spectral_fnet__geglu_ffn__prompt'

def setup_inputs():

    _w = lambda a: (lambda t: t.to(torch.bfloat16) if t.is_floating_point() else t)(torch.as_tensor(a))

    def _A_setup():
        B, S, D = (1, 2048, 640)
        ns = torch.arange(S)[:, None] * torch.arange(S)[None, :]
        nd = torch.arange(D)[:, None] * torch.arange(D)[None, :]
        Ws_re = torch.cos(-2.0 * torch.pi * ns / S).to(float)
        Ws_im = torch.sin(-2.0 * torch.pi * ns / S).to(float)
        Wd_re = torch.cos(-2.0 * torch.pi * nd / D).to(float)
        Wd_im = torch.sin(-2.0 * torch.pi * nd / D).to(float)
        return {'x': _w((lambda *s: torch.randn(*s, dtype=torch.bfloat16) * 0.05)(B, S, D)), 'dft_seq_re': _w(Ws_re), 'dft_seq_im': _w(Ws_im), 'dft_hid_re': _w(Wd_re), 'dft_hid_im': _w(Wd_im)}
    _A_in = _A_setup()

    def _B_setup():
        B, S, D, F = (1, 2048, 640, 1536)
        return {'x': _w((lambda *s: torch.randn(*s, dtype=torch.bfloat16) * 0.05)(B, S, D)), 'w_gate': _w((lambda *s: torch.randn(*s, dtype=torch.bfloat16) * 0.4)(D, F)), 'w_up': _w((lambda *s: torch.randn(*s, dtype=torch.bfloat16) * 0.4)(D, F)), 'w_down': _w((lambda *s: torch.randn(*s, dtype=torch.bfloat16) * 0.4)(F, D))}
    _B_in = _B_setup()
    return {'A_x': _A_in['x'], 'A_dft_seq_re': _A_in['dft_seq_re'], 'A_dft_seq_im': _A_in['dft_seq_im'], 'A_dft_hid_re': _A_in['dft_hid_re'], 'A_dft_hid_im': _A_in['dft_hid_im'], 'B_x': _B_in['x'], 'B_w_gate': _B_in['w_gate'], 'B_w_up': _B_in['w_up'], 'B_w_down': _B_in['w_down'], 'c': _w((lambda *s: torch.randn(*s, dtype=torch.bfloat16) * 0.4)(1, 640) * 8.0), 'w_mod': _w((lambda *s: torch.randn(*s, dtype=torch.bfloat16) * 0.4)(640, 6 * 640) * 640 ** (-0.5) * 8.0)}

def reference(A_x, A_dft_seq_re, A_dft_seq_im, A_dft_hid_re, A_dft_hid_im, B_x, B_w_gate, B_w_up, B_w_down, c, w_mod):

    def _A_ref(x, dft_seq_re, dft_seq_im, dft_hid_re, dft_hid_im):
        a = torch.einsum('bsd,ed->bse', x, dft_hid_re)
        b = torch.einsum('bsd,ed->bse', x, dft_hid_im)
        y = torch.einsum('ts,bse->bte', dft_seq_re, a) - torch.einsum('ts,bse->bte', dft_seq_im, b)
        return y

    def _B_ref(x, w_gate, w_up, w_down):
        return _gelu(x @ w_gate) * (x @ w_up) @ w_down
    x = A_x
    mod = (_silu(c) @ w_mod).reshape(c.shape[0], 6, 1, -1)
    sa, ca, ga, sb, cb, gb = (mod[:, 0].clone(), mod[:, 1].clone(), mod[:, 2].clone(), mod[:, 3].clone(), mod[:, 4].clone(), mod[:, 5].clone())
    h = _layernorm(x, axis=-1) * (1 + ca) + sa
    x = x + ga * _A_ref(h, A_dft_seq_re, A_dft_seq_im, A_dft_hid_re, A_dft_hid_im)
    h = _layernorm(x, axis=-1) * (1 + cb) + sb
    x = x + gb * _B_ref(h, B_w_gate, B_w_up, B_w_down)
    return x
```

```python
import re

REG_RE = re.compile(r'^(?:([vas])(\d+)|([vas])\[(\d+):(\d+)\]|(vcc|exec|m0|vcc_lo|vcc_hi|exec_lo|exec_hi|scc))$')
TRANS = ('v_exp_f32','v_log_f32','v_rcp_f32','v_rsq_f32','v_sqrt_f32','v_sin_f32','v_cos_f32','v_rcp_iflag_f32',
         'v_exp_f16','v_log_f16','v_rcp_f16','v_rsq_f16','v_sqrt_f16','v_sin_f16','v_cos_f16')

def regs_of(tok):
    tok = tok.strip()
    tok = tok.lstrip('-')
    if tok.startswith('abs(') and tok.endswith(')'): tok = tok[4:-1]
    if tok.startswith('|') and tok.endswith('|'): tok = tok[1:-1]
    if tok.startswith('neg(') and tok.endswith(')'): tok = tok[4:-1]
    m = REG_RE.match(tok)
    if not m: return []
    if m.group(1): return [(m.group(1), int(m.group(2)))]
    if m.group(3): return [(m.group(3), i) for i in range(int(m.group(4)), int(m.group(5))+1)]
    sp = m.group(6)
    if sp.startswith('vcc'):
        return [('vcc',0),('vcc',1)] if sp=='vcc' else [('vcc', 0 if sp=='vcc_lo' else 1)]
    if sp.startswith('exec'):
        return [('exec',0),('exec',1)] if sp=='exec' else [('exec', 0 if sp=='exec_lo' else 1)]
    return [(sp,0)]

def split_ops(s):
    out=[]; depth=0; cur=''
    for ch in s:
        if ch in '[(': depth+=1
        if ch in '])': depth-=1
        if ch==',' and depth==0:
            out.append(cur.strip()); cur=''
        else: cur+=ch
    if cur.strip(): out.append(cur.strip())
    return out

class Ins:
    __slots__=('text','op','kind','dst','src','ops','mods','tag','passes','srcC','srcAB','label','target','ws','dpp','meta','lds_dma','wide_store','data')
    def __init__(self, text):
        self.text=text; self.dst=set(); self.src=set(); self.tag=None; self.passes=0
        self.srcC=set(); self.srcAB=set(); self.label=None; self.target=None; self.ws=1; self.dpp=False
        self.meta=None; self.lds_dma=False; self.wide_store=False; self.data=set()
        t=text.split(';')[0].strip()
        if t.endswith(':'):
            self.kind='label'; self.label=t[:-1]; self.op=''; self.ws=0; return
        if t=='' or t.startswith('.'):
            self.kind='dir'; self.op=''; self.ws=0; return
        parts=t.split(None,1)
        op=parts[0]; self.op=op
        rest=parts[1] if len(parts)>1 else ''
        ops=split_ops(rest)
        mods=[]
        if ops:
            last=ops[-1]; toks=[]; depth=0; cur=''
            for ch in last:
                if ch in '[(': depth+=1
                if ch in '])': depth-=1
                if ch==' ' and depth==0:
                    if cur: toks.append(cur)
                    cur=''
                else: cur+=ch
            if cur: toks.append(cur)
            ops[-1]=toks[0]; mods=toks[1:]
        self.ops=ops; self.mods=mods
        R=lambda i: set(regs_of(ops[i])) if i<len(ops) else set()
        base=re.sub(r'_(e32|e64|dpp|sdwa)$','',op)
        if op.startswith('v_mfma') or op.startswith('v_smfma'):
            self.kind='mfma'; self.dst=R(0); self.srcAB=R(1)|R(2); self.srcC=R(3); self.src=self.srcAB|self.srcC
            if '32x32x16' in op or '32x32x8' in op: self.passes=8
            elif '16x16x32' in op or '16x16x16' in op: self.passes=4
            elif '32x32x2_f32' in op: self.passes=16
            elif '16x16x4_f32' in op: self.passes=8
            else: raise ValueError('mfma passes? '+op)
        elif op.startswith('v_'):
            self.kind='valu'
            self.dpp = any(m.startswith(('row_','quad_perm','wave_','bcast')) for m in mods) or op.endswith('_dpp')
            if base.startswith('v_cmp'):
                self.dst=R(0)
                if base.startswith('v_cmpx'): self.dst|={('exec',0),('exec',1)}
                for i in range(1,len(ops)): self.src|=R(i)
            elif base.startswith('v_permlane') and 'swap' in base:
                self.dst=R(0)|R(1); self.src=R(0)|R(1)
            elif base in ('v_add_co_u32','v_sub_co_u32','v_subrev_co_u32','v_addc_co_u32','v_subb_co_u32','v_mad_u64_u32','v_div_scale_f32'):
                self.dst=R(0)|R(1)
                for i in range(2,len(ops)): self.src|=R(i)
            elif base=='v_nop':
                pass
            else:
                self.dst=R(0)
                for i in range(1,len(ops)): self.src|=R(i)
                if base in ('v_fmac_f32','v_dot2c_f32_bf16','v_dot2c_f32_f16','v_pk_fmac_f16','v_writelane_b32','v_fmac_f16') or self.dpp:
                    self.src|=R(0)
                if base=='v_cndmask_b32' and len(ops)==3: self.src|={('vcc',0),('vcc',1)}
                if base=='v_div_fmas_f32': self.src|={('vcc',0),('vcc',1)}
                if any(m.startswith('dst_sel') or m.startswith('op_sel') for m in mods): self.src|=R(0)
        elif op.startswith('ds_'):
            self.kind='ds'
            if op.startswith(('ds_read','ds_bpermute','ds_permute','ds_swizzle')) or '_rtn' in op:
                self.dst=R(0)
                for i in range(1,len(ops)): self.src|=R(i)
            else:
                for i in range(len(ops)): self.src|=R(i)
        elif op.startswith('buffer_'):
            self.kind='vmem'
            if op.startswith(('buffer_wbl2','buffer_inv')):
                pass
            elif 'lds' in mods:
                self.lds_dma=True
                for i in range(len(ops)): self.src|=R(i)
                self.src|={('m0',0)}
            elif op.startswith('buffer_load'):
                self.dst=R(0)
                for i in range(1,len(ops)): self.src|=R(i)
            else:
                for i in range(len(ops)): self.src|=R(i)
                self.data=R(0)
                if op.startswith('buffer_atomic') and 'sc0' in mods: self.dst=R(0)
                self.wide_store = op.endswith(('x3','x4'))
        elif op.startswith('global_'):
            self.kind='vmem'
            if op.startswith('global_load_lds'):
                self.lds_dma=True
                for i in range(len(ops)): self.src|=R(i)
                self.src|={('m0',0)}
            elif op.startswith('global_load'):
                self.dst=R(0)
                for i in range(1,len(ops)): self.src|=R(i)
            elif op.startswith('global_atomic') and 'sc0' in mods:
                self.dst=R(0)
                for i in range(1,len(ops)): self.src|=R(i)
            else:
                for i in range(len(ops)): self.src|=R(i)
                self.data=R(1)
                self.wide_store = op.endswith(('x3','x4'))
        elif op.startswith(('s_load','s_buffer_load','s_memtime','s_memrealtime','s_atomic')):
            self.kind='smem'; self.dst=R(0)
            for i in range(1,len(ops)): self.src|=R(i)
            if op.startswith('s_atomic'): self.src|=R(0)
        elif op in ('s_branch',) or op.startswith('s_cbranch'):
            self.kind='branch'; self.target=ops[0]
            if 'scc' in op: self.src={('scc',0)}
            if 'vcc' in op: self.src={('vcc',0),('vcc',1)}
            if 'exec' in op: self.src={('exec',0),('exec',1)}
        elif op=='s_endpgm': self.kind='end'
        elif op=='s_waitcnt': self.kind='wait'
        elif op=='s_nop':
            self.kind='nop'; self.ws=int(ops[0],0)+1
        elif op in ('s_barrier','s_setprio','s_sleep','s_sethalt','s_icache_prefetch','s_setreg_b32','s_setreg_imm32_b32'):
            self.kind='other'
        elif op.startswith('s_'):
            self.kind='salu'
            if op.startswith(('s_cmp','s_bitcmp')):
                self.dst={('scc',0)}
                for i in range(len(ops)): self.src|=R(i)
            else:
                self.dst=R(0)
                for i in range(1,len(ops)): self.src|=R(i)
                if 'saveexec' in op: self.dst|={('exec',0),('exec',1)}; self.src|={('exec',0),('exec',1)}
                if op.startswith(('s_addk','s_mulk','s_cmov')): self.src|=R(0)
                if op.startswith(('s_cselect','s_addc','s_subb','s_cmov')): self.src|={('scc',0)}
                if not op.startswith(('s_mov','s_movk','s_mul_i32','s_mul_hi','s_mulk','s_cselect','s_getpc','s_getreg','s_bfm','s_pack','s_sext','s_cmov','s_ff','s_flbit','s_brev')):
                    self.dst|={('scc',0)}
        else:
            raise ValueError('unknown instruction: '+text)

def parse_wait(text):
    vm=lg=None
    m=re.search(r'vmcnt\((\d+)\)',text)
    if m: vm=int(m.group(1))
    m=re.search(r'lgkmcnt\((\d+)\)',text)
    if m: lg=int(m.group(1))
    return vm,lg

class Kernel:
    def __init__(self, name):
        self.name=name; self.ins=[]; self.ntag=0; self.nlab=0
    def __call__(self, text):
        last=None
        for line in text.split('\n'):
            line=line.strip()
            if not line or line.startswith(';'): continue
            i=Ins(line); self.ins.append(i); last=i
            if i.kind in ('vmem','ds','smem'):
                self.ntag+=1; i.tag=self.ntag
        return last.tag if last is not None else None
    def comment(self, c):
        i=Ins('; '+c) if False else None
        x=Ins('.'); x.text='; '+c; self.ins.append(x)
    def wait(self, *tags):
        x=Ins('.'); x.text=''; x.kind='waittag'; x.meta=set(t for t in tags if t is not None); self.ins.append(x)
    def label(self, base='L'):
        self.nlab+=1; return f'{self.name}_{base}{self.nlab}'
    def _cfg_flow(self, ins, init, step, merge):
        labels={x.label:i for i,x in enumerate(ins) if x.kind=='label'}
        changed=True; at={}
        it=0
        while changed:
            changed=False; it+=1
            assert it<50
            st=init()
            for idx,x in enumerate(ins):
                if x.kind=='label':
                    o=at.get(x.label)
                    if st is None: st=None if o is None else dict(o)
                    elif o is not None: st=merge(st,o)
                if st is None: continue
                st,ch=step(idx,x,st)
                changed|=ch
                if x.kind=='branch':
                    if x.target in labels:
                        o=at.get(x.target)
                        n=dict(st) if o is None else merge(dict(st),o)
                        if n!=o: at[x.target]=n; changed=True
                    if x.op=='s_branch': st=None
                if x.kind=='end': st=None
    def insert_waits(self):
        ins=self.ins
        need={}
        info={}
        for x in ins:
            if x.tag: info[x.tag]=('vm' if x.kind=='vmem' else 'lg', x.dst, x.kind=='smem')
        def merge(a,b):
            r=dict(a)
            for k,v in b.items(): r[k]=min(r[k],v) if k in r else v
            return r
        def apply(st,vm,lg):
            for t in list(st):
                c=info[t][0]
                if c=='vm' and vm is not None and st[t]>=vm: del st[t]
                elif c=='lg' and lg is not None:
                    if lg==0 or (st[t]>=lg and not any(info[u][2] for u in st if info[u][0]=='lg')): del st[t]
        def step(idx,x,st):
            st=dict(st); ch=False
            vm=lg=None
            touched=x.src|x.dst
            for t,y in st.items():
                c,d,sm=info[t]
                hit=(d & touched) or (x.kind=='waittag' and t in x.meta)
                if hit:
                    if c=='vm': vm=y if vm is None else min(vm,y)
                    else:
                        anysm=any(info[u][2] for u in st if info[u][0]=='lg')
                        yy=0 if anysm else y
                        lg=yy if lg is None else min(lg,yy)
            if vm is not None: vm=min(vm,63)
            if lg is not None: lg=min(lg,15)
            o=need.get(idx,[None,None])
            n=[o[0] if vm is None else (vm if o[0] is None else min(o[0],vm)), o[1] if lg is None else (lg if o[1] is None else min(o[1],lg))]
            if n!=o: need[idx]=n; ch=True
            apply(st,n[0],n[1])
            if x.kind=='wait':
                a,b=parse_wait(x.text); apply(st,a,b)
            if x.tag:
                c=info[x.tag][0]
                for t in st:
                    if info[t][0]==c: st[t]+=1
                st[x.tag]=0
            return st,ch
        self._cfg_flow(ins,dict,step,merge)
        out=[]
        for idx,x in enumerate(ins):
            if idx in need and need[idx]!=[None,None]:
                vm,lg=need[idx]
                s='s_waitcnt'+(f' vmcnt({vm})' if vm is not None else '')+(f' lgkmcnt({lg})' if lg is not None else '')
                out.append(Ins(s))
            if x.kind!='waittag': out.append(x)
        self.ins=out
    def insert_nops(self):
        ins=self.ins; need={}
        XD={2:5,4:8,8:12,16:20}; XC={2:4,4:6,8:10,16:18}; XW={2:1,4:3,8:7,16:15}
        def merge(a,b):
            r=dict(a)
            for k,v in b.items(): r[k]=min(r[k],v) if k in r else v
            return r
        def required(x,st):
            req=0
            def chk(key,n):
                nonlocal req
                if key in st and st[key]<n: req=max(req,n-st[key])
            vsrc=[r for r in x.src if r[0] in 'va' and r[0]!='vcc']
            vdst=[r for r in x.dst if r[0] in 'va' and r[0]!='vcc']
            ssrc=[r for r in x.src if r[0] in ('s','vcc')]
            base=re.sub(r'_(e32|e64|dpp|sdwa)$','',x.op)
            if x.kind=='mfma':
                for r in vsrc: chk(('valu',r),2); chk(('dot',r),3)
                for r in x.srcAB:
                    for p in XD: chk(('mfma',r,p),XD[p])
                ckey=(min(x.srcC),len(x.srcC),x.passes) if x.srcC else None
                for r in x.srcC|x.dst:
                    for p in XC:
                        k=('mfma',r,p)
                        if k in st and st[k]<XC[p]:
                            full=('mfull',r,ckey)
                            if r in x.srcC and full in st and st[full]==st[k]:
                                if p==2: chk(k,2)
                            else: chk(k,XC[p])
                chk(('vexec',),4)
            if x.kind in ('valu','vmem','ds'):
                for r in vsrc+vdst:
                    for p in XD: chk(('mfma',r,p),XD[p])
            if x.kind=='valu':
                for r in vdst:
                    for p in XW: chk(('mfmaC',r,p),XW[p])
                    chk(('wstore',r),2)
                for r in ssrc: chk(('vsgpr',r),2)
                if x.dpp:
                    for r in vsrc: chk(('valu',r),2); chk(('load',r),0)
                    chk(('vexec',),5)
                if base.startswith(('v_readlane','v_readfirstlane')):
                    for r in vsrc: chk(('valu',r),1)
                    chk(('vexec',),4)
                if base.startswith(('v_readlane','v_writelane')):
                    for r in ssrc: chk(('vsgpr',r),4)
                if base.startswith('v_permlane'):
                    for r in vsrc: chk(('valu',r),2)
                    chk(('vexec',),4)
                if base not in TRANS:
                    for r in vsrc: chk(('trans',r),1)
                for r in vsrc+vdst: chk(('opsel',r),1)
                if base=='v_div_fmas_f32':
                    chk(('vsgpr',('vcc',0)),4)
                isdot=base.startswith('v_dot')
                for r in vsrc+vdst:
                    k=('dot',r)
                    if k in st and st[k]<3:
                        same=isdot and ('dotop',r,base) in st
                        if same and r in x.dst and (base.startswith('v_dot2c') or (len(x.ops)>3 and r in regs_of(x.ops[3]))) and r not in regs_of(x.ops[1]) and r not in regs_of(x.ops[2]): continue
                        chk(k,3)
            if x.kind in ('vmem','ds'):
                for r in vdst: chk(('wstore',r),1)
                for r in vsrc: chk(('dot',r),3); chk(('trans',r),1)
            if x.kind=='vmem':
                for r in ssrc: chk(('vsgpr',r),5)
                if x.lds_dma: chk(('m0',),1)
            if x.kind in ('salu','smem','branch'):
                for r in ssrc: chk(('vsgpr',r),1 if x.kind!='smem' else 5)
            return req
        def step(idx,x,st):
            ch=False
            if x.kind in ('label','dir'): return st,False
            st=dict(st)
            n=need.get(idx,0)
            if n:
                for k in st: st[k]+=n
            r=required(x,st)
            if r>0:
                need[idx]=n+r; ch=True
                for k in st: st[k]+=r
            for k in list(st):
                st[k]+=x.ws
                if st[k]>=21: del st[k]
            base=re.sub(r'_(e32|e64|dpp|sdwa)$','',x.op)
            if x.kind=='valu':
                for r in x.dst:
                    if r[0] in ('v','a'):
                        st[('valu',r)]=0
                        if base in TRANS: st[('trans',r)]=0
                        if base.startswith('v_dot'): st[('dot',r)]=0; st[('dotop',r,base)]=0
                        if any(m.startswith(('dst_sel','op_sel')) for m in x.mods) and not base.startswith('v_pk'): st[('opsel',r)]=0
                    elif r[0] in ('s','vcc'): st[('vsgpr',r)]=0
                    elif r[0]=='exec': st[('vexec',)]=0
            if x.kind=='mfma':
                key=(min(x.dst),len(x.dst),x.passes)
                for r in x.dst:
                    st[('mfma',r,x.passes)]=0; st[('mfull',r,key)]=0
                for r in x.srcC: st[('mfmaC',r,x.passes)]=0
            if x.kind=='vmem' and x.wide_store:
                for r in x.data: st[('wstore',r)]=0
            if x.kind=='salu' and ('m0',0) in x.dst: st[('m0',)]=0
            return st,ch
        self._cfg_flow(ins,dict,step,merge)
        out=[]; self.nnop=0
        for idx,x in enumerate(ins):
            n=need.get(idx,0)
            self.nnop+=n
            while n>0:
                m=min(n,16); y=Ins(f's_nop {m-1}'); out.append(y); n-=m
            out.append(x)
        self.ins=out
    def maxregs(self):
        mv=ma=ms=-1
        for x in self.ins:
            for r in x.src|x.dst:
                if r[0]=='v': mv=max(mv,r[1])
                elif r[0]=='a': ma=max(ma,r[1])
                elif r[0]=='s': ms=max(ms,r[1])
        return mv+1,ma+1,ms+1
    def finish(self, tail=''):
        self.insert_waits(); self.insert_nops()
        nv,na,ns=self.maxregs()
        nv=max(nv,1)
        acc=(nv+3)//4*4
        tot=acc+na if na else nv
        body='\n'.join(('' if x.kind=='label' else '    ')+x.text for x in self.ins)
        text=f'''.text
.globl {self.name}
.p2align 8
.type {self.name},@function
{self.name}:
{body}
{tail}
'''
        desc=f'''.section .rodata,"a"
.p2align 6
.amdhsa_kernel {self.name}
  .amdhsa_next_free_vgpr {tot}
  .amdhsa_next_free_sgpr {max(ns,16)}
  .amdhsa_accum_offset {acc}
  .amdhsa_group_segment_fixed_size 0
  .amdhsa_kernarg_size 112
  .amdhsa_user_sgpr_count 2
  .amdhsa_user_sgpr_kernarg_segment_ptr 1
  .amdhsa_system_sgpr_workgroup_id_x 1
  .amdhsa_float_denorm_mode_32 3
.end_amdhsa_kernel
'''
        self.stats=dict(vgpr=nv,agpr=na,sgpr=ns,total=tot,ninstr=sum(1 for x in self.ins if x.kind not in('label','dir')),nops=self.nnop)
        return text,desc

def assemble_file(kernels, launches, path, header=''):
    out=header
    for n,g,b,l in launches:
        out+=f'; @launch kernel={n} grid=({g},1,1) block=({b},1,1) lds={l}\n'
    out+='.amdgcn_target "amdgcn-amd-amdhsa--gfx950"\n'
    descs=''
    for k in kernels:
        tail=''
        if isinstance(k,tuple): k,tail=k
        t,d=k.finish(tail); out+=t; descs+=d
        print(k.name,k.stats)
    out+=descs
    open(path,'w').write(out)
```

```python
from asmgen import *
from layout import *

def srd(k, r, lo, size):
    k(f's_mov_b32 s{r}, s{lo}'); k(f's_and_b32 s{r+1}, s{lo+1}, 0xffff'); k(f's_mov_b32 s{r+2}, {size}'); k(f's_mov_b32 s{r+3}, 0x20000')

def stampw(k, slot, on, sreg=90):
    if not on: return
    k(f's_memrealtime s[{sreg}:{sreg+1}]'); k('s_waitcnt lgkmcnt(0)')
    k(f's_mov_b32 s{60+slot}, s{sreg}')

def stamp_flush(k, kidx, n, on, wsrd):
    if not on: return
    L=k.label('sf')
    k('s_mov_b64 exec, -1')
    k('v_cmp_eq_u32 vcc, 0, v0'); k('s_and_saveexec_b64 s[92:93], vcc'); k(f's_cbranch_execz {L}')
    k(f's_lshl_b32 s94, s2, 6'); k(f's_add_u32 s94, s94, {WS_DBG+kidx*65536}')
    k('v_mov_b32 v1, 0')
    for i in range(n):
        k(f'v_mov_b32 v2, s{60+i}'); k(f'buffer_store_dword v2, v1, s[{wsrd}:{wsrd+3}], s94 offen offset:{4*i}')
    k(f'{L}:')

def gen_k1(name='k1_kernel', prof=False, st=''):
    k=Kernel(name)
    END=k.label('end'); LMOD=k.label('mod'); LSH=k.label('shuf')
    stampw(k,0,prof)
    k('s_cmp_ge_u32 s2, 172'); k(f's_cbranch_scc1 {END}')
    k(f's_load_dwordx2 s[4:5], s[0:1], {KA["x"]}')
    k(f's_load_dwordx4 s[8:11], s[0:1], {KA["wd"]}')
    k(f's_load_dwordx2 s[12:13], s[0:1], {KA["wmod"]}')
    k(f's_load_dwordx2 s[14:15], s[0:1], {KA["ws"]}')
    k('v_lshrrev_b32 v1, 6, v0'); k('v_readfirstlane_b32 s3, v1')
    k('v_and_b32 v1, 63, v0')
    k('v_and_b32 v2, 15, v0')
    k('v_lshrrev_b32 v3, 4, v1')
    k('s_mov_b32 s40, 0x05040100'); k('s_mov_b32 s41, 0x07060302')
    srd(k,16,14,WS_SIZE)
    k('s_cmp_ge_u32 s2, 124'); k(f's_cbranch_scc1 {LSH}')
    k('s_cmp_ge_u32 s2, 64'); k(f's_cbranch_scc1 {LMOD}')
    srd(k,20,4,S*D*2)
    X=8; B=40; Fm=72; V=88; Fp=104; MU=112; BI=116; DD=124; T=188
    k('s_lshl_b32 s24, s3, 8')
    k(f'v_lshl_add_u32 v4, v2, 4, s24')
    k('s_mov_b32 s25, 655360'); k('v_mad_u32_u24 v5, v3, s25, v4')
    k('s_mul_i32 s26, s2, 1280')
    for r in range(8):
        k(f'buffer_load_dwordx4 v[{X+4*r}:{X+4*r+3}], v5, s[20:23], s26 offen')
        if r<7: k('s_add_u32 s26, s26, 81920')
    k('v_lshlrev_b32 v6, 3, v3'); k('v_cvt_f32_u32 v6, v6')
    for mt in range(2):
        k(f'v_lshrrev_b32 v{T}, 1, v2');
        if mt: k(f'v_add_u32 v{T}, 8, v{T}')
        k(f'v_and_b32 v{T+1}, 1, v2')
        if mt==0:
            k('v_cmp_eq_u32 vcc, 1, v2')
            k(f'v_cndmask_b32 v{T}, v{T}, 16, vcc'); k(f'v_cndmask_b32 v{T+1}, v{T+1}, 0, vcc')
        k(f'v_cvt_f32_u32 v{T}, v{T}'); k(f'v_cvt_f32_u32 v{T+1}, v{T+1}')
        k(f'v_mul_f32 v{T}, 0x3d000000, v{T}')
        k(f'v_mul_f32 v{T+1}, 0x3e800000, v{T+1}')
        k(f'v_fma_f32 v{T+1}, v{T}, v6, v{T+1}')
        for jj in range(8):
            r=Fm+8*mt+jj
            if jj==0: k(f'v_cos_f32 v{r}, v{T+1}')
            else:
                k(f'v_fmamk_f32 v{r}, v{T}, {float(jj)}, v{T+1}'); k(f'v_cos_f32 v{r}, v{r}')
    k('v_lshrrev_b32 v6, 1, v4')
    k('v_mul_u32_u24 v7, 410, v6'); k('v_lshrrev_b32 v7, 16, v7')
    k(f's_mov_b32 s25, {40960-320}'); k('v_mad_u32_u24 v7, v7, s25, v4')
    k(f's_mov_b32 s25, {2*163840}'); k('v_mad_u32_u24 v7, v3, s25, v7')
    k('s_mul_i32 s27, s2, 640'); k(f's_add_u32 s27, s27, {WS_U}')
    k(f's_add_u32 s28, s27, 163840'); k(f's_add_u32 s29, s27, {8*163840}'); k(f's_add_u32 s30, s27, {9*163840}')
    k('v_mov_b32 v6, 0x3f803f80')
    for i in range(16): k(f'v_mov_b32 v{V+i}, 0')
    k('v_lshrrev_b32 v190, 3, v2'); k('v_lshlrev_b32 v190, 7, v190')
    k('v_bfe_u32 v191, v2, 2, 1'); k('v_lshl_add_u32 v190, v191, 4, v190')
    k('v_lshl_add_u32 v190, v3, 5, v190'); k('v_add_u32 v190, s24, v190')
    k('v_and_b32 v191, 7, v2'); k('v_lshlrev_b32 v191, 2, v191'); k('v_lshl_add_u32 v191, v3, 5, v191')
    stampw(k,1,prof)
    for r in range(8):
        for d in range(4):
            k(f'v_dot2c_f32_bf16 v{V+r}, v{X+4*r+d}, v6')
            k(f'v_dot2c_f32_bf16 v{V+8+r}, v{X+4*r+d}, v{X+4*r+d}')
    stampw(k,2,prof)
    for i in range(8): k(f'v_add_f32_dpp v{V+i}, v{V+i}, v{V+i} row_ror:8 row_mask:0xf bank_mask:0x3')
    for i in range(8): k(f'v_add_f32_dpp v{V+i}, v{V+8+i}, v{V+8+i} row_ror:8 row_mask:0xf bank_mask:0xc')
    for i in range(4): k(f'v_add_f32_dpp v{V+i}, v{V+i}, v{V+i} row_shl:4 row_mask:0xf bank_mask:0x5')
    for i in range(4): k(f'v_add_f32_dpp v{V+i}, v{V+4+i}, v{V+4+i} row_shr:4 row_mask:0xf bank_mask:0xa')
    for i in range(4): k(f'v_add_f32_dpp v{V+i}, v{V+i}, v{V+i} quad_perm:[1,0,3,2] row_mask:0xf bank_mask:0xf')
    for i in range(4): k(f'v_add_f32_dpp v{V+i}, v{V+i}, v{V+i} quad_perm:[2,3,0,1] row_mask:0xf bank_mask:0xf')
    t=k(f'ds_write_b128 v190, v[{V}:{V+3}]')
    def perms(js):
        for j in js:
            for i in range(4):
                k(f'v_perm_b32 v{B+4*j+i}, v{X+8*i+4+(j>>1)}, v{X+8*i+(j>>1)}, s{40+(j&1)}')
    perms(range(0,2))
    k.wait(t); k('s_barrier')
    for w in range(4): k(f'ds_read2_b32 v[{V+4+2*w}:{V+5+2*w}], v191 offset0:{64*w} offset1:{64*w+32}')
    k(f'ds_read_b32 v{V+12}, v191 offset:1024'); k(f'ds_read_b32 v{V+13}, v191 offset:1152')
    perms(range(2,8))
    k(f'v_add_f32 v{V}, v{V+4}, v{V+6}'); k(f'v_add_f32 v{V+1}, v{V+5}, v{V+7}')
    k(f'v_add_f32 v{V+2}, v{V+8}, v{V+10}'); k(f'v_add_f32 v{V+3}, v{V+9}, v{V+11}')
    k(f'v_add_f32 v{V}, v{V}, v{V+12}'); k(f'v_add_f32 v{V+1}, v{V+1}, v{V+13}')
    k(f'v_add_f32 v{V}, v{V}, v{V+2}'); k(f'v_add_f32 v{V+1}, v{V+1}, v{V+3}')
    inv=f'{1.0/640:.9e}'
    k(f'v_mul_f32 v{V}, 0xbaccccCD, v{V}')
    k(f'v_mul_f32 v{V+1}, 0x3accccCD, v{V+1}')
    k(f'v_fma_f32 v{V+1}, -v{V}, v{V}, v{V+1}')
    k(f'v_max_f32 v{V+1}, 0, v{V+1}')
    k(f'v_add_f32 v{V+1}, 0x3727c5ac, v{V+1}')
    k(f'v_rsq_f32 v{V+1}, v{V+1}')
    for jj in range(8): k(f'v_mov_b32_dpp v{V+4+jj}, v{V} row_newbcast:{jj} row_mask:0xf bank_mask:0xf')
    for mt in range(2):
        for jj in range(8): k(f'v_mul_f32_dpp v{Fm+8*mt+jj}, v{V+1}, v{Fm+8*mt+jj} row_newbcast:{jj} row_mask:0xf bank_mask:0xf')
    for i in range(4): k(f'v_cvt_pk_bf16_f32 v{MU+i}, v{V+4+2*i}, v{V+5+2*i}')
    for mt in range(2):
        for i in range(4): k(f'v_cvt_pk_bf16_f32 v{Fp+4*mt+i}, v{Fm+8*mt+2*i}, v{Fm+8*mt+2*i+1}')
    for mt in range(2): k(f'v_mfma_f32_16x16x32_bf16 v[{BI+4*mt}:{BI+4*mt+3}], v[{Fp+4*mt}:{Fp+4*mt+3}], v[{MU}:{MU+3}], 0')
    for mt in range(2):
        for j in range(8):
            d=DD+32*mt+4*j
            k(f'v_mfma_f32_16x16x32_bf16 v[{d}:{d+3}], v[{Fp+4*mt}:{Fp+4*mt+3}], v[{B+4*j}:{B+4*j+3}], v[{BI+4*mt}:{BI+4*mt+3}]')
    stampw(k,3,prof)
    for mt in range(2):
        for i in range(4):
            o=X+16*mt+4*i
            for jp in range(4): k(f'v_cvt_pk_bf16_f32 v{o+jp}, v{DD+32*mt+8*jp+i}, v{DD+32*mt+8*jp+4+i}')
            k(f'buffer_store_dwordx4 v[{o}:{o+3}], v7, s[16:19], s{27+2*mt+(i>>1)} offen offset:{320*(i&1)} {st}')
    if prof: k('s_waitcnt vmcnt(0)')
    stampw(k,4,prof); stamp_flush(k,0,5,prof,16)
    k('s_endpgm')
    k(f'{LMOD}:')
    srd(k,20,12,640*3840*2); srd(k,24,10,1280)
    k('s_sub_u32 s28, s2, 64')
    Wr=8; C=72; Sf=80; SP=96; A=104; P=112
    k('v_and_b32 v4, 7, v0'); k('v_lshrrev_b32 v5, 3, v0')
    k('v_lshlrev_b32 v6, 5, v5')
    k(f'buffer_load_dwordx4 v[{C}:{C+3}], v6, s[24:27], 0 offen'); k(f'buffer_load_dwordx4 v[{C+4}:{C+7}], v6, s[24:27], 0 offen offset:16')
    k(f's_mov_b32 s29, {16*7680}'); k('v_lshlrev_b32 v6, 4, v4'); k('v_mad_u32_u24 v6, v5, s29, v6')
    k('s_lshl_b32 s30, s28, 7')
    for i in range(16):
        k(f'buffer_load_dwordx4 v[{Wr+4*i}:{Wr+4*i+3}], v6, s[20:23], s30 offen')
        if i<15: k('s_add_u32 s30, s30, 7680')
    for i in range(16):
        if i&1: k(f'v_and_b32 v{Sf+i}, 0xffff0000, v{C+(i>>1)}')
        else: k(f'v_lshlrev_b32 v{Sf+i}, 16, v{C+(i>>1)}')
    for i in range(16): k(f'v_mul_f32 v{P+i}, 0xbfb8aa3b, v{Sf+i}')
    for i in range(16): k(f'v_exp_f32 v{P+i}, v{P+i}')
    for i in range(16): k(f'v_add_f32 v{P+i}, 1.0, v{P+i}')
    Q=140; Rr=156
    for i in range(16): k(f'v_rcp_f32 v{Rr+i}, v{P+i}')
    for i in range(16): k(f'v_mul_f32 v{Q+i}, v{Sf+i}, v{Rr+i}')
    for i in range(16): k(f'v_fma_f32 v{P+i}, -v{Q+i}, v{P+i}, v{Sf+i}')
    for i in range(16): k(f'v_fma_f32 v{P+i}, v{P+i}, v{Rr+i}, v{Q+i}')
    for i in range(16):
        k(f'v_cmp_o_f32 vcc, v{P+i}, v{P+i}'); k(f'v_cndmask_b32 v{Sf+i}, v{Q+i}, v{P+i}, vcc')
    for i in range(8): k(f'v_cvt_pk_bf16_f32 v{SP+i}, v{Sf+2*i}, v{Sf+2*i+1}')
    for j in range(8): k(f'v_mov_b32 v{A+j}, 0')
    k('s_mul_i32 s31, s28, 26'); k('s_lshr_b32 s31, s31, 8')
    k('s_mul_i32 s32, s31, 10'); k('s_sub_u32 s32, s28, s32'); k('s_lshl_b32 s32, s32, 6')
    k('v_add_u32 v130, s32, v0')
    k('v_mul_u32_u24 v131, 1639, v130'); k('v_lshrrev_b32 v131, 16, v131')
    k('v_mul_u32_u24 v132, 40, v131'); k('v_sub_u32 v132, v130, v132')
    k('v_lshrrev_b32 v133, 2, v131'); k('v_lshlrev_b32 v133, 4, v133')
    k('v_and_b32 v134, 1, v131'); k('v_lshl_add_u32 v133, v134, 3, v133')
    k('v_and_b32 v134, 7, v132'); k('v_add_u32 v133, v133, v134')
    k('v_bfe_u32 v134, v131, 1, 1'); k('v_mul_u32_u24 v134, 5, v134'); k('v_lshrrev_b32 v135, 3, v132')
    k('v_add_u32 v134, v134, v135')
    k('v_lshrrev_b32 v135, 2, v134'); k('v_and_b32 v134, 3, v134')
    k('v_lshl_add_u32 v133, v133, 2, v134'); k('v_lshl_add_u32 v133, v135, 8, v133')
    k('v_and_b32 v134, 15, v130'); k('v_lshrrev_b32 v135, 4, v130')
    k('v_lshrrev_b32 v136, 3, v135'); k('v_and_b32 v137, 7, v135')
    k('v_subrev_u32 v138, 32, v135'); k('v_lshrrev_b32 v138, 1, v138'); k('v_and_b32 v139, 1, v135'); k('v_add_u32 v139, 8, v139')
    k('v_cmp_le_u32 vcc, 32, v135'); k('v_cndmask_b32 v136, v136, v138, vcc'); k('v_cndmask_b32 v137, v137, v139, vcc')
    k('v_lshl_add_u32 v136, v136, 4, v134'); k('v_lshrrev_b32 v138, 2, v137'); k('v_and_b32 v137, 3, v137')
    k('v_lshl_add_u32 v136, v136, 2, v137'); k('v_lshl_add_u32 v136, v138, 8, v136')
    k('s_cmp_lt_u32 s31, 2'); k('s_cselect_b64 vcc, -1, 0'); k('v_cndmask_b32 v136, v136, v133, vcc')
    k('s_cmp_eq_u32 s31, 5'); k('s_cselect_b64 vcc, -1, 0'); k('v_cndmask_b32 v136, v136, v130, vcc')
    k('v_lshlrev_b32 v136, 2, v136')
    k('s_mul_i32 s33, s31, 3072'); k(f's_add_u32 s33, s33, {WS_MOD}')
    k('v_lshrrev_b32 v131, 4, v0'); k('v_lshlrev_b32 v131, 8, v131'); k('v_lshl_add_u32 v131, v4, 5, v131')
    k('v_lshlrev_b32 v132, 2, v0')
    stampw(k,1,prof)
    for i2 in range(8):
        for j in range(8): k(f'v_perm_b32 v{P+j}, v{Wr+8*i2+4+(j>>1)}, v{Wr+8*i2+(j>>1)}, s{40+(j&1)}')
        for j in range(8): k(f'v_dot2c_f32_bf16 v{A+j}, v{P+j}, v{SP+i2}')
    stampw(k,2,prof)
    for j in range(8): k(f'v_add_f32_dpp v{A+j}, v{A+j}, v{A+j} row_ror:8 row_mask:0xf bank_mask:0xf')
    k(f'ds_write_b128 v131, v[{A}:{A+3}]'); t=k(f'ds_write_b128 v131, v[{A+4}:{A+7}] offset:16')
    k.wait(t); k('s_barrier')
    k('s_cmp_lg_u32 s3, 0'); k(f's_cbranch_scc1 {END}')
    for i in range(10): k(f'ds_read2st64_b32 v[{Wr+2*i}:{Wr+2*i+1}], v132 offset0:{2*i} offset1:{2*i+1}')
    for i in range(10): k(f'v_add_f32 v{Wr+2*i}, v{Wr+2*i}, v{Wr+2*i+1}')
    for a,b in [(0,2),(4,6),(8,10),(12,14),(16,18),(0,4),(8,12),(0,8),(0,16)]: k(f'v_add_f32 v{Wr+a}, v{Wr+a}, v{Wr+b}')
    k(f'v_cvt_pk_bf16_f32 v{Wr}, v{Wr}, v{Wr}'); k(f'v_and_b32 v{Wr}, 0xffff0000, v{Wr}')
    k(f'v_add_f32 v{Wr+1}, 1.0, v{Wr}'); k(f'v_cvt_pk_bf16_f32 v{Wr+1}, v{Wr+1}, v{Wr+1}'); k(f'v_and_b32 v{Wr+1}, 0xffff0000, v{Wr+1}')
    k(f'v_mul_f32 v{Wr+2}, 0x45000000, v{Wr}')
    k('s_cmp_eq_u32 s31, 0'); k('s_cselect_b64 vcc, -1, 0'); k(f'v_cndmask_b32 v{Wr}, v{Wr}, v{Wr+2}, vcc')
    k('s_cmp_eq_u32 s31, 1'); k('s_cselect_b64 vcc, -1, 0'); k('s_cmp_eq_u32 s31, 4'); k('s_cselect_b64 vcc, -1, vcc'); k(f'v_cndmask_b32 v{Wr}, v{Wr}, v{Wr+1}, vcc')
    k(f'buffer_store_dword v{Wr}, v136, s[16:19], s33 offen {st}')
    if prof: k('s_waitcnt vmcnt(0)')
    stampw(k,3,prof); stampw(k,4,prof); stamp_flush(k,0,5,prof,16)
    k('s_endpgm')
    k(f'{LSH}:')
    srd(k,20,8,F*D*2)
    k('s_sub_u32 s28, s2, 124')
    k('s_mul_i32 s29, s28, 40960')
    k('s_lshl_b32 s30, s3, 13'); k('s_mov_b32 m0, s30')
    k('s_lshl_b32 s31, s3, 9'); k('v_add_u32 v4, s31, v1')
    k(f's_mov_b32 s32, {(2**32+79)//80}')
    toks=[]
    for i in range(8):
        k('v_mul_hi_u32 v5, v4, s32')
        k('v_and_b32 v5, 7, v5'); k('v_lshlrev_b32 v5, 1, v5'); k('v_xor_b32 v5, v5, v4'); k('v_lshlrev_b32 v5, 4, v5')
        toks.append(k('buffer_load_dwordx4 v5, s[20:23], s29 offen lds'))
        if i<7: k('s_add_u32 m0, m0, 1024'); k('v_add_u32 v4, 64, v4')
    k('v_lshrrev_b32 v6, 2, v2'); k('v_and_b32 v7, 3, v2')
    for hh in range(2):
        k(f'v_lshl_add_u32 v{8+hh}, v3, 3, v6')
        if hh: k(f'v_add_u32 v{8+hh}, 4, v{8+hh}')
        k(f'v_and_b32 v{10+hh}, 7, v{8+hh}'); k(f'v_lshlrev_b32 v{10+hh}, 1, v{10+hh}')
        k(f'v_mul_u32_u24 v{8+hh}, 1280, v{8+hh}')
    k('v_lshlrev_b32 v12, 4, v1')
    stampw(k,1,prof)
    k.wait(*toks); k('s_barrier')
    stampw(k,2,prof)
    for u in range(8):
        k(f's_lshl_b32 s33, s3, 3'); k(f's_add_u32 s33, s33, {u}')
        k('s_mul_i32 s34, s33, 52'); k('s_lshr_b32 s34, s34, 8')
        k('s_mul_i32 s35, s34, 5'); k('s_sub_u32 s35, s33, s35')
        k('s_lshr_b32 s36, s35, 1'); k('s_lshl_b32 s36, s36, 2'); k('s_mul_i32 s37, s34, 10'); k('s_add_u32 s36, s36, s37')
        k('s_and_b32 s37, s35, 1')
        k('s_cmp_eq_u32 s35, 4'); k('s_cselect_b64 vcc, -1, 0')
        k('v_lshrrev_b32 v13, 1, v7'); k('v_cndmask_b32 v13, v7, v13, vcc'); k('v_add_u32 v13, s36, v13')
        k('v_and_b32 v14, 1, v7'); k('v_mov_b32 v15, s37'); k('v_cndmask_b32 v14, v15, v14, vcc'); k('v_lshlrev_b32 v14, 3, v14')
        o=20+4*u
        for hh in range(2):
            k(f'v_xor_b32 v15, v13, v{10+hh}'); k(f'v_lshl_add_u32 v15, v15, 4, v{8+hh}'); k('v_add_u32 v15, v15, v14')
            k(f'ds_read_b64_tr_b16 v[{o+2*hh}:{o+2*hh+1}], v15')
        k('s_mul_i32 s38, s34, 48'); k('s_add_u32 s38, s38, s28'); k('s_mul_i32 s38, s38, 5'); k('s_add_u32 s38, s38, s35')
        k('s_lshl_b32 s38, s38, 10'); k(f's_add_u32 s{44+u}, s38, {WS_WDS}')
    for u in range(8):
        o=20+4*u
        k(f'buffer_store_dwordx4 v[{o}:{o+3}], v12, s[16:19], s{44+u} offen {st}')
    if prof: k('s_waitcnt vmcnt(0)')
    stampw(k,3,prof); stampw(k,4,prof); stamp_flush(k,0,5,prof,16)
    k(f'{END}:'); k('s_endpgm')
    return k, (name,172,320,40960)

if __name__=='__main__':
    k,l=gen_k1(prof=True)
    assemble_file([k],[l],'k1.s')
```

```python
from asmgen import *
from layout import *
from gen_k1 import srd, stampw, stamp_flush
import numpy as np, struct

def bf16(x):
    u=struct.unpack('I',struct.pack('f',float(x)))[0]
    return ((u+0x7fff+((u>>16)&1))>>16)&0xffff
def f32(x): return struct.unpack('I',struct.pack('f',float(x)))[0]
D2B=[0,16,24]
def tables():
    out=[]
    cs=lambda a: (np.cos(2*np.pi*a), np.sin(2*np.pi*a))
    for o in range(2):
        for l in range(64):
            e1=l&15; q=l>>4
            for j in range(4):
                c,s=cs(((4*q+j)*e1%16)/16)
                lo,hi=(c,s) if o==0 else (-s,c)
                out.append(bf16(lo)|(bf16(hi)<<16))
    for mt in range(3):
        for o in range(2):
            for l in range(64):
                e1=l&15; q=l>>4
                for j in range(4):
                    d2=D2B[mt]+4*q+j
                    out.append(f32(cs((d2*e1%640)/640)[o]))
    for et in range(3):
        for mt in range(3):
            for l in range(64):
                m=l&15; q=l>>4; qq=m>>2; jj=m&3
                e2=8*qq+4*et+jj if et<2 else (32+2*qq+jj if jj<2 else None)
                for j in range(4):
                    d2=D2B[mt]+4*q+j
                    if e2 is None or (mt==2 and d2<32): out.append(0)
                    else:
                        c,s=cs((d2*e2%40)/40); out.append(bf16(c)|(bf16(s)<<16))
    return out
def table_text(label):
    t=tables()
    s=f'.p2align 8\n{label}:\n'
    for i in range(0,len(t),8): s+='.long '+', '.join(f'0x{x:08x}' for x in t[i:i+8])+'\n'
    return s

L_TAB=122880; L_MOD=L_TAB+17408; L_XR=L_MOD+9216; L_H2S=20480
def common_prologue(k, END):
    k('s_cmp_ge_u32 s2, 256'); k(f's_cbranch_scc1 {END}')
    k(f's_load_dwordx2 s[14:15], s[0:1], {KA["ws"]}')
    k('v_lshrrev_b32 v1, 6, v0'); k('v_readfirstlane_b32 s3, v1')
    k('v_and_b32 v1, 63, v0'); k('v_and_b32 v2, 15, v0'); k('v_lshrrev_b32 v3, 4, v1')
    k('s_and_b32 s12, s2, 7'); k('s_lshl_b32 s12, s12, 1'); k('s_bfe_u32 s13, s2, 0x10003'); k('s_add_u32 s12, s12, s13')
    k('s_lshr_b32 s13, s2, 4')

def emit_p2(k, prof, st=''):
    UO=4; TA=9; A2=16; BF=32; ACC=72; CA=112; SA=124
    FA=136; TW=152; G4=176; XV=212; TMP=232
    k(f's_mov_b32 s28, {(2**32+19)//20}')
    for m in range(5):
        k(f'v_add_u32 v{TMP}, {64*m}, v1'); k(f'v_mul_hi_u32 v{TMP+1}, v{TMP}, s28')
        k(f'v_bfe_u32 v{TMP+1}, v{TMP+1}, 2, 1'); k(f'v_lshlrev_b32 v{TMP+1}, 1, v{TMP+1}')
        k(f'v_xor_b32 v{TMP}, v{TMP}, v{TMP+1}'); k(f'v_lshlrev_b32 v{UO+m}, 4, v{TMP}')
    k('s_mul_i32 s29, s12, 163840'); k('s_mul_i32 s30, s3, 40960'); k('s_add_u32 s29, s29, s30')
    if WS_U: k(f's_add_u32 s29, s29, {WS_U}')
    k('s_mul_i32 s30, s3, 30720')
    def dma_ks(ks):
        toks=[]
        k(f's_add_u32 m0, s30, {(ks%3)*10240}')
        for h in range(2):
            for m in range(5):
                toks.append(k(f'buffer_load_dwordx4 v{UO+m}, s[16:19], s29 offen lds'))
                if not (h==1 and m==4): k('s_add_u32 m0, m0, 1024')
            k('s_add_u32 s29, s29, 5120')
        return toks
    tk=[dma_ks(0)]
    k('s_lshl_b32 s31, s13, 7'); k('s_add_u32 s32, s31, s12')
    k('s_sub_u32 s33, s31, 1008'); k('s_cmp_lt_u32 s13, 8'); k('s_cselect_b32 s33, s31, s33')
    k('s_cmp_eq_u32 s12, 0'); k('s_cselect_b32 s31, s33, s32')
    k('s_lshl_b32 s32, s3, 5'); k('s_add_u32 s32, s32, s31')
    k('s_sub_u32 s33, 2048, s32'); k('s_cmp_eq_u32 s32, 0'); k('s_cselect_b32 s33, 1024, s33')
    k(f'v_lshlrev_b32 v{TMP}, 4, v1'); k(f'v_lshlrev_b32 v{TMP+1}, 2, v1')
    misc=[]
    k('s_lshl_b32 s34, s3, 12'); k(f's_add_u32 m0, s34, {L_TAB}')
    for u in range(4):
        misc.append(k(f'buffer_load_dwordx4 v{TMP}, s[24:27], s34 offen offset:{1024*u} lds'))
    k('s_lshl_b32 s34, s3, 10'); k(f's_add_u32 m0, s34, {L_MOD}'); k(f's_add_u32 s34, s34, {WS_MOD+6144}')
    misc.append(k(f'buffer_load_dwordx4 v{TMP}, s[16:19], s34 offen lds'))
    k('s_add_u32 m0, m0, 4096'); k('s_add_u32 s34, s34, 4096')
    misc.append(k(f'buffer_load_dwordx4 v{TMP}, s[16:19], s34 offen lds'))
    La=k.label('a'); Lb=k.label('b')
    k('s_cmp_lg_u32 s3, 0'); k(f's_cbranch_scc1 {La}')
    k(f's_mov_b32 m0, {L_MOD+8192}'); k(f's_mov_b32 s34, {WS_MOD+6144+8192}')
    misc.append(k(f'buffer_load_dwordx4 v{TMP}, s[16:19], s34 offen lds'))
    k(f'{La}:')
    k('s_cmp_lg_u32 s3, 1'); k(f's_cbranch_scc1 {Lb}')
    k(f's_mov_b32 m0, {L_TAB+16384}'); k(f's_mov_b32 s34, 16384')
    misc.append(k(f'buffer_load_dwordx4 v{TMP}, s[24:27], s34 offen lds'))
    k(f'{Lb}:')
    k('s_mul_i32 s35, s3, 2560'); k(f's_add_u32 s35, s35, {L_XR}')
    for ab in range(2):
        k(f's_add_u32 m0, s35, {1280*ab}'); k(f's_mul_i32 s34, s{32+ab}, 1280')
        misc.append(k(f'buffer_load_dwordx4 v{TMP}, s[20:23], s34 offen lds'))
        misc.append(k(f'buffer_load_dword v{TMP+1}, s[20:23], s34 offen offset:1024 lds'))
    k(f'v_lshlrev_b32 v{TMP}, 4, v2'); k('s_lshl_b32 s34, s3, 8'); k(f's_add_u32 s34, s34, {WS_MOD}')
    k('s_add_u32 s36, s34, 3072')
    for u in range(3): k(f'buffer_load_dwordx4 v[{CA+4*u}:{CA+4*u+3}], v{TMP}, s[16:19], s36 offen offset:{1024*u}')
    Lc=k.label('c')
    k('s_cmp_lg_u32 s31, 0'); k(f's_cbranch_scc1 {Lc}')
    for u in range(3): k(f'buffer_load_dwordx4 v[{SA+4*u}:{SA+4*u+3}], v{TMP}, s[16:19], s34 offen offset:{1024*u}')
    k(f'{Lc}:')
    tk.append(dma_ks(1)); tk.append(dma_ks(2))
    stampw(k,1,prof)
    T=TMP
    k(f'v_lshrrev_b32 v{T}, 2, v2'); k(f'v_lshl_add_u32 v{T}, v{T}, 5, s31'); k(f'v_cvt_f32_u32 v{T}, v{T}')
    k(f'v_mul_f32 v{T}, 0x3a000000, v{T}')
    k(f'v_and_b32 v{T+1}, 3, v2'); k(f'v_cvt_f32_u32 v{T+1}, v{T+1}'); k(f'v_mul_f32 v{T+1}, 0x3e800000, v{T+1}')
    k(f'v_mov_b32 v{T+2}, v{T}');
    k('s_cmp_eq_u32 s12, 0'); k('s_cselect_b32 s36, 0, 0xbe800000'); k(f'v_add_f32 v{T+3}, s36, v{T+1}')
    k('s_cmp_eq_u32 s12, 0'); k('s_cselect_b32 s36, 1, 0'); k('s_lshr_b32 s37, s13, 3')
    k('s_and_b32 s38, s36, s37'); k('s_andn2_b32 s39, s36, s37')
    k(f'v_mov_b32 v{T+6}, 0x3e800000')
    k('s_cmp_lg_u32 s38, 0'); k('s_cselect_b64 vcc, -1, 0')
    k(f'v_cndmask_b32 v{T}, v{T}, 0, vcc'); k(f'v_cndmask_b32 v{T+1}, v{T+1}, v{T+6}, vcc')
    k('s_cmp_lg_u32 s39, 0'); k('s_cselect_b64 vcc, -1, 0')
    k(f'v_cndmask_b32 v{T+2}, v{T+2}, 0, vcc'); k(f'v_cndmask_b32 v{T+3}, v{T+3}, v{T+6}, vcc')
    k('s_cmp_eq_u32 s31, 0'); k('s_cselect_b32 s36, 1, 99'); k('v_cmp_eq_u32 vcc, s36, v2')
    k(f'v_cndmask_b32 v{T}, v{T}, 0.5, vcc'); k(f'v_cndmask_b32 v{T+1}, v{T+1}, 0, vcc')
    k(f'v_lshrrev_b32 v{T+4}, 1, v3'); k(f'v_lshlrev_b32 v{T+4}, 3, v{T+4}'); k(f'v_and_b32 v{T+5}, 1, v3'); k(f'v_lshl_add_u32 v{T+4}, v{T+5}, 1, v{T+4}')
    k(f'v_cvt_f32_u32 v{T+4}, v{T+4}')
    k(f'v_fma_f32 v{T+1}, v{T}, v{T+4}, v{T+1}'); k(f'v_fma_f32 v{T+3}, v{T+2}, v{T+4}, v{T+3}')
    for ks in range(4):
        for u in range(4):
            c=16*ks+4*(u>>1)+(u&1)
            k(f'v_fmamk_f32 v{T+8+2*u}, v{T}, {float(c)}, v{T+1}'); k(f'v_fmamk_f32 v{T+9+2*u}, v{T+2}, {float(c)}, v{T+3}')
        for u in range(8): k(f'v_cos_f32 v{T+8+u}, v{T+8+u}')
        for u in range(4): k(f'v_cvt_pk_bf16_f32 v{A2+4*ks+u}, v{T+8+2*u}, v{T+9+2*u}')
    k(f'v_lshrrev_b32 v{T}, 1, v3'); k(f'v_lshlrev_b32 v{T}, 4, v{T}'); k(f'v_and_b32 v{T+1}, 1, v3'); k(f'v_lshl_add_u32 v{T}, v{T+1}, 2, v{T}')
    k(f'v_lshrrev_b32 v{T+2}, 2, v2'); k(f'v_add_u32 v{T}, v{T}, v{T+2}'); k(f'v_mul_u32_u24 v{T}, 320, v{T}')
    k(f'v_and_b32 v{T+2}, 1, v2'); k(f'v_lshl_add_u32 v{T}, v{T+2}, 3, v{T}'); k(f'v_add_u32 v{T}, s30, v{T}')
    k(f'v_lshlrev_b32 v{T+1}, 1, v{T+1}')
    k(f'v_bfe_u32 v{T+2}, v2, 1, 1'); k(f'v_mul_u32_u24 v{T+2}, 5, v{T+2}')
    for u in range(4):
        k(f'v_add_u32 v{T+3}, {u}, v{T+2}'); k(f'v_xor_b32 v{T+3}, v{T+3}, v{T+1}'); k(f'v_lshl_add_u32 v{TA+u}, v{T+3}, 4, v{T}')
    k(f'v_mul_u32_u24 v13, 640, v3'); k(f'v_and_b32 v{T}, 7, v2'); k(f'v_lshl_add_u32 v13, v{T}, 4, v13')
    k(f'v_lshrrev_b32 v{T}, 3, v2'); k(f'v_lshl_add_u32 v13, v{T}, 2, v13'); k('v_add_u32 v13, s30, v13')
    k('s_mul_i32 s36, s3, 640'); k(f'v_mul_u32_u24 v14, 30720, v3'); k('v_lshl_add_u32 v14, v2, 4, v14'); k('v_add_u32 v14, s36, v14')
    k('v_lshlrev_b32 v15, 4, v1')
    for u in range(20): k(f'v_mov_b32 v{XV+u}, 0')
    tiles=[(b,a) for b in range(2) for a in range(5)]
    def trs(ks, half):
        tt=None
        for ti in range(5*half,5*half+5):
            b,a=tiles[ti]; t=10*b+a
            for hh in range(2):
                o=BF+4*ti+2*hh
                tt=k(f'ds_read_b64_tr_b16 v[{o}:{o+1}], v{TA+(t&3)} offset:{16*(t&~3)+2560*hh+10240*(ks%3)}')
        return tt
    def mf(ks, half):
        for ti in range(5*half,5*half+5):
            c=f'v[{ACC+4*ti}:{ACC+4*ti+3}]'
            k(f'v_mfma_f32_16x16x32_bf16 {c}, v[{A2+4*ks}:{A2+4*ks+3}], v[{BF+4*ti}:{BF+4*ti+3}], {c if ks else 0}')
    for ks in range(4):
        k.wait(*tk[ks])
        if ks==0: stampw(k,2,prof)
        if ks==1:
            k.wait(*misc); k('s_barrier')
        trs(ks,0); t=trs(ks,1)
        mf(ks,0)
        if ks==0:
            k.wait(t); tk.append(dma_ks(3))
        mf(ks,1)
        if ks==1:
            k(f'v_add_u32 v{T}, {L_TAB}, v15')
            for u in range(2): k(f'ds_read_b128 v[{FA+4*u}:{FA+4*u+3}], v{T} offset:{1024*u}')
            for u in range(6): k(f'ds_read_b128 v[{TW+4*u}:{TW+4*u+3}], v{T} offset:{2048+1024*u}')
            for u in range(9): k(f'ds_read_b128 v[{G4+4*u}:{G4+4*u+3}], v{T} offset:{8192+1024*u}')
            k(f'v_lshlrev_b32 v{T+1}, 1, v2'); k(f'v_lshl_add_u32 v{T+2}, v3, 8, v{T+1}'); k(f'v_lshl_add_u32 v{T+3}, v3, 6, v{T+1}')
            k(f'v_add_u32 v{T+2}, s35, v{T+2}'); k(f'v_add_u32 v{T+3}, s35, v{T+3}')
            XA,XB=250,251
            k(f'v_mov_b32 v{XA}, v{T+2}'); k(f'v_mov_b32 v{XB}, v{T+3}')
            for ab in range(2):
                for jj in range(8): k(f'ds_read_u16_d16_hi v{XV+10*ab+jj}, v{XA} offset:{1280*ab+32*jj}')
                for j in range(2): k(f'ds_read_u16_d16_hi v{XV+10*ab+8+j}, v{XB} offset:{1280*ab+1024+32*j}')
        if ks==2:
            k('s_cmp_eq_u32 s32, 0'); k('s_cselect_b64 vcc, -1, 0'); k('s_cselect_b32 s36, 0xffff, -1')
            for u in range(8):
                k(f'v_xor_b32 v{FA+8+u}, 0x80000000, v{FA+u}'); k(f'v_lshlrev_b32 v{T}, 16, v{FA+u}')
                k(f'v_cndmask_b32 v{FA+8+u}, v{FA+8+u}, v{T}, vcc'); k(f'v_and_b32 v{FA+u}, s36, v{FA+u}')
    stampw(k,3,prof)
    for ti in range(10):
        k(f'v_mul_f32 v{ACC+4*ti}, v{ACC+4*ti}, v{CA+ti}'); k(f'v_mul_f32 v{ACC+4*ti+1}, v{ACC+4*ti+1}, v{CA+ti}')
    Ld=k.label('d')
    k('s_cmp_lg_u32 s31, 0'); k(f's_cbranch_scc1 {Ld}')
    k('s_mov_b64 exec, 0xffff')
    for ti in range(10): k(f'v_add_f32 v{ACC+4*ti}, v{ACC+4*ti}, v{SA+ti}')
    k('s_mov_b64 exec, -1')
    k(f'{Ld}:')
    for ti in range(10):
        b,a=tiles[ti]
        k(f'v_cvt_pk_bf16_f32 v{ACC+4*ti}, v{ACC+4*ti}, v{ACC+4*ti+1}')
        t=k(f'ds_write_b32 v13, v{ACC+4*ti} offset:{10240+128*a+8*b}')
    k.wait(t); k('s_barrier')
    ZF=16; VV=28; PB=76; Y=100; GA=28; SB=40; CB=52; X1=76
    for mt in range(3): k(f'ds_read_b128 v[{ZF+4*mt}:{ZF+4*mt+3}], v14 offset:{10240+16*D2B[mt]}')
    for ab in range(2):
        for mt in range(3):
            for o in range(2):
                d=VV+24*ab+8*mt+4*o
                k(f'v_mfma_f32_16x16x32_bf16 v[{d}:{d+3}], v[{ZF+4*mt}:{ZF+4*mt+3}], v[{FA+8*ab+4*o}:{FA+8*ab+4*o+3}], 0')
    for ab in range(2):
        for mt in range(3):
            re=VV+24*ab+8*mt; im=re+4; c=TW+8*mt; s=c+4
            for j in range(4): k(f'v_mul_f32 v{T+j}, v{re+j}, v{c+j}'); k(f'v_mul_f32 v{T+4+j}, v{im+j}, v{c+j}')
            for j in range(4): k(f'v_fmac_f32 v{T+j}, v{im+j}, v{s+j}'); k(f'v_fma_f32 v{T+4+j}, -v{re+j}, v{s+j}, v{T+4+j}')
            for j in range(4): k(f'v_cvt_pk_bf16_f32 v{PB+12*ab+4*mt+j}, v{T+j}, v{T+4+j}')
        for mt in range(3):
            for et in range(3):
                d=f'v[{Y+12*ab+4*et}:{Y+12*ab+4*et+3}]'
                k(f'v_mfma_f32_16x16x32_bf16 {d}, v[{G4+12*et+4*mt}:{G4+12*et+4*mt+3}], v[{PB+12*ab+4*mt}:{PB+12*ab+4*mt+3}], {d if mt else 0}')
        if ab==1:
            k(f'v_add_u32 v{T}, {L_MOD}, v15')
            for v,base in enumerate((GA,SB,CB)):
                for u in range(3): k(f'ds_read_b128 v[{base+4*u}:{base+4*u+3}], v{T} offset:{3072*v+1024*u}')
    stampw(k,4,prof)
    for ab in range(2):
        for u in range(10): k(f'v_fmac_f32 v{XV+10*ab+u}, v{GA+u}, v{Y+12*ab+u}')
    for ab in range(2):
        k(f'v_add_f32 v{T+2*ab}, v{XV+10*ab}, v{XV+10*ab+1}'); k(f'v_mul_f32 v{T+2*ab+1}, v{XV+10*ab}, v{XV+10*ab}')
    for ab in range(2): k(f'v_fmac_f32 v{T+2*ab+1}, v{XV+10*ab+1}, v{XV+10*ab+1}')
    for u in range(2,10):
        for ab in range(2):
            k(f'v_add_f32 v{T+2*ab}, v{T+2*ab}, v{XV+10*ab+u}'); k(f'v_fmac_f32 v{T+2*ab+1}, v{XV+10*ab+u}, v{XV+10*ab+u}')
    k(f'v_permlane16_swap_b32 v{T}, v{T+1}'); k(f'v_permlane16_swap_b32 v{T+2}, v{T+3}')
    k(f'v_add_f32 v{T}, v{T}, v{T+1}'); k(f'v_add_f32 v{T+2}, v{T+2}, v{T+3}')
    k(f'v_permlane32_swap_b32 v{T}, v{T+2}'); k(f'v_add_f32 v{T}, v{T}, v{T+2}')
    for sh in (8,4,2,1): k(f'v_add_f32_dpp v{T}, v{T}, v{T} row_ror:{sh} row_mask:0xf bank_mask:0xf')
    k(f'v_mul_f32 v{T}, 0x3acccccd, v{T}')
    for u in range(4): k(f'v_readlane_b32 s{36+u}, v{T}, {16*u}')
    for ab in range(2):
        k(f'v_mov_b32 v{T+2+ab}, s{37+2*ab}'); k(f'v_mov_b32 v{T+4+ab}, s{36+2*ab}')
    for ab in range(2): k(f'v_fma_f32 v{T+2+ab}, -v{T+4+ab}, v{T+4+ab}, v{T+2+ab}')
    for ab in range(2): k(f'v_max_f32 v{T+2+ab}, 0, v{T+2+ab}')
    for ab in range(2): k(f'v_add_f32 v{T+2+ab}, 0x3727c5ac, v{T+2+ab}')
    for ab in range(2): k(f'v_rsq_f32 v{T+2+ab}, v{T+2+ab}')
    k('s_lshl_b32 s40, s3, 1')
    k(f'v_and_b32 v{T+8}, 7, v1'); k(f'v_xor_b32 v{T+8}, s40, v{T+8}'); k(f'v_lshlrev_b32 v{T+8}, 4, v{T+8}'); k(f'v_lshl_add_u32 v{T+8}, v1, 7, v{T+8}')
    k(f'v_xor_b32 v{T+9}, 16, v{T+8}')
    k(f'v_bfe_u32 v{T+10}, v1, 2, 3'); k(f'v_xor_b32 v{T+10}, s40, v{T+10}'); k(f'v_lshlrev_b32 v{T+10}, 4, v{T+10}')
    k(f'v_lshrrev_b32 v{T+11}, 2, v1'); k(f'v_lshl_add_u32 v{T+10}, v{T+11}, 7, v{T+10}'); k(f'v_and_b32 v{T+11}, 3, v1'); k(f'v_lshl_add_u32 v{T+10}, v{T+11}, 2, v{T+10}')
    k(f'v_xor_b32 v{T+11}, 16, v{T+10}')
    for ab in range(2): k(f'v_mul_f32 v{T+4+ab}, -v{T+4+ab}, v{T+2+ab}')
    H=Y
    for ab in range(2):
        for u in range(10): k(f'v_fma_f32 v{H+12*ab+u}, v{XV+10*ab+u}, v{T+2+ab}, v{T+4+ab}')
        for u in range(10): k(f'v_fma_f32 v{H+12*ab+u}, v{H+12*ab+u}, v{CB+u}, v{SB+u}')
        for u in range(5): k(f'v_cvt_pk_bf16_f32 v{PB+8*ab+u}, v{H+12*ab+2*u}, v{H+12*ab+2*u+1}')
        k(f'ds_write_b128 v{T+8+ab}, v[{PB+8*ab}:{PB+8*ab+3}] offset:{L_H2S}')
        t=k(f'ds_write_b32 v{T+10+ab}, v{PB+8*ab+4} offset:{L_H2S+8192}')
    k('s_lshr_b32 s36, s13, 1'); k('s_lshl_b32 s37, s12, 3'); k('s_add_u32 s36, s36, s37'); k('s_mul_i32 s36, s36, 20480')
    k('s_and_b32 s37, s13, 1'); k('s_lshl_b32 s37, s37, 7'); k('s_add_u32 s36, s36, s37'); k(f's_add_u32 s36, s36, {WS_H2}')
    k(f'v_lshrrev_b32 v{T}, 3, v0'); k(f'v_xor_b32 v{T+1}, v{T}, v0'); k(f'v_and_b32 v{T+1}, 7, v{T+1}'); k(f'v_lshlrev_b32 v{T+1}, 4, v{T+1}')
    k(f'v_lshl_add_u32 v{T+1}, v{T}, 8, v{T+1}'); k(f'v_lshlrev_b32 v{T}, 4, v0')
    k.wait(t); k('s_barrier')
    for r in range(2): k(f'ds_read_b128 v[{ZF+4*r}:{ZF+4*r+3}], v{T} offset:{L_H2S+4096*r}')
    Le=k.label('e')
    k('s_cmp_ge_u32 s3, 2'); k(f's_cbranch_scc1 {Le}')
    k(f'ds_read_b128 v[{ZF+8}:{ZF+11}], v{T} offset:{L_H2S+8192}')
    k('s_add_u32 s37, s36, 16384')
    k(f'buffer_store_dwordx4 v[{ZF+8}:{ZF+11}], v{T+1}, s[16:19], s37 offen {st}')
    k(f'{Le}:')
    k('s_add_u32 s37, s36, 8192')
    k(f'buffer_store_dwordx4 v[{ZF}:{ZF+3}], v{T+1}, s[16:19], s36 offen {st}')
    k(f'buffer_store_dwordx4 v[{ZF+4}:{ZF+7}], v{T+1}, s[16:19], s37 offen {st}')
    stampw(k,5,prof)
    for ab in range(2):
        for u in range(5): k(f'v_cvt_pk_bf16_f32 v{GA+8*ab+u}, v{XV+10*ab+2*u}, v{XV+10*ab+2*u+1}')
        for u in range(10):
            op='ds_write_b16_d16_hi' if u&1 else 'ds_write_b16'
            if u<8: t=k(f'{op} v250, v{GA+8*ab+(u>>1)} offset:{1280*ab+32*u}')
            else: t=k(f'{op} v251, v{GA+8*ab+(u>>1)} offset:{1280*ab+1024+32*(u-8)}')
    k(f'v_add_u32 v{T}, s35, v15'); k(f'v_lshlrev_b32 v{T+1}, 2, v1'); k(f'v_add_u32 v{T+2}, s35, v{T+1}')
    k('s_lshl_b32 s36, s12, 7'); k('s_lshl_b32 s37, s13, 3'); k('s_add_u32 s36, s36, s37'); k('s_add_u32 s36, s36, s40')
    k('s_mul_i32 s36, s36, 1280'); k(f's_add_u32 s36, s36, {WS_X1}')
    k.wait(t)
    for ab in range(2):
        k(f'ds_read_b128 v[{CB+8*ab}:{CB+8*ab+3}], v{T} offset:{1280*ab}'); k(f'ds_read_b32 v{CB+8*ab+4}, v{T+2} offset:{1280*ab+1024}')
    for ab in range(2):
        k(f'buffer_store_dwordx4 v[{CB+8*ab}:{CB+8*ab+3}], v15, s[16:19], s36 offen offset:{1280*ab} {st}')
        k(f'buffer_store_dword v{CB+8*ab+4}, v{T+1}, s[16:19], s36 offen offset:{1280*ab+1024} {st}')

def table_srd(k, label, r=24):
    L=k.label('pc')
    k('s_getpc_b64 s[4:5]'); k(f'{L}:')
    k(f's_add_u32 s4, s4, {label}-{L}'); k('s_addc_u32 s5, s5, 0')
    srd(k,r,4,17408)

def gen_k2(name='k2_kernel', prof=False):
    k=Kernel(name); END=k.label('end')
    stampw(k,0,prof)
    common_prologue(k,END)
    k(f's_load_dwordx2 s[6:7], s[0:1], {KA["x"]}')
    table_srd(k,name+'_tab')
    srd(k,16,14,WS_SIZE); srd(k,20,6,S*D*2)
    emit_p2(k,prof)
    if prof: k('s_waitcnt vmcnt(0)')
    stampw(k,6,prof); stamp_flush(k,1,7,prof,16)
    k(f'{END}:'); k('s_endpgm')
    return (k,table_text(name+'_tab')), (name,256,256,163840)

if __name__=='__main__':
    from gen_k1 import gen_k1
    k1,l1=gen_k1(prof=True); k2,l2=gen_k2(prof=True)
    assemble_file([k1,k2],[l1,l2],'k12.s')
```

```python
from asmgen import *
from layout import *
from gen_k1 import srd, stampw, stamp_flush
from gen_p2 import common_prologue, f32

K1c=-2*0.7978845608028654*1.4426950408889634
K2c=K1c*0.044715

class Side:
    def __init__(self,k): self.k=k; self.q=[]
    def add(self,*x): self.q.extend(x)
    def emit(self,n):
        while n>0 and self.q:
            x=self.q.pop(0)
            if callable(x): x()
            else: self.k(x)
            n-=1
    def flush(self): self.emit(1<<30)

L3_H=[0,40960]; L3_W=81920; WST=24576
def p3_setup(k):
    T=40
    k(f's_mov_b32 s28, {(2**32+11)//12}')
    k('s_and_b32 s29, s3, 1'); k('s_mul_i32 s29, s29, 192')
    for m in range(3):
        k(f'v_add_u32 v{T}, s29, v1');
        if m: k(f'v_add_u32 v{T}, {64*m}, v{T}')
        k(f'v_mul_hi_u32 v{T+1}, v{T}, s28')
        k(f'v_mul_u32_u24 v{T+2}, 12, v{T+1}'); k(f'v_sub_u32 v{T+2}, v{T}, v{T+2}'); k(f'v_lshlrev_b32 v{T+2}, 4, v{T+2}')
        k(f'v_lshrrev_b32 v{T+3}, 3, v{T+1}'); k(f'v_and_b32 v{T+4}, 7, v{T+1}')
        k(f'v_lshl_add_u32 v{T+5}, v{T+4}, 4, v{T+3}'); k(f'v_mul_u32_u24 v{T+5}, 3072, v{T+5}'); k(f'v_add_u32 v{4+m}, v{T+5}, v{T+2}')
        k(f'v_lshrrev_b32 v{T+5}, 1, v{T+4}'); k(f'v_lshl_add_u32 v{T+5}, v{T+3}, 2, v{T+5}'); k(f'v_and_b32 v{T+4}, 1, v{T+4}')
        k(f'v_lshl_add_u32 v{T+5}, v{T+4}, 4, v{T+5}'); k(f'v_mul_u32_u24 v{T+5}, 3072, v{T+5}'); k(f'v_add_u32 v{7+m}, v{T+5}, v{T+2}')
    k('s_mul_i32 s30, s13, 192')
    k('s_mul_i32 s31, s3, 3072'); k(f's_add_u32 s31, s31, {L3_W}')
    k('v_lshlrev_b32 v12, 4, v1')
def p3_setup2(k):
    T=40
    k(f'v_lshrrev_b32 v{T}, 2, v2'); k(f'v_lshl_add_u32 v{T}, v3, 3, v{T}'); k(f'v_mul_u32_u24 v{T}, 192, v{T}')
    k('s_mul_i32 s29, s3, 48'); k(f's_add_u32 s29, s29, {L3_W}'); k(f'v_add_u32 v{T}, s29, v{T}')
    k(f'v_and_b32 v{T+1}, 3, v2'); k(f'v_lshl_add_u32 v10, v{T+1}, 3, v{T}')
    k(f'v_and_b32 v{T+1}, 1, v2'); k(f'v_lshl_add_u32 v11, v{T+1}, 3, v{T}'); k(f'v_bfe_u32 v{T+1}, v2, 1, 1')
    k(f'v_mul_u32_u24 v{T+1}, 6144, v{T+1}'); k(f'v_add3_u32 v11, v11, v{T+1}, 32')
    k(f'v_and_b32 v{T}, 1, v3'); k(f'v_lshrrev_b32 v{T+1}, 1, v3')
    k(f'v_mul_u32_u24 v13, 49152, v{T}'); k(f'v_lshl_add_u32 v13, v{T+1}, 8, v13'); k('v_lshl_add_u32 v13, v2, 4, v13')
    k(f'v_mul_u32_u24 v14, 49152, v{T+1}'); k(f'v_lshl_add_u32 v14, v{T}, 3, v14'); k('v_lshl_add_u32 v14, v2, 4, v14')
    k(f's_mul_i32 s33, s12, {8*49152}'); k('s_mul_i32 s34, s13, 3072'); k('s_add_u32 s33, s33, s34'); k('s_mul_i32 s34, s3, 768'); k('s_add_u32 s33, s33, s34')
    k(f's_add_u32 s33, s33, {WS_G}')
    k(f'v_mov_b32 v15, 0x{f32(K1c):08x}'); k(f'v_mov_b32 v16, 0x{f32(K2c):08x}')
    k(f'v_add_u32 v17, {L3_H[1]}, v12'); k(f'v_add_u32 v18, {2*WST}, v10'); k(f'v_add_u32 v19, {2*WST}, v11')
def w_dma(k, ks, slot):
    reg=4 if ks<16 else 7
    row=(4*(ks&3)+128*(ks>>2)) if ks<16 else 512+32*(ks-16)
    k(f's_add_u32 s32, s30, {row*3072}'); k(f's_add_u32 m0, s31, {slot*WST+(ks&1)*12288}')
    t=[]
    for m in range(3):
        t.append(k(f'buffer_load_dwordx4 v{reg+m}, s[20:23], s32 offen lds'))
        if m<2: k('s_add_u32 m0, m0, 1024')
    return t
def w_tr(k, ks, slot):
    t=None
    base=(slot%2)*WST+(ks&1)*12288; r0=18 if slot==2 else 10
    for T in range(3):
        for hh in range(2):
            a=(ks*3+T)*4+2*hh
            t=k(f'ds_read_b64_tr_b16 a[{a}:{a+1}], v{r0+1 if T==2 else r0} offset:{base+768*hh+(6144 if T==1 else 0)}')
    return t
def h2_dma_list(k, c, buf, toks, fl=''):
    out=[]
    def first():
        k(f's_add_u32 s35, s36, {c*40960}'); k(f's_add_u32 m0, s37, {buf}')
    out.append(first)
    for u in range(10):
        def f(u=u):
            if u%4==0 and u: k('s_add_u32 s35, s35, 4096'); k('s_add_u32 m0, m0, 4096'); k('s_nop 0')
            toks.append(k(f'buffer_load_dwordx4 v12, s[16:19], s35 offen offset:{1024*(u%4)} lds {fl}'))
        out.append(f)
    return out
HB=24; AC=48; EP=96
def epi_list(c, st=''):
    A=AC+24*(c&1); L=[]
    acc=lambda nt,T,j: A+12*nt+4*T+j
    for j in range(4): L.append(f'v_permlane32_swap_b32 v{acc(0,2,j)}, v{acc(1,2,j)}')
    groups=[[(acc(0,0,j),acc(0,1,j)) for j in range(4)],[(acc(1,0,j),acc(1,1,j)) for j in range(4)],[(acc(0,2,j),acc(1,2,j)) for j in range(4)]]
    for gi,gr in enumerate(groups):
        t=EP
        for j,(g,u) in enumerate(gr): L.append(f'v_mul_f32 v{t+j}, v{g}, v{g}')
        for j,(g,u) in enumerate(gr): L.append(f'v_fma_f32 v{t+j}, v{t+j}, v16, v15')
        for j,(g,u) in enumerate(gr): L.append(f'v_mul_f32 v{t+j}, v{t+j}, v{g}')
        for j,(g,u) in enumerate(gr): L.append(f'v_exp_f32 v{t+j}, v{t+j}'); L.append(f'v_mul_f32 v{g}, v{g}, v{u}')
        for j,(g,u) in enumerate(gr): L.append(f'v_add_f32 v{t+j}, 1.0, v{t+j}')
        for j,(g,u) in enumerate(gr): L.append(f'v_rcp_f32 v{t+j}, v{t+j}')
        for j,(g,u) in enumerate(gr): L.append(f'v_mul_f32 v{g}, v{g}, v{t+j}')
        o=EP+4+2*gi+6*(c&1)*0
        L.append(f'v_cvt_pk_bf16_f32 v{o}, v{gr[0][0]}, v{gr[1][0]}'); L.append(f'v_cvt_pk_bf16_f32 v{o+1}, v{gr[2][0]}, v{gr[3][0]}')
        if gi==1:
            L.append(f's_add_u32 s34, s33, {2*c*49152}')
            L.append(f'v_permlane16_swap_b32 v{EP+4}, v{EP+6}'); L.append(f'v_permlane16_swap_b32 v{EP+5}, v{EP+7}')
            L.append(f'buffer_store_dwordx4 v[{EP+4}:{EP+7}], v13, s[16:19], s34 offen {st}')
    L.append(f'buffer_store_dwordx2 v[{EP+8}:{EP+9}], v14, s[16:19], s34 offen offset:512 {st}')
    return L
def h_read(k, buf, ks):
    t=None
    for nt in range(2):
        o=HB+8*(ks%3)+4*nt
        t=k(f'ds_read_b128 v[{o}:{o+3}], v{17 if buf else 12} offset:{20480*nt+1024*ks}')
    return t
def mm_ks(k, c, ks, side, nside):
    A=AC+24*(c&1)
    for nt in range(2):
        for T in range(3):
            d=f'v[{A+12*nt+4*T}:{A+12*nt+4*T+3}]'; a=(ks*3+T)*4; o=HB+8*(ks%3)+4*nt
            k(f'v_mfma_f32_16x16x32_bf16 {d}, a[{a}:{a+3}], v[{o}:{o+3}], {d if ks else 0}')
            side.emit(nside)

def gen_k3(name='k3_kernel', prof=False):
    k=Kernel(name); END=k.label('end')
    stampw(k,0,prof)
    common_prologue(k,END)
    k(f's_load_dwordx4 s[4:7], s[0:1], {KA["wg"]}')
    srd(k,16,14,WS_SIZE)
    k('s_cmp_lt_u32 s3, 2'); k('s_cselect_b32 s4, s4, s6'); k('s_cselect_b32 s5, s5, s7'); srd(k,20,4,D*F*2)
    p3_setup(k)
    k('s_mul_i32 s36, s12, 163840'); k('s_mul_i32 s37, s3, 10240'); k('s_add_u32 s36, s36, s37'); k(f's_add_u32 s36, s36, {WS_H2}')
    wt={}
    for ks in (0,1): wt[ks]=w_dma(k,ks,0)
    ht={0:[],1:[],2:[],3:[]}
    for f in h2_dma_list(k,0,L3_H[0],ht[0]): f()
    for ks in (2,3,4,5): wt[ks]=w_dma(k,ks,ks>>1)
    p3_setup2(k)
    stampw(k,1,prof)
    side=Side(k)
    for stg in range(10):
        k.wait(*wt[2*stg+1]);
        if stg==0: k.wait(*ht[0])
        k('s_barrier')
        if stg>=1 and stg+2<10:
            for ks in (2*stg+4,2*stg+5): wt[ks]=w_dma(k,ks,(stg+2)%3)
        if stg==8:
            for f in h2_dma_list(k,1,L3_H[1],ht[1]): f()
        for ks in (2*stg,2*stg+1):
            w_tr(k,ks,stg%3); h_read(k,L3_H[0],ks)
        for ks in (2*stg,2*stg+1): mm_ks(k,0,ks,side,0)
    stampw(k,2,prof)
    for c in range(1,4):
        k.wait(*ht[c]); k('s_barrier')
        buf=L3_H[c&1]
        h_read(k,buf,0); h_read(k,buf,1)
        ep=epi_list(c-1)
        if c<3:
            dl=h2_dma_list(k,c+1,L3_H[(c+1)&1],ht[c+1])
            side.add(*dl)
        side.add(*ep)
        for ks in range(20):
            if ks+2<20: h_read(k,buf,ks+2)
            mm_ks(k,c,ks,side,1)
        side.flush()
        stampw(k,2+c,prof)
    side.add(*epi_list(3)); side.flush()
    if prof: k('s_waitcnt vmcnt(0)')
    stampw(k,6,prof); stamp_flush(k,2,7,prof,16)
    k(f'{END}:'); k('s_endpgm')
    return k,(name,256,256,L3_W+3*WST)

def gen_k4(name='k4_kernel', prof=False):
    k=Kernel(name); END=k.label('end')
    stampw(k,0,prof)
    common_prologue(k,END)
    k(f's_load_dwordx2 s[4:5], s[0:1], {KA["out"]}')
    srd(k,16,14,WS_SIZE); srd(k,20,4,S*D*2)
    k('v_lshlrev_b32 v12, 4, v1')
    k('s_lshr_b32 s28, s13, 3'); k('s_and_b32 s29, s13, 7')
    k('s_mul_i32 s30, s29, 48'); k('s_mul_i32 s31, s3, 12'); k('s_add_u32 s30, s30, s31'); k('s_mul_i32 s30, s30, 5120'); k(f's_add_u32 s30, s30, {WS_WDS}')
    k('s_lshl_b32 s32, s12, 3'); k('s_lshl_b32 s33, s28, 2'); k('s_add_u32 s32, s32, s33'); k('s_mul_i32 s32, s32, 49152')
    k('s_lshl_b32 s31, s31, 10'); k('s_add_u32 s32, s32, s31'); k(f's_add_u32 s32, s32, {WS_G}')
    for s in range(4):
        k(f's_add_u32 s33, s3, {1+s}'); k('s_and_b32 s33, s33, 3'); k(f's_mul_i32 s{44+s}, s33, 15360')
        k('s_mul_i32 s33, s33, 49152'); k(f's_add_u32 s{40+s}, s32, s33')
    GB=40; AC4=0;
    GF=64; ACC=16
    def gload(s,kl):
        o=GF+(s*12+kl)*4
        if kl%4==0 and kl: k(f's_add_u32 s{40+s}, s{40+s}, 4096')
        k(f'buffer_load_dwordx4 v[{o}:{o+3}], v12, s[16:19], s{40+s} offen offset:{1024*(kl%4)}')
    for kl in range(12):
        gload(0,kl)
        for mt in range(5):
            u=kl*5+mt
            if u%4==0 and u: k('s_add_u32 s30, s30, 4096')
            k(f'buffer_load_dwordx4 a[{4*u}:{4*u+3}], v12, s[16:19], s30 offen offset:{1024*(u%4)}')
    stampw(k,1,prof)
    side=Side(k)
    for s in range(1,4):
        for kl in range(12): side.add(lambda s=s,kl=kl: gload(s,kl))
    k('s_lshl_b32 s33, s28, 6'); k('s_lshl_b32 s34, s3, 4'); k('s_add_u32 s33, s33, s34'); k('v_add_u32 v7, s33, v2')
    k('s_mul_i32 s34, s29, 160'); k('v_lshlrev_b32 v8, 4, v3'); k('v_add_u32 v8, s34, v8')
    k('v_mul_u32_u24 v4, 1280, v7'); k('v_add_u32 v4, v4, v8')
    k('s_mul_i32 s35, s28, -1008'); k('s_cmp_eq_u32 s12, 0'); k('s_cselect_b32 s35, s35, s12')
    k('v_lshrrev_b32 v9, 1, v7'); k('v_lshl_add_u32 v9, v9, 5, s35')
    k('v_sub_u32 v10, 2048, v9'); k('v_cmp_eq_u32 vcc, 0, v9'); k('v_mov_b32 v11, 1024'); k('v_cndmask_b32 v10, v10, v11, vcc')
    k('v_and_b32 v11, 1, v7'); k('v_cmp_eq_u32 vcc, 1, v11'); k('v_cndmask_b32 v9, v9, v10, vcc')
    k('v_mul_u32_u24 v5, 1280, v9'); k('v_add_u32 v5, v5, v8')
    k('v_lshlrev_b32 v6, 1, v8')
    k('v_lshlrev_b32 v9, 3, v3'); k('v_sub_u32 v13, v4, v9'); k('v_sub_u32 v14, v5, v9'); k('v_lshlrev_b32 v9, 4, v3'); k('v_sub_u32 v15, v6, v9')
    k('s_mul_i32 s36, s12, 163840'); k(f's_add_u32 s36, s36, {WS_X1}'); k(f's_mov_b32 s37, {WS_MOD+5*3072}')
    for s in range(4):
        A=ACC+20*(s&1)
        if s>=1:
            B=ACC+20*((s-1)&1)
            pre=[f'v_add_u32 v56, s{44+s-1}, v12']+[f'ds_write_b128 v56, v[{B+4*mt}:{B+4*mt+3}] offset:{5120*(s-1)+1024*mt}' for mt in range(5)]
            side.q=[None]*0+side.q
            wl=Side(k); wl.add(*pre)
        cnt=0
        for kl in range(12):
            for mt in range(5):
                d=f'v[{A+4*mt}:{A+4*mt+3}]'; u=kl*5+mt; o=GF+(s*12+kl)*4
                k(f'v_mfma_f32_16x16x32_bf16 {d}, a[{4*u}:{4*u+3}], v[{o}:{o+3}], {d if kl else 0}')
                cnt+=1
                if s==0: side.emit(1)
                elif cnt>=6 and cnt%3==0: wl.emit(1)
        if s==0:
            side.flush()
        if s==1:
            X=GF;
            k(f'buffer_load_dwordx4 v[{X}:{X+3}], v4, s[16:19], s36 offen'); k(f'buffer_load_dwordx4 v[{X+4}:{X+7}], v4, s[16:19], s36 offen offset:64')
            k(f'buffer_load_dwordx2 v[{X+8}:{X+9}], v13, s[16:19], s36 offen offset:128')
            for u in range(4): k(f'buffer_load_dwordx4 v[{X+12+4*u}:{X+15+4*u}], v6, s[16:19], s37 offen offset:{128*(u>>1)+16*(u&1)}')
            k(f'buffer_load_dwordx4 v[{X+28}:{X+31}], v15, s[16:19], s37 offen offset:256')
        stampw(k,2+s,prof)
    k('s_waitcnt lgkmcnt(0)'); k('s_barrier')
    k('v_add_u32 v56, s47, v12')
    R=GF+48
    for u in range(15): k(f'ds_read_b128 v[{R+4*u}:{R+4*u+3}], v56 offset:{1024*u}')
    A=ACC+20
    X=GF; XU=GF+32+16+60
    for u in range(10):
        k(f'v_lshlrev_b32 v{XU+2*u}, 16, v{X+u}'); k(f'v_and_b32 v{XU+2*u+1}, 0xffff0000, v{X+u}')
    for s in range(3):
        for u in range(20): k(f'v_add_f32 v{A+u}, v{A+u}, v{R+20*s+u}')
    for u in range(20): k(f'v_fmac_f32 v{XU+u}, v{A+u}, v{X+12+u}')
    for u in range(10): k(f'v_cvt_pk_bf16_f32 v{X+u}, v{XU+2*u}, v{XU+2*u+1}')
    k(f'buffer_store_dwordx4 v[{X}:{X+3}], v5, s[20:23], 0 offen'); k(f'buffer_store_dwordx4 v[{X+4}:{X+7}], v5, s[20:23], 0 offen offset:64')
    k(f'buffer_store_dwordx2 v[{X+8}:{X+9}], v14, s[20:23], 0 offen offset:128')
    if prof: k('s_waitcnt vmcnt(0)')
    stampw(k,6,prof); stamp_flush(k,3,7,prof,16)
    k(f'{END}:'); k('s_endpgm')
    return k,(name,256,256,61440)

if __name__=='__main__':
    import sys
    from gen_k1 import gen_k1
    from gen_p2 import gen_k2
    for prof,path in ((True,'k1234p.s'),(False,'k1234.s')):
        ks=[gen_k1(prof=prof),gen_k2(prof=prof),gen_k3(prof=prof),gen_k4(prof=prof)]
        assemble_file([x[0] for x in ks],[x[1] for x in ks],path)
```

```python
S=2048; D=640; F=1536
WS_U=0; WS_MOD=0x300000; WS_WDS=0x400000; WS_H2=0x600000; WS_X1=0x900000; WS_G=0xC00000; WS_FLG=0x1300000; WS_DBG=0x1400000
WS_SIZE=0x1800000
KA=dict(x=0,wg=48,wu=56,wd=64,c=72,wmod=80,out=88,dbg=96,ws=104)
def token_of(g, slot):
    rho=slot>>1; ab=slot&1
    if g>=1: t=g+32*rho
    else:
        if rho==0: return 0 if ab==0 else 1024
        t=32*rho if rho<32 else 16+32*(rho-32)
    return t if ab==0 else S-t
def h2_col(p):
    if p<512:
        l=p>>3; jj=p&7
        return (l&15)+16*(8*(l>>4)+jj)
    pp=p-512; l=pp>>1; j=pp&1
    return (l&15)+16*(32+2*(l>>4)+j)
def st2_idx(d):
    w=d//160; rem=d%160; d1l=rem//40; d2=rem%40; a=d2>>3; j8=d2&7; b=d1l>>1; c1=d1l&1
    sl=5*b+a
    return (sl>>2)*256+(w*16+8*c1+j8)*4+(sl&3)
def ln2_idx(d):
    e1=d&15; e2=d>>4
    if e2<32: l=16*(e2>>3)+e1; sl=e2&7
    else: l=16*((e2-32)>>1)+e1; sl=8+(e2&1)
    return (sl>>2)*256+l*4+(sl&3)
def p4_col(mt, m):
    c=m>>2; r=m&3
    if mt<4: return 32*(mt>>1)+8*c+4*(mt&1)+r
    return 64+4*c+r
```

```python
from asmgen import *
from gen_k1 import gen_k1
from gen_p2 import gen_k2
from gen_p34 import gen_k3, gen_k4
hdr=open('header.txt').read()
def triv(n):
    k=Kernel(n); k('s_endpgm'); return k,(n,256,256,0)
def mk(path, pre, post):
    ks=[triv(f't{i}_kernel') for i in range(pre)]+[gen_k1(),gen_k2(),gen_k3(),gen_k4()]+[triv(f'u{i}_kernel') for i in range(post)]
    assemble_file([x[0] for x in ks],[x[1] for x in ks],path,hdr)
mk('va.s',0,0); mk('vb.s',0,2); mk('vc.s',2,0); mk('vd.s',0,6)
```

```python
from asmgen import *
from layout import *

def srd(k, r, lo, size):
    k(f's_mov_b32 s{r}, s{lo}'); k(f's_and_b32 s{r+1}, s{lo+1}, 0xffff'); k(f's_mov_b32 s{r+2}, {size}'); k(f's_mov_b32 s{r+3}, 0x20000')

def stampw(k, slot, on, sreg=90):
    if not on: return
    k(f's_memrealtime s[{sreg}:{sreg+1}]'); k(f's_memtime s[{sreg-2}:{sreg-1}]'); k('s_waitcnt lgkmcnt(0)')
    k(f's_mov_b32 s{60+slot}, s{sreg}'); k(f's_mov_b32 s{72+slot}, s{sreg-2}')

def stamp_flush(k, kidx, n, on, wsrd):
    if not on: return
    L=k.label('sf')
    k('s_mov_b64 exec, -1')
    k('v_cmp_eq_u32 vcc, 0, v0'); k('s_and_saveexec_b64 s[92:93], vcc'); k(f's_cbranch_execz {L}')
    k(f's_lshl_b32 s94, s2, 7'); k(f's_add_u32 s94, s94, {WS_DBG+kidx*65536}')
    k('v_mov_b32 v1, 0')
    for i in range(n):
        k(f'v_mov_b32 v2, s{60+i}'); k(f'buffer_store_dword v2, v1, s[{wsrd}:{wsrd+3}], s94 offen offset:{4*i}')
        k(f'v_mov_b32 v2, s{72+i}'); k(f'buffer_store_dword v2, v1, s[{wsrd}:{wsrd+3}], s94 offen offset:{64+4*i}')
    k(f'{L}:')

def gen_k1(name='k1_kernel', prof=False, st=''):
    k=Kernel(name)
    END=k.label('end'); LMOD=k.label('mod'); LSH=k.label('shuf')
    stampw(k,0,prof)
    k('s_cmp_ge_u32 s2, 172'); k(f's_cbranch_scc1 {END}')
    k(f's_load_dwordx2 s[4:5], s[0:1], {KA["x"]}')
    k(f's_load_dwordx4 s[8:11], s[0:1], {KA["wd"]}')
    k(f's_load_dwordx2 s[12:13], s[0:1], {KA["wmod"]}')
    k(f's_load_dwordx2 s[14:15], s[0:1], {KA["ws"]}')
    k('v_lshrrev_b32 v1, 6, v0'); k('v_readfirstlane_b32 s3, v1')
    k('v_and_b32 v1, 63, v0')
    k('v_and_b32 v2, 15, v0')
    k('v_lshrrev_b32 v3, 4, v1')
    k('s_mov_b32 s40, 0x05040100'); k('s_mov_b32 s41, 0x07060302')
    srd(k,16,14,WS_SIZE)
    k('s_cmp_ge_u32 s2, 124'); k(f's_cbranch_scc1 {LSH}')
    k('s_cmp_ge_u32 s2, 64'); k(f's_cbranch_scc1 {LMOD}')
    srd(k,20,4,S*D*2)
    X=8; B=40; Fm=72; V=88; Fp=104; MU=112; BI=116; DD=124; T=188
    k('s_lshl_b32 s24, s3, 8')
    k(f'v_lshl_add_u32 v4, v2, 4, s24')
    k('s_mov_b32 s25, 655360'); k('v_mad_u32_u24 v5, v3, s25, v4')
    k('s_mul_i32 s26, s2, 1280')
    for r in range(8):
        k(f'buffer_load_dwordx4 v[{X+4*r}:{X+4*r+3}], v5, s[20:23], s26 offen')
        if r<7: k('s_add_u32 s26, s26, 81920')
    k('v_lshlrev_b32 v6, 3, v3'); k('v_cvt_f32_u32 v6, v6')
    for mt in range(2):
        k(f'v_lshrrev_b32 v{T}, 1, v2');
        if mt: k(f'v_add_u32 v{T}, 8, v{T}')
        k(f'v_and_b32 v{T+1}, 1, v2')
        if mt==0:
            k('v_cmp_eq_u32 vcc, 1, v2')
            k(f'v_cndmask_b32 v{T}, v{T}, 16, vcc'); k(f'v_cndmask_b32 v{T+1}, v{T+1}, 0, vcc')
        k(f'v_cvt_f32_u32 v{T}, v{T}'); k(f'v_cvt_f32_u32 v{T+1}, v{T+1}')
        k(f'v_mul_f32 v{T}, 0x3d000000, v{T}')
        k(f'v_mul_f32 v{T+1}, 0x3e800000, v{T+1}')
        k(f'v_fma_f32 v{T+1}, v{T}, v6, v{T+1}')
        for jj in range(8):
            r=Fm+8*mt+jj
            if jj==0: k(f'v_cos_f32 v{r}, v{T+1}')
            else:
                k(f'v_fmamk_f32 v{r}, v{T}, {float(jj)}, v{T+1}'); k(f'v_cos_f32 v{r}, v{r}')
    k('v_lshrrev_b32 v6, 1, v4')
    k('v_mul_u32_u24 v7, 410, v6'); k('v_lshrrev_b32 v7, 16, v7')
    k(f's_mov_b32 s25, {40960-320}'); k('v_mad_u32_u24 v7, v7, s25, v4')
    k(f's_mov_b32 s25, {2*163840}'); k('v_mad_u32_u24 v7, v3, s25, v7')
    k('s_mul_i32 s27, s2, 640'); k(f's_add_u32 s27, s27, {WS_U}')
    k(f's_add_u32 s28, s27, 163840'); k(f's_add_u32 s29, s27, {8*163840}'); k(f's_add_u32 s30, s27, {9*163840}')
    k('v_mov_b32 v6, 0x3f803f80')
    for i in range(16): k(f'v_mov_b32 v{V+i}, 0')
    k('v_lshrrev_b32 v190, 3, v2'); k('v_lshlrev_b32 v190, 7, v190')
    k('v_bfe_u32 v191, v2, 2, 1'); k('v_lshl_add_u32 v190, v191, 4, v190')
    k('v_lshl_add_u32 v190, v3, 5, v190'); k('v_add_u32 v190, s24, v190')
    k('v_and_b32 v191, 7, v2'); k('v_lshlrev_b32 v191, 2, v191'); k('v_lshl_add_u32 v191, v3, 5, v191')
    stampw(k,1,prof)
    for r in range(8):
        for d in range(4):
            k(f'v_dot2c_f32_bf16 v{V+r}, v{X+4*r+d}, v6')
            k(f'v_dot2c_f32_bf16 v{V+8+r}, v{X+4*r+d}, v{X+4*r+d}')
    stampw(k,2,prof)
    for i in range(8): k(f'v_add_f32_dpp v{V+i}, v{V+i}, v{V+i} row_ror:8 row_mask:0xf bank_mask:0x3')
    for i in range(8): k(f'v_add_f32_dpp v{V+i}, v{V+8+i}, v{V+8+i} row_ror:8 row_mask:0xf bank_mask:0xc')
    for i in range(4): k(f'v_add_f32_dpp v{V+i}, v{V+i}, v{V+i} row_shl:4 row_mask:0xf bank_mask:0x5')
    for i in range(4): k(f'v_add_f32_dpp v{V+i}, v{V+4+i}, v{V+4+i} row_shr:4 row_mask:0xf bank_mask:0xa')
    for i in range(4): k(f'v_add_f32_dpp v{V+i}, v{V+i}, v{V+i} quad_perm:[1,0,3,2] row_mask:0xf bank_mask:0xf')
    for i in range(4): k(f'v_add_f32_dpp v{V+i}, v{V+i}, v{V+i} quad_perm:[2,3,0,1] row_mask:0xf bank_mask:0xf')
    t=k(f'ds_write_b128 v190, v[{V}:{V+3}]')
    def perms(js):
        for j in js:
            for i in range(4):
                k(f'v_perm_b32 v{B+4*j+i}, v{X+8*i+4+(j>>1)}, v{X+8*i+(j>>1)}, s{40+(j&1)}')
    perms(range(0,2))
    k.wait(t); k('s_barrier')
    for w in range(4): k(f'ds_read2_b32 v[{V+4+2*w}:{V+5+2*w}], v191 offset0:{64*w} offset1:{64*w+32}')
    k(f'ds_read_b32 v{V+12}, v191 offset:1024'); k(f'ds_read_b32 v{V+13}, v191 offset:1152')
    perms(range(2,8))
    k(f'v_add_f32 v{V}, v{V+4}, v{V+6}'); k(f'v_add_f32 v{V+1}, v{V+5}, v{V+7}')
    k(f'v_add_f32 v{V+2}, v{V+8}, v{V+10}'); k(f'v_add_f32 v{V+3}, v{V+9}, v{V+11}')
    k(f'v_add_f32 v{V}, v{V}, v{V+12}'); k(f'v_add_f32 v{V+1}, v{V+1}, v{V+13}')
    k(f'v_add_f32 v{V}, v{V}, v{V+2}'); k(f'v_add_f32 v{V+1}, v{V+1}, v{V+3}')
    inv=f'{1.0/640:.9e}'
    k(f'v_mul_f32 v{V}, 0xbaccccCD, v{V}')
    k(f'v_mul_f32 v{V+1}, 0x3accccCD, v{V+1}')
    k(f'v_fma_f32 v{V+1}, -v{V}, v{V}, v{V+1}')
    k(f'v_max_f32 v{V+1}, 0, v{V+1}')
    k(f'v_add_f32 v{V+1}, 0x3727c5ac, v{V+1}')
    k(f'v_rsq_f32 v{V+1}, v{V+1}')
    for jj in range(8): k(f'v_mov_b32_dpp v{V+4+jj}, v{V} row_newbcast:{jj} row_mask:0xf bank_mask:0xf')
    for mt in range(2):
        for jj in range(8): k(f'v_mul_f32_dpp v{Fm+8*mt+jj}, v{V+1}, v{Fm+8*mt+jj} row_newbcast:{jj} row_mask:0xf bank_mask:0xf')
    for i in range(4): k(f'v_cvt_pk_bf16_f32 v{MU+i}, v{V+4+2*i}, v{V+5+2*i}')
    for mt in range(2):
        for i in range(4): k(f'v_cvt_pk_bf16_f32 v{Fp+4*mt+i}, v{Fm+8*mt+2*i}, v{Fm+8*mt+2*i+1}')
    for mt in range(2): k(f'v_mfma_f32_16x16x32_bf16 v[{BI+4*mt}:{BI+4*mt+3}], v[{Fp+4*mt}:{Fp+4*mt+3}], v[{MU}:{MU+3}], 0')
    for mt in range(2):
        for j in range(8):
            d=DD+32*mt+4*j
            k(f'v_mfma_f32_16x16x32_bf16 v[{d}:{d+3}], v[{Fp+4*mt}:{Fp+4*mt+3}], v[{B+4*j}:{B+4*j+3}], v[{BI+4*mt}:{BI+4*mt+3}]')
    stampw(k,3,prof)
    for mt in range(2):
        for i in range(4):
            o=X+16*mt+4*i
            for jp in range(4): k(f'v_cvt_pk_bf16_f32 v{o+jp}, v{DD+32*mt+8*jp+i}, v{DD+32*mt+8*jp+4+i}')
            k(f'buffer_store_dwordx4 v[{o}:{o+3}], v7, s[16:19], s{27+2*mt+(i>>1)} offen offset:{320*(i&1)} {st}')
    if prof: k('s_waitcnt vmcnt(0)')
    stampw(k,4,prof); stamp_flush(k,0,5,prof,16)
    k('s_endpgm')
    k(f'{LMOD}:')
    srd(k,20,12,640*3840*2); srd(k,24,10,1280)
    k('s_sub_u32 s28, s2, 64')
    Wr=8; C=72; Sf=80; SP=96; A=104; P=112
    k('v_and_b32 v4, 7, v0'); k('v_lshrrev_b32 v5, 3, v0')
    k('v_lshlrev_b32 v6, 5, v5')
    k(f'buffer_load_dwordx4 v[{C}:{C+3}], v6, s[24:27], 0 offen'); k(f'buffer_load_dwordx4 v[{C+4}:{C+7}], v6, s[24:27], 0 offen offset:16')
    k(f's_mov_b32 s29, {16*7680}'); k('v_lshlrev_b32 v6, 4, v4'); k('v_mad_u32_u24 v6, v5, s29, v6')
    k('s_lshl_b32 s30, s28, 7')
    for i in range(16):
        k(f'buffer_load_dwordx4 v[{Wr+4*i}:{Wr+4*i+3}], v6, s[20:23], s30 offen')
        if i<15: k('s_add_u32 s30, s30, 7680')
    for i in range(16):
        if i&1: k(f'v_and_b32 v{Sf+i}, 0xffff0000, v{C+(i>>1)}')
        else: k(f'v_lshlrev_b32 v{Sf+i}, 16, v{C+(i>>1)}')
    for i in range(16): k(f'v_mul_f32 v{P+i}, 0xbfb8aa3b, v{Sf+i}')
    for i in range(16): k(f'v_exp_f32 v{P+i}, v{P+i}')
    for i in range(16): k(f'v_add_f32 v{P+i}, 1.0, v{P+i}')
    Q=140; Rr=156
    for i in range(16): k(f'v_rcp_f32 v{Rr+i}, v{P+i}')
    for i in range(16): k(f'v_mul_f32 v{Q+i}, v{Sf+i}, v{Rr+i}')
    for i in range(16): k(f'v_fma_f32 v{P+i}, -v{Q+i}, v{P+i}, v{Sf+i}')
    for i in range(16): k(f'v_fma_f32 v{P+i}, v{P+i}, v{Rr+i}, v{Q+i}')
    for i in range(16):
        k(f'v_cmp_o_f32 vcc, v{P+i}, v{P+i}'); k(f'v_cndmask_b32 v{Sf+i}, v{Q+i}, v{P+i}, vcc')
    for i in range(8): k(f'v_cvt_pk_bf16_f32 v{SP+i}, v{Sf+2*i}, v{Sf+2*i+1}')
    for j in range(8): k(f'v_mov_b32 v{A+j}, 0')
    k('s_mul_i32 s31, s28, 26'); k('s_lshr_b32 s31, s31, 8')
    k('s_mul_i32 s32, s31, 10'); k('s_sub_u32 s32, s28, s32'); k('s_lshl_b32 s32, s32, 6')
    k('v_add_u32 v130, s32, v0')
    k('v_mul_u32_u24 v131, 1639, v130'); k('v_lshrrev_b32 v131, 16, v131')
    k('v_mul_u32_u24 v132, 40, v131'); k('v_sub_u32 v132, v130, v132')
    k('v_lshrrev_b32 v133, 2, v131'); k('v_lshlrev_b32 v133, 4, v133')
    k('v_and_b32 v134, 1, v131'); k('v_lshl_add_u32 v133, v134, 3, v133')
    k('v_and_b32 v134, 7, v132'); k('v_add_u32 v133, v133, v134')
    k('v_bfe_u32 v134, v131, 1, 1'); k('v_mul_u32_u24 v134, 5, v134'); k('v_lshrrev_b32 v135, 3, v132')
    k('v_add_u32 v134, v134, v135')
    k('v_lshrrev_b32 v135, 2, v134'); k('v_and_b32 v134, 3, v134')
    k('v_lshl_add_u32 v133, v133, 2, v134'); k('v_lshl_add_u32 v133, v135, 8, v133')
    k('v_and_b32 v134, 15, v130'); k('v_lshrrev_b32 v135, 4, v130')
    k('v_lshrrev_b32 v136, 3, v135'); k('v_and_b32 v137, 7, v135')
    k('v_subrev_u32 v138, 32, v135'); k('v_lshrrev_b32 v138, 1, v138'); k('v_and_b32 v139, 1, v135'); k('v_add_u32 v139, 8, v139')
    k('v_cmp_le_u32 vcc, 32, v135'); k('v_cndmask_b32 v136, v136, v138, vcc'); k('v_cndmask_b32 v137, v137, v139, vcc')
    k('v_lshl_add_u32 v136, v136, 4, v134'); k('v_lshrrev_b32 v138, 2, v137'); k('v_and_b32 v137, 3, v137')
    k('v_lshl_add_u32 v136, v136, 2, v137'); k('v_lshl_add_u32 v136, v138, 8, v136')
    k('s_cmp_lt_u32 s31, 2'); k('s_cselect_b64 vcc, -1, 0'); k('v_cndmask_b32 v136, v136, v133, vcc')
    k('s_cmp_eq_u32 s31, 5'); k('s_cselect_b64 vcc, -1, 0'); k('v_cndmask_b32 v136, v136, v130, vcc')
    k('v_lshlrev_b32 v136, 2, v136')
    k('s_mul_i32 s33, s31, 3072'); k(f's_add_u32 s33, s33, {WS_MOD}')
    k('v_lshrrev_b32 v131, 4, v0'); k('v_lshlrev_b32 v131, 8, v131'); k('v_lshl_add_u32 v131, v4, 5, v131')
    k('v_lshlrev_b32 v132, 2, v0')
    stampw(k,1,prof)
    for i2 in range(8):
        for j in range(8): k(f'v_perm_b32 v{P+j}, v{Wr+8*i2+4+(j>>1)}, v{Wr+8*i2+(j>>1)}, s{40+(j&1)}')
        for j in range(8): k(f'v_dot2c_f32_bf16 v{A+j}, v{P+j}, v{SP+i2}')
    stampw(k,2,prof)
    for j in range(8): k(f'v_add_f32_dpp v{A+j}, v{A+j}, v{A+j} row_ror:8 row_mask:0xf bank_mask:0xf')
    k(f'ds_write_b128 v131, v[{A}:{A+3}]'); t=k(f'ds_write_b128 v131, v[{A+4}:{A+7}] offset:16')
    k.wait(t); k('s_barrier')
    k('s_cmp_lg_u32 s3, 0'); k(f's_cbranch_scc1 {END}')
    for i in range(10): k(f'ds_read2st64_b32 v[{Wr+2*i}:{Wr+2*i+1}], v132 offset0:{2*i} offset1:{2*i+1}')
    for i in range(10): k(f'v_add_f32 v{Wr+2*i}, v{Wr+2*i}, v{Wr+2*i+1}')
    for a,b in [(0,2),(4,6),(8,10),(12,14),(16,18),(0,4),(8,12),(0,8),(0,16)]: k(f'v_add_f32 v{Wr+a}, v{Wr+a}, v{Wr+b}')
    k(f'v_cvt_pk_bf16_f32 v{Wr}, v{Wr}, v{Wr}'); k(f'v_and_b32 v{Wr}, 0xffff0000, v{Wr}')
    k(f'v_add_f32 v{Wr+1}, 1.0, v{Wr}'); k(f'v_cvt_pk_bf16_f32 v{Wr+1}, v{Wr+1}, v{Wr+1}'); k(f'v_and_b32 v{Wr+1}, 0xffff0000, v{Wr+1}')
    k(f'v_mul_f32 v{Wr+2}, 0x45000000, v{Wr}')
    k('s_cmp_eq_u32 s31, 0'); k('s_cselect_b64 vcc, -1, 0'); k(f'v_cndmask_b32 v{Wr}, v{Wr}, v{Wr+2}, vcc')
    k('s_cmp_eq_u32 s31, 1'); k('s_cselect_b64 vcc, -1, 0'); k('s_cmp_eq_u32 s31, 4'); k('s_cselect_b64 vcc, -1, vcc'); k(f'v_cndmask_b32 v{Wr}, v{Wr}, v{Wr+1}, vcc')
    k(f'buffer_store_dword v{Wr}, v136, s[16:19], s33 offen {st}')
    if prof: k('s_waitcnt vmcnt(0)')
    stampw(k,3,prof); stampw(k,4,prof); stamp_flush(k,0,5,prof,16)
    k('s_endpgm')
    k(f'{LSH}:')
    srd(k,20,8,F*D*2)
    k('s_sub_u32 s28, s2, 124')
    k('s_mul_i32 s29, s28, 40960')
    k('s_lshl_b32 s30, s3, 13'); k('s_mov_b32 m0, s30')
    k('s_lshl_b32 s31, s3, 9'); k('v_add_u32 v4, s31, v1')
    k(f's_mov_b32 s32, {(2**32+79)//80}')
    toks=[]
    for i in range(8):
        k('v_mul_hi_u32 v5, v4, s32')
        k('v_and_b32 v5, 7, v5'); k('v_lshlrev_b32 v5, 1, v5'); k('v_xor_b32 v5, v5, v4'); k('v_lshlrev_b32 v5, 4, v5')
        toks.append(k('buffer_load_dwordx4 v5, s[20:23], s29 offen lds'))
        if i<7: k('s_add_u32 m0, m0, 1024'); k('v_add_u32 v4, 64, v4')
    k('v_lshrrev_b32 v6, 2, v2'); k('v_and_b32 v7, 3, v2')
    for hh in range(2):
        k(f'v_lshl_add_u32 v{8+hh}, v3, 3, v6')
        if hh: k(f'v_add_u32 v{8+hh}, 4, v{8+hh}')
        k(f'v_and_b32 v{10+hh}, 7, v{8+hh}'); k(f'v_lshlrev_b32 v{10+hh}, 1, v{10+hh}')
        k(f'v_mul_u32_u24 v{8+hh}, 1280, v{8+hh}')
    k('v_lshlrev_b32 v12, 4, v1')
    stampw(k,1,prof)
    k.wait(*toks); k('s_barrier')
    stampw(k,2,prof)
    for u in range(8):
        k(f's_lshl_b32 s33, s3, 3'); k(f's_add_u32 s33, s33, {u}')
        k('s_mul_i32 s34, s33, 52'); k('s_lshr_b32 s34, s34, 8')
        k('s_mul_i32 s35, s34, 5'); k('s_sub_u32 s35, s33, s35')
        k('s_lshr_b32 s36, s35, 1'); k('s_lshl_b32 s36, s36, 2'); k('s_mul_i32 s37, s34, 10'); k('s_add_u32 s36, s36, s37')
        k('s_and_b32 s37, s35, 1')
        k('s_cmp_eq_u32 s35, 4'); k('s_cselect_b64 vcc, -1, 0')
        k('v_lshrrev_b32 v13, 1, v7'); k('v_cndmask_b32 v13, v7, v13, vcc'); k('v_add_u32 v13, s36, v13')
        k('v_and_b32 v14, 1, v7'); k('v_mov_b32 v15, s37'); k('v_cndmask_b32 v14, v15, v14, vcc'); k('v_lshlrev_b32 v14, 3, v14')
        o=20+4*u
        for hh in range(2):
            k(f'v_xor_b32 v15, v13, v{10+hh}'); k(f'v_lshl_add_u32 v15, v15, 4, v{8+hh}'); k('v_add_u32 v15, v15, v14')
            k(f'ds_read_b64_tr_b16 v[{o+2*hh}:{o+2*hh+1}], v15')
        k('s_mul_i32 s38, s34, 48'); k('s_add_u32 s38, s38, s28'); k('s_mul_i32 s38, s38, 5'); k('s_add_u32 s38, s38, s35')
        k('s_lshl_b32 s38, s38, 10'); k(f's_add_u32 s{44+u}, s38, {WS_WDS}')
    for u in range(8):
        o=20+4*u
        k(f'buffer_store_dwordx4 v[{o}:{o+3}], v12, s[16:19], s{44+u} offen {st}')
    if prof: k('s_waitcnt vmcnt(0)')
    stampw(k,3,prof); stampw(k,4,prof); stamp_flush(k,0,5,prof,16)
    k(f'{END}:'); k('s_endpgm')
    return k, (name,172,320,40960)

if __name__=='__main__':
    k,l=gen_k1(prof=True)
    assemble_file([k],[l],'k1.s')
```

```python
S=2048; D=640; F=1536
WS_U=0
WS_Z=0x300000
WS_MOD=0x600000
WS_WDS=0x700000
WS_G=0x900000
WS_FLG=0x1000000
WS_DBG=0x1100000
WS_SIZE=0x1200000
WS_H2=WS_U; WS_X1=WS_Z
MODP=16384
KA=dict(x=0,wg=48,wu=56,wd=64,c=72,wmod=80,out=88,dbg=96,ws=104)
from layout import token_of, h2_col, p4_col
def mod_dst(v, d):
    if v in (0,1,5): return {0:0,1:640,5:1280}[v]+d
    e1=d&15; e2=d>>4; vv=v-2
    if e2<32:
        l=16*(e2>>3)+e1; sl=e2&7
        return 2048+(2*vv+(sl>>2))*256+l*4+(sl&3)
    l=16*((e2-32)>>1)+e1; j=e2&1
    return 2048+(6+(vv>>1))*256+l*4+2*(vv&1)+j
```

```python
from asmgen import *
from lay2 import *
from gen_p2 import table_text, f32, D2B
from gen_p34 import Side, K1c, K2c
import sys

NAME='adaLN_cond__spectral_fnet__geglu_ffn__prompt_kernel'
L_RING=40960; WST=24576
L_TAB=0; L_XR=17408; L_US=27648; L_CA=37888; L_ZS=38528; L_MOD=48768
L_H=[0,40960]
FL_XC=4096; FL_GF=8192; FL_GRP=32768

class Cfg:
    prof=False; noalias=False; force_slow=False
    early=[0,1]
    post_role=[2,3,4]
    tr_b2=[0,1]; tr_b3=[2,3,4]
    iss_b4=[5,6]; iss_b5=[]; tr_b5=[5,6]; iss_b5b=[7,8]; iss_b6=[9]; tr_b7=[7,8,9]
    slot={0:0,1:1,2:2,3:3,4:4,5:1,6:2,7:3,8:4,9:2}
    sweep=True; pretouch=True; codetouch=False

def srd(k, r, lo, size):
    k(f's_mov_b32 s{r}, s{lo}'); k(f's_and_b32 s{r+1}, s{lo+1}, 0xffff'); k(f's_mov_b32 s{r+2}, {size}'); k(f's_mov_b32 s{r+3}, 0x20000')

class Gen:
    def __init__(self, cfg):
        self.c=cfg; self.k=Kernel(NAME); self.wt={}; self.nst=0
        self.H2=0x1180000-0x300000*0 if False else WS_H2; self.X1=WS_X1
        if cfg.noalias: self.H2=0x1200000; self.X1=0x1500000
        self.wssize=0x1800000 if cfg.noalias else WS_SIZE
    def stamp(self, slot):
        if not self.c.prof: return
        k=self.k
        k('s_memrealtime s[90:91]'); k('s_memtime s[88:89]'); k('s_waitcnt lgkmcnt(0)')
        k(f'v_writelane_b32 v19, s90, {slot}'); k(f'v_writelane_b32 v19, s88, {32+slot}')
    def stamp_flush(self):
        if not self.c.prof: return
        k=self.k; L=k.label('sf')
        k('s_cmp_lg_u32 s3, 0'); k(f's_cbranch_scc1 {L}')
        k('s_mov_b64 exec, -1')
        k('s_lshl_b32 s94, s2, 8'); k(f's_add_u32 s94, s94, {WS_DBG}')
        k('v_lshlrev_b32 v1, 2, v1'); k('buffer_store_dword v19, v1, s[16:19], s94 offen')
        k(f'{L}:')
    def w0(self):
        L=self.k.label('w0'); self.k('s_cmp_lg_u32 s3, 0'); self.k(f's_cbranch_scc1 {L}'); return L
    def wn(self):
        L=self.k.label('wn'); self.k('s_cmp_eq_u32 s3, 0'); self.k(f's_cbranch_scc1 {L}'); return L
    def end(self,L): self.k(f'{L}:')
    def w_setup(self):
        k=self.k; T=240
        k('s_cmp_le_u32 s3, 2'); k('s_cselect_b32 s28, s36, s38'); k('s_cselect_b32 s29, s37, s39'); k('s_and_b32 s29, s29, 0xffff')
        k(f's_mov_b32 s30, {D*F*2}'); k('s_mov_b32 s31, 0x20000')
        k('s_cmp_le_u32 s3, 1'); k('s_cselect_b32 s32, s36, s38'); k('s_cselect_b32 s33, s37, s39'); k('s_and_b32 s33, s33, 0xffff')
        k(f's_mov_b32 s34, {D*F*2}'); k('s_mov_b32 s35, 0x20000')
        k('s_sub_u32 s52, s3, 1'); k('s_lshl_b32 s56, s52, 12'); k(f's_add_u32 s56, s56, {L_RING}')
        k('s_mul_i32 s57, s13, 192')
        k(f's_mov_b32 s53, {(2**32+11)//12}')
        k('s_lshl_b32 s52, s52, 2')
        for m in range(4):
            k(f's_add_u32 s54, s52, {m}'); k('s_cmp_ge_u32 s54, 6'); k('s_cselect_b32 s55, 6, 0'); k('s_sub_u32 s54, s54, s55'); k('s_lshl_b32 s54, s54, 6')
            k(f'v_add_u32 v{T}, s54, v1'); k(f'v_mul_hi_u32 v{T+1}, v{T}, s53')
            k(f'v_mul_u32_u24 v{T+2}, 12, v{T+1}'); k(f'v_sub_u32 v{T+2}, v{T}, v{T+2}'); k(f'v_lshlrev_b32 v{T+2}, 4, v{T+2}')
            k(f'v_lshrrev_b32 v{T+3}, 3, v{T+1}'); k(f'v_and_b32 v{T+4}, 7, v{T+1}')
            k(f'v_lshl_add_u32 v{T+5}, v{T+4}, 4, v{T+3}'); k(f'v_mul_u32_u24 v{T+5}, 3072, v{T+5}'); k(f'v_add_u32 v{4+m}, v{T+5}, v{T+2}')
            k(f'v_lshrrev_b32 v{T+5}, 1, v{T+4}'); k(f'v_lshl_add_u32 v{T+5}, v{T+3}, 2, v{T+5}'); k(f'v_and_b32 v{T+4}, 1, v{T+4}')
            k(f'v_lshl_add_u32 v{T+5}, v{T+4}, 4, v{T+5}'); k(f'v_mul_u32_u24 v{T+5}, 3072, v{T+5}'); k(f'v_add_u32 v{8+m}, v{T+5}, v{T+2}')
    def w_setup_tr(self):
        k=self.k; T=240
        k(f'v_lshrrev_b32 v{T}, 2, v2'); k(f'v_lshl_add_u32 v{T}, v3, 3, v{T}'); k(f'v_mul_u32_u24 v{T}, 192, v{T}')
        k('s_mul_i32 s52, s3, 48'); k(f's_add_u32 s52, s52, {L_RING}'); k(f'v_add_u32 v{T}, s52, v{T}')
        k(f'v_and_b32 v{T+1}, 3, v2'); k(f'v_lshl_add_u32 v12, v{T+1}, 3, v{T}')
        k(f'v_and_b32 v{T+1}, 1, v2'); k(f'v_lshl_add_u32 v13, v{T+1}, 3, v{T}'); k(f'v_bfe_u32 v{T+1}, v2, 1, 1')
        k(f'v_mul_u32_u24 v{T+1}, 6144, v{T+1}'); k(f'v_add3_u32 v13, v13, v{T+1}, 32')
        for p in (1,2):
            k(f'v_add_u32 v{12+2*p}, {2*p*WST}, v12'); k(f'v_add_u32 v{13+2*p}, {2*p*WST}, v13')
    def w_issue(self, stages):
        if not stages: return
        k=self.k; L=self.wn()
        for st in stages:
            for ks in (2*st,2*st+1):
                reg=4 if ks<16 else 8
                row=(4*(ks&3)+128*(ks>>2)) if ks<16 else 512+32*(ks-16)
                k(f's_add_u32 s58, s57, {row*3072}'); k(f's_add_u32 m0, s56, {self.c.slot[st]*WST+(ks&1)*12288}')
                for m in range(4):
                    t=k(f'buffer_load_dwordx4 v{reg+m}, s[{28 if m<2 else 32}:{31 if m<2 else 35}], s58 offen lds')
                    self.wt.setdefault(st,[]).append(t)
                    if m<3: k('s_add_u32 m0, m0, 1024')
        self.end(L)
    def w_wait(self, stages):
        for st in stages: self.k.wait(*self.wt[st])
    def w_tr_list(self, stages):
        out=[]
        for st in stages:
            sl=self.c.slot[st]
            for ks in (2*st,2*st+1):
                base=(sl&1)*WST+(ks&1)*12288; r0=12+2*(sl>>1)
                for T in range(3):
                    for hh in range(2):
                        a=(ks*3+T)*4+2*hh
                        out.append(f'ds_read_b64_tr_b16 a[{a}:{a+1}], v{r0+1 if T==2 else r0} offset:{base+768*hh+(6144 if T==1 else 0)}')
        return out
    def w_tr(self, stages):
        t=None
        for s in self.w_tr_list(stages): t=self.k(s)
        return t
    def early(self):
        k=self.k; c=self.c
        k(f's_add_u32 s60, s50, {WS_FLG}'); k('s_addc_u32 s61, s51, 0'); k('s_load_dword s14, s[60:61], 0')
        srd(k,16,50,self.wssize)
        self.w_setup()
        if c.sweep:
            L=self.w0()
            k('v_lshlrev_b32 v240, 7, v1'); k('s_mul_i32 s52, s2, 7680')
            k('s_mov_b32 s32, s38'); k('s_and_b32 s33, s39, 0xffff')
            k('buffer_load_dword v254, v240, s[28:31], s52 offen'); k('buffer_load_dword v255, v240, s[32:35], s52 offen')
            self.end(L)
        self.w_issue(c.early)
        self.w_setup_tr()
        k('v_lshlrev_b32 v18, 4, v1')
    def role_ln(self):
        k=self.k
        X=20; X2=52; B=60; Fm=100; V=116; Fp=132; MU=140; BI=144; DD=152; T=232
        k('s_mul_i32 s52, s3, 320')
        k(f's_mov_b32 s53, 655360'); k('v_mul_u32_u24 v24, s53, v3'); k('v_add_u32 v24, s52, v24')
        k('v_lshl_add_u32 v250, v2, 4, v24'); k('v_lshl_add_u32 v251, v2, 2, v24')
        k('s_mul_i32 s54, s2, 1280')
        srd(k,20,4,S*D*2)
        for r in range(8):
            k(f'buffer_load_dwordx4 v[{X+4*r}:{X+4*r+3}], v250, s[20:23], s54 offen')
            k(f'buffer_load_dword v{X2+r}, v251, s[20:23], s54 offen offset:256')
            if r<7: k('s_add_u32 s54, s54, 81920')
        self.early()
        k('s_mov_b32 s62, 0x05040100'); k('s_mov_b32 s63, 0x07060302')
        k(f'v_lshlrev_b32 v{T+2}, 3, v3'); k(f'v_cvt_f32_u32 v{T+2}, v{T+2}')
        for mt in range(2):
            k(f'v_lshrrev_b32 v{T}, 1, v2')
            if mt: k(f'v_add_u32 v{T}, 8, v{T}')
            k(f'v_and_b32 v{T+1}, 1, v2')
            if mt==0:
                k('v_cmp_eq_u32 vcc, 1, v2'); k(f'v_cndmask_b32 v{T}, v{T}, 16, vcc'); k(f'v_cndmask_b32 v{T+1}, v{T+1}, 0, vcc')
            k(f'v_cvt_f32_u32 v{T}, v{T}'); k(f'v_cvt_f32_u32 v{T+1}, v{T+1}')
            k(f'v_mul_f32 v{T}, 0x3d000000, v{T}'); k(f'v_mul_f32 v{T+1}, 0x3e800000, v{T+1}')
            k(f'v_fma_f32 v{T+1}, v{T}, v{T+2}, v{T+1}')
            for jj in range(8): k(f'v_fmamk_f32 v{Fm+8*mt+jj}, v{T}, {float(jj)}, v{T+1}')
            for jj in range(8): k(f'v_cos_f32 v{Fm+8*mt+jj}, v{Fm+8*mt+jj}')
        k('s_mul_i32 s52, s3, 320'); k(f's_mov_b32 s53, {2*163840}'); k(f'v_mul_u32_u24 v{T}, s53, v3'); k(f'v_add_u32 v{T}, s52, v{T}')
        k(f'v_lshl_add_u32 v250, v2, 4, v{T}'); k(f'v_lshl_add_u32 v251, v2, 2, v{T}')
        k('s_mul_i32 s64, s2, 2560')
        if WS_U: k(f's_add_u32 s64, s64, {WS_U}')
        k(f's_add_u32 s65, s64, 163840'); k(f's_add_u32 s66, s64, {8*163840}'); k(f's_add_u32 s67, s64, {9*163840}')
        k(f'v_mov_b32 v{T+3}, 0x3f803f80')
        for i in range(16): k(f'v_mov_b32 v{V+i}, 0')
        k('s_lshl_b32 s52, s3, 8')
        k(f'v_lshrrev_b32 v{T+4}, 3, v2'); k(f'v_lshlrev_b32 v{T+4}, 7, v{T+4}'); k(f'v_bfe_u32 v{T+5}, v2, 2, 1'); k(f'v_lshl_add_u32 v{T+4}, v{T+5}, 4, v{T+4}')
        k(f'v_lshl_add_u32 v{T+4}, v3, 5, v{T+4}'); k(f'v_add_u32 v{T+4}, s52, v{T+4}')
        k(f'v_and_b32 v{T+5}, 7, v2'); k(f'v_lshlrev_b32 v{T+5}, 2, v{T+5}'); k(f'v_lshl_add_u32 v{T+5}, v3, 5, v{T+5}')
        self.stamp(1)
        for r in range(8):
            for d in range(5):
                x=X+4*r+d if d<4 else X2+r
                k(f'v_dot2c_f32_bf16 v{V+r}, v{x}, v{T+3}'); k(f'v_dot2c_f32_bf16 v{V+8+r}, v{x}, v{x}')
        self.stamp(2)
        for i in range(8): k(f'v_add_f32_dpp v{V+i}, v{V+i}, v{V+i} row_ror:8 row_mask:0xf bank_mask:0x3')
        for i in range(8): k(f'v_add_f32_dpp v{V+i}, v{V+8+i}, v{V+8+i} row_ror:8 row_mask:0xf bank_mask:0xc')
        for i in range(4): k(f'v_add_f32_dpp v{V+i}, v{V+i}, v{V+i} row_shl:4 row_mask:0xf bank_mask:0x5')
        for i in range(4): k(f'v_add_f32_dpp v{V+i}, v{V+4+i}, v{V+4+i} row_shr:4 row_mask:0xf bank_mask:0xa')
        for i in range(4): k(f'v_add_f32_dpp v{V+i}, v{V+i}, v{V+i} quad_perm:[1,0,3,2] row_mask:0xf bank_mask:0xf')
        for i in range(4): k(f'v_add_f32_dpp v{V+i}, v{V+i}, v{V+i} quad_perm:[2,3,0,1] row_mask:0xf bank_mask:0xf')
        t=k(f'ds_write_b128 v{T+4}, v[{V}:{V+3}]')
        def perms(js):
            for j in js:
                for i in range(4):
                    if j<8: a,b=X+8*i+4+(j>>1), X+8*i+(j>>1)
                    else: a,b=X2+2*i+1, X2+2*i
                    k(f'v_perm_b32 v{B+4*j+i}, v{a}, v{b}, s{62+(j&1)}')
        perms(range(0,3))
        k.wait(t); k('s_barrier')
        for w in range(4): k(f'ds_read2_b32 v[{V+4+2*w}:{V+5+2*w}], v{T+5} offset0:{64*w} offset1:{64*w+32}')
        perms(range(3,10))
        k(f'v_add_f32 v{V}, v{V+4}, v{V+6}'); k(f'v_add_f32 v{V+1}, v{V+5}, v{V+7}')
        k(f'v_add_f32 v{V+2}, v{V+8}, v{V+10}'); k(f'v_add_f32 v{V+3}, v{V+9}, v{V+11}')
        k(f'v_add_f32 v{V}, v{V}, v{V+2}'); k(f'v_add_f32 v{V+1}, v{V+1}, v{V+3}')
        k(f'v_mul_f32 v{V}, 0xbacccccd, v{V}'); k(f'v_mul_f32 v{V+1}, 0x3acccccd, v{V+1}')
        k(f'v_fma_f32 v{V+1}, -v{V}, v{V}, v{V+1}'); k(f'v_max_f32 v{V+1}, 0, v{V+1}'); k(f'v_add_f32 v{V+1}, 0x3727c5ac, v{V+1}')
        k(f'v_rsq_f32 v{V+1}, v{V+1}')
        for jj in range(8): k(f'v_mov_b32_dpp v{V+4+jj}, v{V} row_newbcast:{jj} row_mask:0xf bank_mask:0xf')
        for mt in range(2):
            for jj in range(8): k(f'v_mul_f32_dpp v{Fm+8*mt+jj}, v{V+1}, v{Fm+8*mt+jj} row_newbcast:{jj} row_mask:0xf bank_mask:0xf')
        for i in range(4): k(f'v_cvt_pk_bf16_f32 v{MU+i}, v{V+4+2*i}, v{V+5+2*i}')
        for mt in range(2):
            for i in range(4): k(f'v_cvt_pk_bf16_f32 v{Fp+4*mt+i}, v{Fm+8*mt+2*i}, v{Fm+8*mt+2*i+1}')
        for mt in range(2): k(f'v_mfma_f32_16x16x32_bf16 v[{BI+4*mt}:{BI+4*mt+3}], v[{Fp+4*mt}:{Fp+4*mt+3}], v[{MU}:{MU+3}], 0')
        for mt in range(2):
            for j in range(10):
                d=DD+40*mt+4*j
                k(f'v_mfma_f32_16x16x32_bf16 v[{d}:{d+3}], v[{Fp+4*mt}:{Fp+4*mt+3}], v[{B+4*j}:{B+4*j+3}], v[{BI+4*mt}:{BI+4*mt+3}]')
        for mt in range(2):
            for i in range(4):
                o=X+16*mt+4*i; o2=X2+4*mt+i
                for jp in range(4): k(f'v_cvt_pk_bf16_f32 v{o+jp}, v{DD+40*mt+8*jp+i}, v{DD+40*mt+8*jp+4+i}')
                k(f'v_cvt_pk_bf16_f32 v{o2}, v{DD+40*mt+32+i}, v{DD+40*mt+36+i}')
                self.drain.append(k(f'buffer_store_dwordx4 v[{o}:{o+3}], v250, s[16:19], s{64+2*mt+(i>>1)} offen offset:{1280*(i&1)} sc1'))
                self.drain.append(k(f'buffer_store_dword v{o2}, v251, s[16:19], s{64+2*mt+(i>>1)} offen offset:{1280*(i&1)+256} sc1'))
    def role_mod(self):
        k=self.k
        Wr=20; C=60; Sf=68; SP=80; A=88; P=96; Q=108; Rr=120; T=232
        k('s_sub_u32 s64, s2, 64'); k('s_and_b32 s65, s64, 1'); k('s_lshr_b32 s64, s64, 1')
        k('v_and_b32 v250, 7, v0'); k('v_lshrrev_b32 v251, 3, v0')
        k(f's_mov_b32 s52, {10*7680}'); k(f'v_lshlrev_b32 v{T}, 4, v250'); k(f'v_mad_u32_u24 v{T}, v251, s52, v{T}')
        k(f'v_mul_u32_u24 v{T+1}, 20, v251')
        k(f's_mul_i32 s53, s65, {320*7680}'); k('s_lshl_b32 s54, s64, 7'); k('s_add_u32 s53, s53, s54'); k('s_mul_i32 s54, s65, 640')
        srd(k,20,44,640*3840*2); srd(k,24,42,1280)
        k(f'buffer_load_dwordx4 v[{C}:{C+3}], v{T+1}, s[24:27], s54 offen'); k(f'buffer_load_dword v{C+4}, v{T+1}, s[24:27], s54 offen offset:16')
        for i in range(10):
            k(f'buffer_load_dwordx4 v[{Wr+4*i}:{Wr+4*i+3}], v{T}, s[20:23], s53 offen')
            if i<9: k('s_add_u32 s53, s53, 7680')
        self.early()
        k('s_mov_b32 s62, 0x05040100'); k('s_mov_b32 s63, 0x07060302')
        n=10
        for i in range(n):
            if i&1: k(f'v_and_b32 v{Sf+i}, 0xffff0000, v{C+(i>>1)}')
            else: k(f'v_lshlrev_b32 v{Sf+i}, 16, v{C+(i>>1)}')
        for i in range(n): k(f'v_mul_f32 v{P+i}, 0xbfb8aa3b, v{Sf+i}')
        for i in range(n): k(f'v_exp_f32 v{P+i}, v{P+i}')
        for i in range(n): k(f'v_add_f32 v{P+i}, 1.0, v{P+i}')
        for i in range(n): k(f'v_rcp_f32 v{Rr+i}, v{P+i}')
        for i in range(n): k(f'v_mul_f32 v{Q+i}, v{Sf+i}, v{Rr+i}')
        for i in range(n): k(f'v_fma_f32 v{P+i}, -v{Q+i}, v{P+i}, v{Sf+i}')
        for i in range(n): k(f'v_fma_f32 v{P+i}, v{P+i}, v{Rr+i}, v{Q+i}')
        for i in range(n):
            k(f'v_cmp_o_f32 vcc, v{P+i}, v{P+i}'); k(f'v_cndmask_b32 v{Sf+i}, v{Q+i}, v{P+i}, vcc')
        for i in range(5): k(f'v_cvt_pk_bf16_f32 v{SP+i}, v{Sf+2*i}, v{Sf+2*i+1}')
        for j in range(8): k(f'v_mov_b32 v{A+j}, 0')
        k('s_mul_i32 s66, s64, 26'); k('s_lshr_b32 s66, s66, 8')
        k('s_mul_i32 s52, s66, 10'); k('s_sub_u32 s52, s64, s52'); k('s_lshl_b32 s52, s52, 6')
        U=140
        k(f'v_add_u32 v{U}, s52, v1')
        k(f'v_and_b32 v{U+1}, 15, v{U}'); k(f'v_lshrrev_b32 v{U+2}, 4, v{U}')
        k('s_sub_u32 s52, s66, 2')
        k(f'v_lshrrev_b32 v{U+3}, 3, v{U+2}'); k(f'v_lshl_add_u32 v{U+3}, v{U+3}, 4, v{U+1}'); k(f'v_lshlrev_b32 v{U+3}, 2, v{U+3}')
        k(f'v_and_b32 v{U+4}, 3, v{U+2}'); k(f'v_add_u32 v{U+3}, v{U+3}, v{U+4}')
        k(f'v_bfe_u32 v{U+4}, v{U+2}, 2, 1'); k(f'v_lshl_add_u32 v{U+3}, v{U+4}, 8, v{U+3}')
        k('s_lshl_b32 s53, s52, 9'); k('s_add_u32 s53, s53, 2048'); k(f'v_add_u32 v{U+3}, s53, v{U+3}')
        k(f'v_subrev_u32 v{U+4}, 32, v{U+2}'); k(f'v_lshrrev_b32 v{U+4}, 1, v{U+4}'); k(f'v_lshl_add_u32 v{U+4}, v{U+4}, 4, v{U+1}'); k(f'v_lshlrev_b32 v{U+4}, 2, v{U+4}')
        k(f'v_and_b32 v{U+5}, 1, v{U+2}'); k(f'v_add_u32 v{U+4}, v{U+4}, v{U+5}')
        k('s_lshr_b32 s53, s52, 1'); k('s_add_u32 s53, s53, 6'); k('s_lshl_b32 s53, s53, 8'); k('s_and_b32 s54, s52, 1'); k('s_lshl_b32 s54, s54, 1')
        k('s_add_u32 s53, s53, s54'); k('s_add_u32 s53, s53, 2048'); k(f'v_add_u32 v{U+4}, s53, v{U+4}')
        k(f'v_cmp_le_u32 vcc, 32, v{U+2}'); k(f'v_cndmask_b32 v{U+3}, v{U+3}, v{U+4}, vcc')
        k('s_mul_i32 s53, s66, 640'); k('s_cmp_eq_u32 s66, 5'); k('s_cselect_b32 s53, 1280, s53'); k(f'v_add_u32 v{U+4}, s53, v{U}')
        k('s_cmp_lt_u32 s52, 3'); k('s_cselect_b64 vcc, -1, 0'); k(f'v_cndmask_b32 v{U+3}, v{U+4}, v{U+3}, vcc')
        k(f'v_lshlrev_b32 v{U+3}, 2, v{U+3}')
        k(f's_mul_i32 s67, s65, {MODP}'); k(f's_add_u32 s67, s67, {WS_MOD}')
        k(f'v_lshrrev_b32 v{U+1}, 4, v0'); k(f'v_lshlrev_b32 v{U+1}, 8, v{U+1}'); k(f'v_lshl_add_u32 v{U+1}, v250, 5, v{U+1}')
        k(f'v_lshlrev_b32 v{U+2}, 2, v1')
        self.stamp(1)
        for i2 in range(5):
            for j in range(8): k(f'v_perm_b32 v{P+j}, v{Wr+8*i2+4+(j>>1)}, v{Wr+8*i2+(j>>1)}, s{62+(j&1)}')
            for j in range(8): k(f'v_dot2c_f32_bf16 v{A+j}, v{P+j}, v{SP+i2}')
        self.stamp(2)
        for j in range(8): k(f'v_add_f32_dpp v{A+j}, v{A+j}, v{A+j} row_ror:8 row_mask:0xf bank_mask:0xf')
        k(f'ds_write_b128 v{U+1}, v[{A}:{A+3}]'); t=k(f'ds_write_b128 v{U+1}, v[{A+4}:{A+7}] offset:16')
        k.wait(t); k('s_barrier')
        L=self.w0()
        for i in range(8): k(f'ds_read2st64_b32 v[{Wr+2*i}:{Wr+2*i+1}], v{U+2} offset0:{2*i} offset1:{2*i+1}')
        for i in range(8): k(f'v_add_f32 v{Wr+2*i}, v{Wr+2*i}, v{Wr+2*i+1}')
        for a,b in [(0,2),(4,6),(8,10),(12,14),(0,4),(8,12),(0,8)]: k(f'v_add_f32 v{Wr+a}, v{Wr+a}, v{Wr+b}')
        self.drain.append(k(f'buffer_store_dword v{Wr}, v{U+3}, s[16:19], s67 offen sc1'))
        self.end(L)
    def role_shuf(self):
        k=self.k
        T=232
        k('s_sub_u32 s64, s2, 184'); k('s_mul_i32 s52, s64, 40960')
        k('s_mul_i32 s53, s3, 10240'); k('s_mov_b32 m0, s53')
        k('s_mul_i32 s53, s3, 640'); k(f'v_add_u32 v{T}, s53, v1')
        k(f's_mov_b32 s54, {(2**32+79)//80}')
        offs=[]
        for i in range(10):
            r=20+i
            k(f'v_mul_hi_u32 v{r}, v{T}, s54'); k(f'v_and_b32 v{r}, 7, v{r}'); k(f'v_lshlrev_b32 v{r}, 1, v{r}'); k(f'v_xor_b32 v{r}, v{r}, v{T}'); k(f'v_lshlrev_b32 v{r}, 4, v{r}')
            if i<9: k(f'v_add_u32 v{T}, 64, v{T}')
        srd(k,20,40,F*D*2)
        toks=[]
        for i in range(10):
            toks.append(k(f'buffer_load_dwordx4 v{20+i}, s[20:23], s52 offen lds'))
            if i<9: k('s_add_u32 m0, m0, 1024')
        self.early()
        k(f'v_lshrrev_b32 v30, 2, v2'); k(f'v_and_b32 v31, 3, v2')
        for hh in range(2):
            k(f'v_lshl_add_u32 v{32+hh}, v3, 3, v30')
            if hh: k(f'v_add_u32 v{32+hh}, 4, v{32+hh}')
            k(f'v_and_b32 v{34+hh}, 7, v{32+hh}'); k(f'v_lshlrev_b32 v{34+hh}, 1, v{34+hh}'); k(f'v_mul_u32_u24 v{32+hh}, 1280, v{32+hh}')
        k('s_mul_i32 s52, s3, 20')
        k('v_add_u32 v36, s52, v31'); k('v_lshrrev_b32 v37, 1, v31'); k('v_add_u32 v37, s52, v37'); k('v_and_b32 v38, 1, v31'); k('v_lshlrev_b32 v38, 3, v38')
        AD=40
        for u in range(10):
            cj=u//5; mt=u%5
            for hh in range(2):
                a=AD+2*u+hh
                if mt<4:
                    k(f'v_add_u32 v{a}, {10*cj+4*(mt>>1)}, v36'); k(f'v_xor_b32 v{a}, v{a}, v{34+hh}'); k(f'v_lshl_add_u32 v{a}, v{a}, 4, v{32+hh}')
                else:
                    k(f'v_add_u32 v{a}, {10*cj+8}, v37'); k(f'v_xor_b32 v{a}, v{a}, v{34+hh}'); k(f'v_lshl_add_u32 v{a}, v{a}, 4, v{32+hh}'); k(f'v_add_u32 v{a}, v{a}, v38')
        k('s_mul_i32 s52, s3, 96'); k('s_add_u32 s52, s52, s64'); k('s_mul_i32 s52, s52, 5120'); k(f's_add_u32 s64, s52, {WS_WDS}')
        k(f's_add_u32 s65, s64, 4096'); k(f's_add_u32 s66, s64, {48*5120}'); k(f's_add_u32 s67, s66, 4096')
        self.stamp(1)
        k.wait(*toks); k('s_barrier')
        self.stamp(2)
        O=64
        for u in range(10):
            for hh in range(2): k(f'ds_read_b64_tr_b16 v[{O+4*u+2*hh}:{O+4*u+2*hh+1}], v{AD+2*u+hh} offset:{8*((u%5)&1) if u%5<4 else 0}')
        for u in range(10):
            cj=u//5; mt=u%5
            self.drain.append(k(f'buffer_store_dwordx4 v[{O+4*u}:{O+4*u+3}], v18, s[16:19], s{64+2*cj+(mt>>2)} offen offset:{1024*(mt&3)} sc1'))
    def poll(self, ld, chk):
        k=self.k; Lp=k.label('p'); Lx=k.label('x')
        k('s_mov_b32 s52, 0'); k(f'{Lp}:')
        k(ld); k('s_waitcnt vmcnt(0)')
        k('s_add_u32 s52, s52, 1'); k('s_cmp_gt_u32 s52, 0x40000'); k(f's_cbranch_scc1 {Lx}')
        for s in chk: k(s)
        k(f's_cbranch_vccnz {Lp}'); k(f'{Lx}:')
    def gpost(self, kind):
        k=self.k; Ls=k.label('s'); Le=k.label('e')
        k(f's_add_u32 s53, s68, {kind*2048}'); k('s_lshl_b32 s52, s13, 2'); k('s_add_u32 s52, s52, s53')
        k('v_mov_b32 v252, s14'); k('v_mov_b32 v253, 0'); k('s_mov_b64 exec, 1')
        k('s_cmp_eq_u32 s15, 0'); k(f's_cbranch_scc1 {Ls}')
        k('buffer_store_dword v252, v253, s[16:19], s52 offen'); k(f's_branch {Le}')
        k(f'{Ls}:'); k('buffer_wbl2 sc1'); k('s_waitcnt vmcnt(0)'); k('buffer_store_dword v252, v253, s[16:19], s52 offen sc1')
        k(f'{Le}:'); k('s_mov_b64 exec, -1')
    def gpoll(self, kind):
        k=self.k; Le=k.label('e')
        k(f's_add_u32 s53, s68, {kind*2048}'); k('v_lshlrev_b32 v253, 2, v2')
        self.poll('buffer_load_dword v252, v253, s[16:19], s53 offen sc1', ['v_cmp_ne_u32 vcc, s14, v252'])
        k('s_cmp_lg_u32 s15, 0'); k(f's_cbranch_scc1 {Le}')
        k('buffer_inv sc1'); k('s_waitcnt vmcnt(0)')
        k(f'{Le}:')
    def build(self):
        k=self.k; c=self.c
        END=k.label('end'); LM=k.label('mod'); LS=k.label('shuf'); LN_=k.label('none'); LJ=k.label('join')
        self.drain=[]
        k('s_cmp_ge_u32 s2, 256'); k(f's_cbranch_scc1 {END}')
        k(f's_load_dwordx2 s[4:5], s[0:1], {KA["x"]}'); k(f's_load_dwordx16 s[36:51], s[0:1], {KA["wg"]}')
        if c.prof: k('v_mov_b32 v19, -1')
        self.stamp(0)
        k('v_lshrrev_b32 v1, 6, v0'); k('v_readfirstlane_b32 s3, v1')
        k('v_and_b32 v1, 63, v0'); k('v_and_b32 v2, 15, v0'); k('v_lshrrev_b32 v3, 4, v1')
        k('s_and_b32 s12, s2, 7'); k('s_lshl_b32 s12, s12, 1'); k('s_bfe_u32 s13, s2, 0x10003'); k('s_add_u32 s12, s12, s13'); k('s_lshr_b32 s13, s2, 4')
        k('s_cmp_ge_u32 s2, 64'); k(f's_cbranch_scc1 {LM}')
        self.role_ln(); k(f's_branch {LJ}')
        k(f'{LM}:'); k('s_cmp_ge_u32 s2, 184'); k(f's_cbranch_scc1 {LS}')
        self.role_mod(); k(f's_branch {LJ}')
        k(f'{LS}:'); k('s_cmp_ge_u32 s2, 232'); k(f's_cbranch_scc1 {LN_}')
        self.role_shuf(); k(f's_branch {LJ}')
        k(f'{LN_}:'); self.early()
        k(f'{LJ}:')
        self.stamp(3)
        k('s_mul_i32 s14, s14, 0x9E3779B1'); k('s_add_u32 s14, s14, 0x7F4A7C15')
        k('s_getreg_b32 s52, hwreg(HW_REG_XCC_ID, 0, 4)'); k('s_add_u32 s52, s52, 1'); k('s_xor_b32 s59, s14, s52')
        L=self.w0()
        k('s_lshl_b32 s52, s12, 7'); k('s_lshl_b32 s53, s13, 2'); k('s_add_u32 s52, s52, s53'); k(f's_add_u32 s52, s52, {WS_FLG+FL_XC}')
        k('v_mov_b32 v240, s59'); k('v_mov_b32 v241, 0'); k('s_mov_b64 exec, 1')
        self.drain.append(k('buffer_store_dword v240, v241, s[16:19], s52 offen sc1'))
        k('s_mov_b64 exec, -1')
        self.end(L)
        self.w_issue(c.post_role)
        k.wait(*self.drain); self.w_wait(c.tr_b2)
        k('s_barrier')
        L=self.w0()
        k('v_lshlrev_b32 v241, 10, v2'); k('v_mov_b32 v240, s14'); k('s_lshl_b32 s52, s2, 2'); k(f's_add_u32 s52, s52, {WS_FLG+FL_GF}')
        k('s_mov_b64 exec, 0xffff'); k('buffer_store_dword v240, v241, s[16:19], s52 offen sc1'); k('s_mov_b64 exec, -1')
        self.end(L)
        self.stamp(4)
        self.tw2=self.w_tr(c.tr_b2)
        self.p2_pre()
        self.p2a()
        self.p2b()
        self.p3()
        self.p4()
        if c.prof: k('s_waitcnt vmcnt(0)')
        self.stamp(31); self.stamp_flush()
        k(f'{END}:'); k('s_endpgm')
        return k
    A2=20; BF=52; ACC=100; CAV=124; FA=136; TW=152; G4=176; XV=212; T=232
    def p2_pre(self):
        k=self.k; c=self.c; T=self.T; A2=self.A2
        srd(k,20,4,S*D*2)
        Lp=k.label('pc'); k('s_getpc_b64 s[52:53]'); k(f'{Lp}:'); k(f's_add_u32 s52, s52, {NAME}_tab-{Lp}'); k('s_addc_u32 s53, s53, 0'); srd(k,24,52,17408)
        k('s_lshl_b32 s68, s12, 7'); k(f's_add_u32 s68, s68, {WS_FLG+FL_GRP}')
        k('s_lshl_b32 s69, s13, 7'); k('s_add_u32 s52, s69, s12'); k('s_sub_u32 s53, s69, 1008'); k('s_cmp_lt_u32 s13, 8'); k('s_cselect_b32 s53, s69, s53')
        k('s_cmp_eq_u32 s12, 0'); k('s_cselect_b32 s69, s53, s52')
        k('s_lshl_b32 s70, s3, 5'); k('s_add_u32 s70, s70, s69'); k('s_sub_u32 s71, 2048, s70'); k('s_cmp_eq_u32 s70, 0'); k('s_cselect_b32 s71, 1024, s71')
        k('s_mul_i32 s72, s3, 2560'); k(f's_add_u32 s72, s72, {L_XR}')
        self.misc=[]
        L=self.wn()
        k('s_sub_u32 s52, s3, 1'); k('s_mul_i32 s53, s52, 6144'); k(f's_add_u32 m0, s53, {L_TAB}')
        for u in range(4): self.misc.append(k(f'buffer_load_dwordx4 v18, s[24:27], s53 offen offset:{1024*u} lds'))
        k('s_add_u32 m0, m0, 4096'); k('s_add_u32 s53, s53, 4096')
        self.misc.append(k(f'buffer_load_dwordx4 v18, s[24:27], s53 offen lds'))
        L2=k.label('t'); k('s_cmp_eq_u32 s3, 3'); k(f's_cbranch_scc1 {L2}')
        self.misc.append(k(f'buffer_load_dwordx4 v18, s[24:27], s53 offen offset:1024 lds'))
        k(f'{L2}:')
        k(f'v_lshlrev_b32 v{T}, 2, v1')
        for u in range(3):
            L3=k.label('xr')
            k('s_mul_i32 s53, s52, 3'); k(f's_add_u32 s53, s53, {u}')
            if u==2: k('s_cmp_eq_u32 s53, 8'); k(f's_cbranch_scc1 {L3}')
            k('s_lshr_b32 s54, s53, 1'); k('s_lshl_b32 s54, s54, 5'); k('s_add_u32 s54, s54, s69')
            k('s_sub_u32 s55, 2048, s54'); k('s_cmp_eq_u32 s54, 0'); k('s_cselect_b32 s55, 1024, s55')
            k('s_bitcmp1_b32 s53, 0'); k('s_cselect_b32 s54, s55, s54'); k('s_mul_i32 s54, s54, 1280')
            k('s_mul_i32 s53, s53, 1280'); k(f's_add_u32 m0, s53, {L_XR}'); k('s_nop 0')
            self.misc.append(k(f'buffer_load_dwordx4 v18, s[20:23], s54 offen lds'))
            self.misc.append(k(f'buffer_load_dword v{T}, s[20:23], s54 offen offset:1024 lds'))
            k(f'{L3}:')
        if c.pretouch:
            k('s_lshl_b32 s53, s12, 4'); k('s_add_u32 s53, s53, s13'); k('s_mul_i32 s53, s53, 10240'); k('s_mul_i32 s54, s52, 5120'); k('s_add_u32 s53, s53, s54')
            k(f's_add_u32 s53, s53, {WS_Z}'); k('s_cmp_eq_u32 s3, 3'); k('s_cselect_b32 s53, s68, s53')
            k(f'v_min_u32 v{T}, 39, v1'); k(f'v_lshlrev_b32 v{T}, 7, v{T}'); k(f'v_and_b32 v{T+1}, 7, v1'); k(f'v_lshlrev_b32 v{T+1}, 11, v{T+1}')
            k('s_cselect_b64 vcc, -1, 0'); k(f'v_cndmask_b32 v{T}, v{T}, v{T+1}, vcc')
            k(f'buffer_load_dword v254, v{T}, s[16:19], s53 offen')
        self.end(L)
        k('s_cmp_ge_u32 s3, 2'); k('s_cselect_b32 s52, -1008, 0'); k('s_cmp_eq_u32 s12, 0'); k('s_cselect_b32 s52, s52, s12')
        k('s_lshl_b32 s53, s3, 9'); k('s_add_u32 s73, s52, s53')
        k('s_cmp_eq_u32 s12, 0'); k('s_cselect_b32 s54, 1, 0'); k('s_lshr_b32 s55, s3, 1')
        k('s_and_b32 s52, s54, s55'); k('s_andn2_b32 s53, s54, s55')
        k(f'v_and_b32 v{T+1}, 1, v2'); k(f'v_cvt_f32_u32 v{T+1}, v{T+1}'); k(f'v_mul_f32 v{T+1}, 0x3e800000, v{T+1}')
        k('s_cmp_eq_u32 s12, 0'); k('s_cselect_b32 s54, 0, 0xbe800000'); k(f'v_add_f32 v{T+3}, s54, v{T+1}')
        k(f'v_mov_b32 v{T+6}, 0x3e800000')
        k(f'v_lshlrev_b32 v{T+4}, 2, v3'); k(f'v_cvt_f32_u32 v{T+4}, v{T+4}')
        k('s_cmp_lg_u32 s52, 0'); k('s_cselect_b64 s[62:63], -1, 0'); k('s_cmp_lg_u32 s53, 0'); k('s_cselect_b64 s[64:65], -1, 0')
        k(f'v_cndmask_b32 v{T+1}, v{T+1}, v{T+6}, s[62:63]'); k(f'v_cndmask_b32 v{T+3}, v{T+3}, v{T+6}, s[64:65]')
        for mt in range(2):
            k(f'v_lshrrev_b32 v{T}, 1, v2'); k(f'v_lshl_add_u32 v{T}, v{T}, 5, s73')
            if mt: k(f'v_add_u32 v{T}, 256, v{T}')
            k(f'v_cvt_f32_u32 v{T}, v{T}'); k(f'v_mul_f32 v{T}, 0x3a000000, v{T}')
            k(f'v_cndmask_b32 v{T+2}, v{T}, 0, s[64:65]'); k(f'v_cndmask_b32 v{T}, v{T}, 0, s[62:63]')
            k(f'v_mov_b32 v{T+5}, v{T+1}')
            if mt==0:
                k('s_cmp_eq_u32 s73, 0'); k('s_cselect_b32 s54, 1, 99'); k('v_cmp_eq_u32 vcc, s54, v2')
                k(f'v_cndmask_b32 v{T}, v{T}, 0.5, vcc'); k(f'v_cndmask_b32 v{T+5}, v{T+5}, 0, vcc')
            k(f'v_fma_f32 v{T+5}, v{T}, v{T+4}, v{T+5}'); k(f'v_fma_f32 v{T+7}, v{T+2}, v{T+4}, v{T+3}')
            for ks in range(4):
                for u in range(4):
                    cc=16*ks+u
                    k(f'v_fmamk_f32 v{T+8+2*u}, v{T}, {float(cc)}, v{T+5}'); k(f'v_fmamk_f32 v{T+9+2*u}, v{T+2}, {float(cc)}, v{T+7}')
                for u in range(8): k(f'v_cos_f32 v{T+8+u}, v{T+8+u}')
                for u in range(4): k(f'v_cvt_pk_bf16_f32 v{A2+16*mt+4*ks+u}, v{T+8+2*u}, v{T+9+2*u}')
        k(f's_mov_b32 s54, {(2**32+4)//5}')
        for m in range(5):
            k(f'v_add_u32 v{T}, {64*m}, v1'); k(f'v_mul_hi_u32 v{T+1}, v{T}, s54'); k(f'v_mul_u32_u24 v{T+2}, 5, v{T+1}'); k(f'v_sub_u32 v{T+2}, v{T}, v{T+2}')
            k(f'v_mul_u32_u24 v{T+1}, 1280, v{T+1}'); k(f'v_lshl_add_u32 v{self.ACC+m}, v{T+2}, 4, v{T+1}')
        k(f's_mov_b32 s54, {(2**32+9)//10}')
        k(f'v_mul_hi_u32 v{T+1}, v1, s54'); k(f'v_mul_u32_u24 v{T+2}, 10, v{T+1}'); k(f'v_sub_u32 v{T+2}, v1, v{T+2}')
        k(f'v_lshrrev_b32 v{T+3}, 1, v{T+1}'); k(f'v_and_b32 v{T+1}, 1, v{T+1}'); k(f'v_mul_u32_u24 v{T+3}, 2560, v{T+3}')
        k(f'v_lshl_add_u32 v{T+3}, v{T+1}, 14, v{T+3}'); k(f'v_lshl_add_u32 v{self.ACC+5}, v{T+2}, 4, v{T+3}')
        for u in range(20): k(f'v_mov_b32 v{self.XV+u}, 0')
    def p2a(self):
        k=self.k; c=self.c; T=self.T; A2=self.A2; BF=self.BF; ACC=self.ACC; CAV=self.CAV; FA=self.FA; TW=self.TW; G4=self.G4; XV=self.XV
        self.stamp(5)
        L=self.w0()
        k('s_lshl_b32 s53, s12, 10'); k(f's_add_u32 s53, s53, {WS_FLG+FL_GF}')
        self.poll(f'buffer_load_dwordx4 v[{T}:{T+3}], v18, s[16:19], s53 offen sc1',
                  [f'v_xor_b32 v{T}, s14, v{T}', f'v_xor_b32 v{T+1}, s14, v{T+1}', f'v_xor_b32 v{T+2}, s14, v{T+2}', f'v_xor_b32 v{T+3}, s14, v{T+3}',
                   f'v_or3_b32 v{T}, v{T}, v{T+1}, v{T+2}', f'v_or_b32 v{T}, v{T}, v{T+3}', f'v_cmp_ne_u32 vcc, 0, v{T}'])
        self.stamp(6)
        ut=[]
        k('s_mul_i32 s53, s12, 163840'); k('s_mul_i32 s54, s13, 80'); k('s_add_u32 s53, s53, s54')
        if WS_U: k(f's_add_u32 s53, s53, {WS_U}')
        k(f's_mov_b32 m0, {L_US}')
        for u in range(10):
            ut.append(k(f'buffer_load_dwordx4 v{ACC+u%5}, s[16:19], s53 offen sc1 lds'))
            k('s_add_u32 m0, m0, 1024')
            if u==4: k(f's_add_u32 s53, s53, {64*1280}')
        k(f's_mov_b32 m0, {L_CA}'); k('s_mul_i32 s53, s13, 160'); k(f's_add_u32 s53, s53, {WS_MOD}')
        k('s_mov_b32 exec_hi, 0xff')
        ut.append(k(f'buffer_load_dwordx4 v{ACC+5}, s[16:19], s53 offen sc1 lds'))
        k('s_mov_b32 exec_hi, -1')
        k('s_lshl_b32 s53, s12, 7'); k(f's_add_u32 s53, s53, {WS_FLG+FL_XC}'); k(f'v_lshlrev_b32 v{T}, 2, v2')
        k(f'buffer_load_dword v{T+1}, v{T}, s[16:19], s53 offen sc1')
        L2=k.label('n'); k('s_cmp_lg_u32 s2, 0'); k(f's_cbranch_scc1 {L2}')
        k(f'v_mov_b32 v{T+2}, s14'); k(f'v_mov_b32 v{T+3}, 0'); k(f's_mov_b32 s53, {WS_FLG}'); k('s_mov_b64 exec, 1')
        k(f'buffer_store_dword v{T+2}, v{T+3}, s[16:19], s53 offen sc1'); k('s_mov_b64 exec, -1')
        k(f'{L2}:')
        self.end(L)
        self.w_wait(c.tr_b3); k.wait(*self.misc); k.wait(self.tw2)
        k('s_barrier')
        L=self.wn(); self.modt=[]
        k('s_sub_u32 s52, s3, 1'); k('s_mul_i32 s52, s52, 5')
        for u in range(6):
            L3=k.label('m')
            if u==5: k('s_cmp_lg_u32 s3, 3'); k(f's_cbranch_scc1 {L3}')
            k(f's_add_u32 s53, s52, {u}'); k('s_lshl_b32 s54, s53, 10'); k(f's_add_u32 m0, s54, {L_MOD}')
            k('s_lshr_b32 s55, s53, 3'); k('s_lshl_b32 s55, s55, 13'); k('s_add_u32 s54, s54, s55'); k(f's_add_u32 s54, s54, {WS_MOD+8192}')
            self.modt.append(k('buffer_load_dwordx4 v18, s[16:19], s54 offen sc1 lds'))
            k(f'{L3}:')
        self.end(L)
        tw=self.w_tr(c.tr_b3)
        for u in range(2): k(f'ds_read_b128 v[{FA+4*u}:{FA+4*u+3}], v18 offset:{L_TAB+1024*u}')
        for u in range(6): k(f'ds_read_b128 v[{TW+4*u}:{TW+4*u+3}], v18 offset:{L_TAB+2048+1024*u}')
        for u in range(9): k(f'ds_read_b128 v[{G4+4*u}:{G4+4*u+3}], v18 offset:{L_TAB+8192+1024*u}')
        k(f'v_lshlrev_b32 v{T+4}, 1, v2'); k(f'v_lshl_add_u32 v250, v3, 8, v{T+4}'); k(f'v_lshl_add_u32 v251, v3, 6, v{T+4}')
        k('v_add_u32 v250, s72, v250'); k('v_add_u32 v251, s72, v251')
        for ab in range(2):
            for jj in range(8): k(f'ds_read_u16_d16_hi v{XV+10*ab+jj}, v250 offset:{1280*ab+32*jj}')
            for j in range(2): k(f'ds_read_u16_d16_hi v{XV+10*ab+8+j}, v251 offset:{1280*ab+1024+32*j}')
        k('s_cmp_eq_u32 s70, 0'); k('s_cselect_b64 vcc, -1, 0'); k('s_cselect_b32 s52, 0xffff, -1')
        for u in range(8):
            k(f'v_xor_b32 v{FA+8+u}, 0x80000000, v{FA+u}'); k(f'v_lshlrev_b32 v{T+4}, 16, v{FA+u}')
            k(f'v_cndmask_b32 v{FA+8+u}, v{FA+8+u}, v{T+4}, vcc'); k(f'v_and_b32 v{FA+u}, s52, v{FA+u}')
        k(f'v_lshrrev_b32 v{T+4}, 2, v2'); k(f'v_lshl_add_u32 v{T+4}, v3, 3, v{T+4}'); k(f'v_mul_u32_u24 v{T+4}, 80, v{T+4}')
        k(f'v_and_b32 v{T+5}, 3, v2'); k(f'v_lshl_add_u32 v248, v{T+5}, 3, v{T+4}')
        k('s_mul_i32 s52, s3, 2560'); k(f'v_mul_u32_u24 v249, 320, v3'); k('v_lshl_add_u32 v249, v2, 2, v249'); k('v_add_u32 v249, s52, v249')
        k('v_lshlrev_b32 v246, 2, v2'); k(f'v_add_u32 v246, {L_CA}, v246')
        L=self.w0()
        k(f'v_cmp_ne_u32 vcc, s59, v{T+1}'); k('s_cmp_eq_u64 vcc, 0'); k(f's_cselect_b32 s15, {0 if c.force_slow else 1}, 0')
        k.wait(*ut)
        self.end(L)
        if tw: k.wait(tw)
        k('s_barrier')
        self.stamp(7)
        for ks in range(4):
            for nt in range(3):
                for hh in range(2):
                    o=BF+12*ks+4*nt+2*hh
                    k(f'ds_read_b64_tr_b16 v[{o}:{o+1}], v248 offset:{L_US+2560*ks+320*hh+2*D2B[nt]}')
            if ks==0:
                for nt in range(3):
                    k(f'ds_read2_b32 v[{CAV+2*nt}:{CAV+2*nt+1}], v246 offset0:{D2B[nt]} offset1:{40+D2B[nt]}')
                    k(f'ds_read2_b32 v[{CAV+6+2*nt}:{CAV+7+2*nt}], v246 offset0:{80+D2B[nt]} offset1:{120+D2B[nt]}')
        self.w_issue(c.iss_b4)
        for ks in range(4):
            for mt in range(2):
                for nt in range(3):
                    d=f'v[{ACC+12*mt+4*nt}:{ACC+12*mt+4*nt+3}]'
                    k(f'v_mfma_f32_16x16x32_bf16 {d}, v[{A2+16*mt+4*ks}:{A2+16*mt+4*ks+3}], v[{BF+12*ks+4*nt}:{BF+12*ks+4*nt+3}], {d if ks else 0}')
            if ks==0:
                for nt in range(3):
                    k(f'v_add_f32 v{CAV+2*nt}, v{CAV+2*nt}, v{CAV+2*nt+1}'); k(f'v_add_f32 v{CAV+6+2*nt}, v{CAV+6+2*nt}, v{CAV+7+2*nt}')
                for nt in range(3): k(f'v_cvt_pk_bf16_f32 v{CAV+2*nt}, v{CAV+2*nt}, v{CAV+6+2*nt}')
            if ks==1:
                for nt in range(3):
                    k(f'v_and_b32 v{CAV+6+2*nt}, 0xffff0000, v{CAV+2*nt}'); k(f'v_lshlrev_b32 v{CAV+2*nt}, 16, v{CAV+2*nt}')
                for nt in range(3): k(f'v_add_f32 v{CAV+6+2*nt}, 1.0, v{CAV+6+2*nt}'); k(f'v_mul_f32 v{CAV+2*nt}, 0x45000000, v{CAV+2*nt}')
            if ks==2:
                for nt in range(3): k(f'v_cvt_pk_bf16_f32 v{CAV+6+2*nt}, v{CAV+6+2*nt}, v{CAV+6+2*nt}')
                for nt in range(3): k(f'v_and_b32 v{CAV+6+2*nt}, 0xffff0000, v{CAV+6+2*nt}')
        for mt in range(2):
            for nt in range(3):
                for j in range(4): k(f'v_mul_f32 v{ACC+12*mt+4*nt+j}, v{ACC+12*mt+4*nt+j}, v{CAV+6+2*nt}')
        Ld=k.label('d')
        k('s_cmp_lg_u32 s73, 0'); k(f's_cbranch_scc1 {Ld}'); k('s_mov_b64 exec, 0xffff')
        for nt in range(3): k(f'v_add_f32 v{ACC+4*nt}, v{ACC+4*nt}, v{CAV+2*nt}')
        k('s_mov_b64 exec, -1'); k(f'{Ld}:')
        for mt in range(2):
            for nt in range(3):
                for rr in range(2):
                    a=ACC+12*mt+4*nt+2*rr
                    k(f'v_cvt_pk_bf16_f32 v{a}, v{a}, v{a+1}')
                    t=k(f'ds_write_b32 v249, v{a} offset:{L_ZS+1280*mt+160*rr+4*D2B[nt]}')
        k.wait(t); self.w_wait(c.tr_b5); k.wait(*self.modt)
        k('s_barrier')
        self.stamp(8)
        L=self.w0(); zt=[]
        for u in range(10): k(f'ds_read_b128 v[{BF+4*u}:{BF+4*u+3}], v18 offset:{L_ZS+1024*u}')
        k('s_lshl_b32 s53, s12, 4'); k('s_add_u32 s53, s53, s13'); k('s_mul_i32 s53, s53, 10240'); k(f's_add_u32 s53, s53, {WS_Z}')
        for u in range(10):
            if u%4==0 and u: k('s_add_u32 s53, s53, 4096')
            zt.append(k(f'buffer_store_dwordx4 v[{BF+4*u}:{BF+4*u+3}], v18, s[16:19], s53 offen offset:{1024*(u%4)}'))
        self.end(L)
        self.w_issue(c.iss_b5b)
        self.tw5=self.w_tr(c.tr_b5)
        k(f's_mov_b32 s54, {(2**32+39)//40}')
        for m in range(5):
            k(f'v_add_u32 v{T}, {64*m}, v1'); k(f'v_mul_hi_u32 v{T+1}, v{T}, s54'); k(f'v_mul_u32_u24 v{T+2}, 40, v{T+1}'); k(f'v_sub_u32 v{T+2}, v{T}, v{T+2}')
            k(f'v_mul_u32_u24 v{T+1}, 10240, v{T+1}'); k(f'v_lshl_add_u32 v{ACC+m}, v{T+2}, 4, v{T+1}')
        L=self.w0(); gt=[]
        k.wait(*zt)
        self.stamp(9)
        self.gpost(0); self.gpoll(0)
        self.stamp(10)
        k('s_mul_i32 s53, s12, 163840'); k('s_mul_i32 s54, s13, 640'); k('s_add_u32 s53, s53, s54'); k(f's_add_u32 s53, s53, {WS_Z}')
        k(f's_mov_b32 m0, {L_US}')
        for u in range(10):
            gt.append(k(f'buffer_load_dwordx4 v{ACC+u%5}, s[16:19], s53 offen sc1 lds'))
            k('s_add_u32 m0, m0, 1024')
            if u==4: k(f's_add_u32 s53, s53, {8*10240}')
        self.end(L)
        GA,SB,CB=self.GA,self.SB,self.CB; M0=20; M1=52
        for p,base in ((0,M0),(1,M1)):
            for u in range(8): k(f'ds_read_b128 v[{base+4*u}:{base+4*u+3}], v18 offset:{L_MOD+8192*p+1024*u}')
        src=lambda v,u: (8*v+u) if u<8 else (24+4*(v>>1)+2*(v&1)+u-8)
        for v in range(3):
            for u in range(10): k(f'v_add_f32 v{M0+src(v,u)}, v{M0+src(v,u)}, v{M1+src(v,u)}')
        for v,dst in enumerate((GA,SB,CB)):
            for u in range(5): k(f'v_cvt_pk_bf16_f32 v{M1+5*v+u}, v{M0+src(v,2*u)}, v{M0+src(v,2*u+1)}')
            for u in range(5): k(f'v_lshlrev_b32 v{dst+2*u}, 16, v{M1+5*v+u}'); k(f'v_and_b32 v{dst+2*u+1}, 0xffff0000, v{M1+5*v+u}')
        for u in range(10): k(f'v_add_f32 v{CB+u}, 1.0, v{CB+u}')
        for u in range(5): k(f'v_cvt_pk_bf16_f32 v{M1+u}, v{CB+2*u}, v{CB+2*u+1}')
        for u in range(5): k(f'v_lshlrev_b32 v{CB+2*u}, 16, v{M1+u}'); k(f'v_and_b32 v{CB+2*u+1}, 0xffff0000, v{M1+u}')
        k('s_mul_i32 s52, s3, 160'); k(f's_add_u32 s52, s52, {L_US}'); k(f'v_mul_u32_u24 v248, 2560, v3'); k('v_lshl_add_u32 v248, v2, 2, v248'); k('v_add_u32 v248, s52, v248')
        k('v_add_u32 v249, 1280, v248')
        L=self.w0(); k.wait(*gt); self.end(L)
        if self.tw5: k.wait(self.tw5)
        k('s_barrier')
        self.stamp(11)
    GA=106; SB=116; CB=126
    def p2b(self):
        k=self.k; c=self.c; T=self.T; FA=self.FA; TW=self.TW; G4=self.G4; XV=self.XV; GA,SB,CB=self.GA,self.SB,self.CB
        ZF=20; VV=32; PB=80; Y=32
        for mt in range(3):
            for h in range(2): k(f'ds_read2_b32 v[{ZF+4*mt+2*h}:{ZF+4*mt+2*h+1}], v{248+h} offset0:{D2B[mt]} offset1:{160+D2B[mt]}')
        self.w_issue(c.iss_b6)
        for ab in range(2):
            for mt in range(3):
                for o in range(2):
                    d=VV+24*ab+8*mt+4*o
                    k(f'v_mfma_f32_16x16x32_bf16 v[{d}:{d+3}], v[{ZF+4*mt}:{ZF+4*mt+3}], v[{FA+8*ab+4*o}:{FA+8*ab+4*o+3}], 0')
        YY=[ZF, 32]
        for ab in range(2):
            for mt in range(3):
                re=VV+24*ab+8*mt; im=re+4; cc=TW+8*mt; s=cc+4
                for j in range(4): k(f'v_mul_f32 v{T+j}, v{re+j}, v{cc+j}'); k(f'v_mul_f32 v{T+4+j}, v{im+j}, v{cc+j}')
                for j in range(4): k(f'v_fmac_f32 v{T+j}, v{im+j}, v{s+j}'); k(f'v_fma_f32 v{T+4+j}, -v{re+j}, v{s+j}, v{T+4+j}')
                for j in range(4): k(f'v_cvt_pk_bf16_f32 v{PB+12*ab+4*mt+j}, v{T+j}, v{T+4+j}')
            for mt in range(3):
                for et in range(3):
                    d=f'v[{YY[ab]+4*et}:{YY[ab]+4*et+3}]'
                    k(f'v_mfma_f32_16x16x32_bf16 {d}, v[{G4+12*et+4*mt}:{G4+12*et+4*mt+3}], v[{PB+12*ab+4*mt}:{PB+12*ab+4*mt+3}], {d if mt else 0}')
        self.stamp(12)
        k('s_lshl_b32 s74, s3, 1')
        k(f'v_and_b32 v{T+8}, 7, v1'); k(f'v_xor_b32 v{T+8}, s74, v{T+8}'); k(f'v_lshlrev_b32 v{T+8}, 4, v{T+8}'); k(f'v_lshl_add_u32 v{T+8}, v1, 7, v{T+8}')
        k(f'v_xor_b32 v{T+9}, 16, v{T+8}')
        k(f'v_bfe_u32 v{T+10}, v1, 2, 3'); k(f'v_xor_b32 v{T+10}, s74, v{T+10}'); k(f'v_lshlrev_b32 v{T+10}, 4, v{T+10}')
        k(f'v_lshrrev_b32 v{T+11}, 2, v1'); k(f'v_lshl_add_u32 v{T+10}, v{T+11}, 7, v{T+10}'); k(f'v_and_b32 v{T+11}, 3, v1'); k(f'v_lshl_add_u32 v{T+10}, v{T+11}, 2, v{T+10}')
        k(f'v_xor_b32 v{T+11}, 16, v{T+10}')
        for ab in range(2):
            for u in range(10): k(f'v_fmac_f32 v{XV+10*ab+u}, v{GA+u}, v{YY[ab]+u}')
        for ab in range(2):
            k(f'v_add_f32 v{T+2*ab}, v{XV+10*ab}, v{XV+10*ab+1}'); k(f'v_mul_f32 v{T+2*ab+1}, v{XV+10*ab}, v{XV+10*ab}')
        for ab in range(2): k(f'v_fmac_f32 v{T+2*ab+1}, v{XV+10*ab+1}, v{XV+10*ab+1}')
        for u in range(2,10):
            for ab in range(2):
                k(f'v_add_f32 v{T+2*ab}, v{T+2*ab}, v{XV+10*ab+u}'); k(f'v_fmac_f32 v{T+2*ab+1}, v{XV+10*ab+u}, v{XV+10*ab+u}')
        k(f'v_permlane16_swap_b32 v{T}, v{T+1}'); k(f'v_permlane16_swap_b32 v{T+2}, v{T+3}')
        k(f'v_add_f32 v{T}, v{T}, v{T+1}'); k(f'v_add_f32 v{T+2}, v{T+2}, v{T+3}')
        k(f'v_permlane32_swap_b32 v{T}, v{T+2}'); k(f'v_add_f32 v{T}, v{T}, v{T+2}')
        for sh in (8,4,2,1): k(f'v_add_f32_dpp v{T}, v{T}, v{T} row_ror:{sh} row_mask:0xf bank_mask:0xf')
        k(f'v_mul_f32 v{T}, 0x3acccccd, v{T}')
        for u in range(4): k(f'v_readlane_b32 s{52+u}, v{T}, {16*u}')
        for ab in range(2): k(f'v_mov_b32 v{T+2+ab}, s{53+2*ab}'); k(f'v_mov_b32 v{T+4+ab}, s{52+2*ab}')
        for ab in range(2): k(f'v_fma_f32 v{T+2+ab}, -v{T+4+ab}, v{T+4+ab}, v{T+2+ab}')
        for ab in range(2): k(f'v_max_f32 v{T+2+ab}, 0, v{T+2+ab}')
        for ab in range(2): k(f'v_add_f32 v{T+2+ab}, 0x3727c5ac, v{T+2+ab}')
        for ab in range(2): k(f'v_rsq_f32 v{T+2+ab}, v{T+2+ab}')
        for ab in range(2): k(f'v_mul_f32 v{T+4+ab}, -v{T+4+ab}, v{T+2+ab}')
        H=48
        for ab in range(2):
            for u in range(10): k(f'v_fma_f32 v{H+12*ab+u}, v{XV+10*ab+u}, v{T+2+ab}, v{T+4+ab}')
            for u in range(10): k(f'v_fma_f32 v{H+12*ab+u}, v{H+12*ab+u}, v{CB+u}, v{SB+u}')
            for u in range(5): k(f'v_cvt_pk_bf16_f32 v{PB+8*ab+u}, v{H+12*ab+2*u}, v{H+12*ab+2*u+1}')
            k(f'ds_write_b128 v{T+8+ab}, v[{PB+8*ab}:{PB+8*ab+3}] offset:{L_ZS}')
            t=k(f'ds_write_b32 v{T+10+ab}, v{PB+8*ab+4} offset:{L_ZS+8192}')
        k('s_lshr_b32 s53, s13, 1'); k('s_lshl_b32 s54, s12, 3'); k('s_add_u32 s53, s53, s54'); k('s_mul_i32 s53, s53, 20480')
        k('s_and_b32 s54, s13, 1'); k('s_lshl_b32 s54, s54, 7'); k('s_add_u32 s53, s53, s54'); k(f's_add_u32 s53, s53, {self.H2}')
        k(f'v_lshrrev_b32 v{T}, 3, v1'); k(f'v_xor_b32 v{T+1}, v{T}, v1'); k(f'v_and_b32 v{T+1}, 7, v{T+1}'); k(f'v_lshlrev_b32 v{T+1}, 4, v{T+1}')
        k(f'v_lshl_add_u32 v{T+1}, v{T}, 8, v{T+1}')
        k.wait(t); self.w_wait(c.tr_b7)
        k('s_barrier')
        self.stamp(13)
        L=self.w0(); ht=[]
        R=136
        for u in range(10): k(f'ds_read_b128 v[{R+4*u}:{R+4*u+3}], v18 offset:{L_ZS+1024*u}')
        for u in range(10):
            if u%2==0 and u: k('s_add_u32 s53, s53, 4096')
            ht.append(k(f'buffer_store_dwordx4 v[{R+4*u}:{R+4*u+3}], v{T+1}, s[16:19], s53 offen offset:{2048*(u%2)}'))
        self.end(L)
        for ab in range(2):
            for u in range(5): k(f'v_cvt_pk_bf16_f32 v{20+8*ab+u}, v{XV+10*ab+2*u}, v{XV+10*ab+2*u+1}')
            for u in range(10):
                op='ds_write_b16_d16_hi' if u&1 else 'ds_write_b16'
                if u<8: t=k(f'{op} v250, v{20+8*ab+(u>>1)} offset:{1280*ab+32*u}')
                else: t=k(f'{op} v251, v{20+8*ab+(u>>1)} offset:{1280*ab+1024+32*(u-8)}')
        k(f'v_add_u32 v{T+2}, s72, v18'); k(f'v_lshlrev_b32 v107, 2, v1'); k(f'v_add_u32 v{T+3}, s72, v107')
        k.wait(t)
        X1R=96
        for ab in range(2):
            k(f'ds_read_b128 v[{X1R+4*ab}:{X1R+4*ab+3}], v{T+2} offset:{1280*ab}'); tx=k(f'ds_read_b32 v{X1R+8+ab}, v{T+3} offset:{1280*ab+1024}')
        L=self.w0(); k.wait(*ht); self.stamp(14); self.gpost(1); self.end(L)
        tw=self.w_tr(c.tr_b7)
        self.p3_setup()
        L=self.w0(); self.gpoll(1); self.end(L)
        k.wait(tx)
        if tw: k.wait(tw)
        k('s_barrier')
        self.stamp(15)
    HB=24; AC=48; EP=96; WDV=108
    def p3_setup(self):
        k=self.k; T=self.T
        k(f'v_and_b32 v{T}, 1, v3'); k(f'v_lshrrev_b32 v{T+1}, 1, v3')
        k(f'v_mul_u32_u24 v4, 49152, v{T}'); k(f'v_lshl_add_u32 v4, v{T+1}, 8, v4'); k('v_lshl_add_u32 v4, v2, 4, v4')
        k(f'v_mul_u32_u24 v5, 49152, v{T+1}'); k(f'v_lshl_add_u32 v5, v{T}, 3, v5'); k('v_lshl_add_u32 v5, v2, 4, v5')
        k(f's_mul_i32 s75, s12, {8*49152}'); k('s_mul_i32 s52, s13, 3072'); k('s_add_u32 s75, s75, s52'); k('s_mul_i32 s52, s3, 768'); k('s_add_u32 s75, s75, s52')
        k(f's_add_u32 s75, s75, {WS_G}')
        k(f'v_mov_b32 v6, 0x{f32(K1c):08x}'); k(f'v_mov_b32 v7, 0x{f32(K2c):08x}'); k(f'v_add_u32 v8, {L_H[1]}, v18')
        k('s_mul_i32 s76, s12, 163840'); k('s_mul_i32 s77, s3, 10240'); k('s_add_u32 s76, s76, s77'); k(f's_add_u32 s76, s76, {self.H2}')
        k('s_lshl_b32 s78, s12, 7'); k('s_lshl_b32 s52, s13, 3'); k('s_add_u32 s78, s78, s52'); k('s_add_u32 s78, s78, s74'); k('s_mul_i32 s78, s78, 1280'); k(f's_add_u32 s78, s78, {self.X1}')
        k('s_and_b32 s79, s13, 7'); k('s_mul_i32 s80, s79, 48'); k('s_mul_i32 s52, s3, 12'); k('s_add_u32 s80, s80, s52'); k('s_mul_i32 s80, s80, 5120'); k(f's_add_u32 s80, s80, {WS_WDS}')
    def h2_dma(self, cidx, toks):
        k=self.k; out=[]
        def first(): k(f's_add_u32 s81, s76, {cidx*40960}'); k(f's_add_u32 m0, s77, {L_H[cidx&1]}')
        out.append(first)
        for u in range(10):
            if u%4==0 and u: out.append(lambda: (k('s_add_u32 s81, s81, 4096'), k('s_add_u32 m0, m0, 4096')))
            out.append(lambda u=u: toks.append(k(f'buffer_load_dwordx4 v18, s[16:19], s81 offen offset:{1024*(u%4)} sc1 lds')))
        return out
    def wd_dst(self,u):
        return f'v[{self.WDV+4*u}:{self.WDV+4*u+3}]' if u<35 else f'a[{4*(u-35)}:{4*(u-35)+3}]'
    def wd_loads(self, us):
        k=self.k; out=[]
        for u in us:
            if u%4==0 and u: out.append('s_add_u32 s80, s80, 4096')
            out.append(f'buffer_load_dwordx4 {self.wd_dst(u)}, v18, s[16:19], s80 offen offset:{1024*(u%4)} sc1')
        return out
    def epi(self, cidx):
        A=self.AC+24*(cidx&1); EP=self.EP; L=[]; k=self.k
        acc=lambda nt,T,j: A+12*nt+4*T+j
        for j in range(4): L.append(f'v_permlane32_swap_b32 v{acc(0,2,j)}, v{acc(1,2,j)}')
        groups=[[(acc(0,0,j),acc(0,1,j)) for j in range(4)],[(acc(1,0,j),acc(1,1,j)) for j in range(4)],[(acc(0,2,j),acc(1,2,j)) for j in range(4)]]
        for gi,gr in enumerate(groups):
            t=EP
            for j,(g,u) in enumerate(gr): L.append(f'v_mul_f32 v{t+j}, v{g}, v{g}')
            for j,(g,u) in enumerate(gr): L.append(f'v_fma_f32 v{t+j}, v{t+j}, v7, v6')
            for j,(g,u) in enumerate(gr): L.append(f'v_mul_f32 v{t+j}, v{t+j}, v{g}')
            for j,(g,u) in enumerate(gr): L.append(f'v_exp_f32 v{t+j}, v{t+j}'); L.append(f'v_mul_f32 v{g}, v{g}, v{u}')
            for j,(g,u) in enumerate(gr): L.append(f'v_add_f32 v{t+j}, 1.0, v{t+j}')
            for j,(g,u) in enumerate(gr): L.append(f'v_rcp_f32 v{t+j}, v{t+j}')
            for j,(g,u) in enumerate(gr): L.append(f'v_mul_f32 v{g}, v{g}, v{t+j}')
            o=EP+4+2*gi
            L.append(f'v_cvt_pk_bf16_f32 v{o}, v{gr[0][0]}, v{gr[1][0]}'); L.append(f'v_cvt_pk_bf16_f32 v{o+1}, v{gr[2][0]}, v{gr[3][0]}')
            if gi==1:
                L.append(f's_add_u32 s82, s75, {2*cidx*49152}')
                L.append(f'v_permlane16_swap_b32 v{EP+4}, v{EP+6}'); L.append(f'v_permlane16_swap_b32 v{EP+5}, v{EP+7}')
                L.append(lambda: self.gst.append(k(f'buffer_store_dwordx4 v[{EP+4}:{EP+7}], v4, s[16:19], s82 offen')))
        L.append(lambda: self.gst.append(k(f'buffer_store_dwordx2 v[{EP+8}:{EP+9}], v5, s[16:19], s82 offen offset:512')))
        return L
    def h_read(self, cidx, ks):
        for nt in range(2):
            o=self.HB+8*(ks%3)+4*nt
            self.k(f'ds_read_b128 v[{o}:{o+3}], v{8 if cidx&1 else 18} offset:{20480*nt+1024*ks}')
    def p3(self):
        k=self.k; c=self.c; self.gst=[]
        ht={i:[] for i in range(4)}
        for f in self.h2_dma(0,ht[0]): f()
        X1R=96
        for ab in range(2):
            k(f'buffer_store_dwordx4 v[{X1R+4*ab}:{X1R+4*ab+3}], v18, s[16:19], s78 offen offset:{1280*ab}')
            k(f'buffer_store_dword v{X1R+8+ab}, v107, s[16:19], s78 offen offset:{1280*ab+1024}')
        if c.pretouch:
            k(f's_mov_b32 s52, {(2**32+5)//6}'); k('v_min_u32 v20, 47, v1'); k('v_mul_hi_u32 v21, v20, s52'); k('v_mul_u32_u24 v22, 6, v21'); k('v_sub_u32 v22, v20, v22')
            k('v_mul_u32_u24 v21, 49152, v21'); k('v_lshl_add_u32 v21, v22, 7, v21')
            k('buffer_load_dword v255, v21, s[16:19], s75 offen')
        side=Side(k)
        wdl={0:range(0,12),1:range(12,24),2:range(24,35)}
        for ci in range(4):
            k.wait(*ht[ci]); k('s_barrier')
            self.stamp(16+ci)
            self.h_read(ci,0); self.h_read(ci,1)
            if ci<3: side.add(*self.h2_dma(ci+1,ht[ci+1]))
            if ci>0: side.add(*self.epi(ci-1))
            if ci<3: side.add(*self.wd_loads(wdl[ci]))
            late=self.wd_loads(range(35,60)) if ci==3 else []
            tot=len(side.q); done=0; nm=0
            for ks in range(20):
                if ks+2<20: self.h_read(ci,ks+2)
                A=self.AC+24*(ci&1)
                for nt in range(2):
                    for T in range(3):
                        d=f'v[{A+12*nt+4*T}:{A+12*nt+4*T+3}]'; a=(ks*3+T)*4; o=self.HB+8*(ks%3)+4*nt
                        k(f'v_mfma_f32_16x16x32_bf16 {d}, a[{a}:{a+3}], v[{o}:{o+3}], {d if ks else 0}')
                        nm+=1
                        want=(tot*nm+113)//114
                        if want>done: side.emit(want-done); done=want
                if ci==3:
                    nfree=3*(ks+1)
                    while late:
                        s=late[0]
                        if s.startswith('buffer'):
                            idx=int(s.split('a[')[1].split(':')[0])//4
                            if idx>=nfree or idx>=2*ks: break
                        k(late.pop(0))
            side.flush()
            for s in late: k(s)
        self.stamp(20)
        side.add(*self.epi(3)); side.flush()
        self.p4_setup()
        k.wait(*self.gst); k('s_barrier')
        self.stamp(21)
        L=self.w0(); self.gpost(2); self.gpoll(2); self.end(L)
        k('s_barrier')
        self.stamp(22)
    def p4_setup(self):
        k=self.k
        srd(k,20,46,S*D*2)
        k('s_lshr_b32 s81, s13, 3')
        k('s_lshl_b32 s52, s12, 3'); k('s_lshl_b32 s53, s81, 2'); k('s_add_u32 s52, s52, s53'); k('s_mul_i32 s52, s52, 49152')
        k('s_mul_i32 s53, s3, 12288'); k('s_add_u32 s52, s52, s53'); k(f's_add_u32 s52, s52, {WS_G}')
        for s in range(4):
            k(f's_add_u32 s53, s3, {1+s}'); k('s_and_b32 s53, s53, 3'); k(f's_mul_i32 s{64+s}, s53, 15360')
            k('s_mul_i32 s53, s53, 49152'); k(f's_add_u32 s{60+s}, s52, s53')
        k('s_lshl_b32 s52, s81, 6'); k('s_lshl_b32 s53, s3, 4'); k('s_add_u32 s52, s52, s53'); k('v_add_u32 v20, s52, v2')
        k('s_mul_i32 s53, s79, 160'); k('v_lshlrev_b32 v21, 4, v3'); k('v_add_u32 v21, s53, v21')
        k('v_mul_u32_u24 v9, 1280, v20'); k('v_add_u32 v9, v9, v21')
        k('s_mul_i32 s53, s81, -1008'); k('s_cmp_eq_u32 s12, 0'); k('s_cselect_b32 s53, s53, s12')
        k('v_lshrrev_b32 v22, 1, v20'); k('v_lshl_add_u32 v22, v22, 5, s53')
        k('v_sub_u32 v23, 2048, v22'); k('v_cmp_eq_u32 vcc, 0, v22'); k('v_mov_b32 v10, 1024'); k('v_cndmask_b32 v23, v23, v10, vcc')
        k('v_and_b32 v10, 1, v20'); k('v_cmp_eq_u32 vcc, 1, v10'); k('v_cndmask_b32 v22, v22, v23, vcc')
        k('v_mul_u32_u24 v10, 1280, v22'); k('v_add_u32 v10, v10, v21')
        k('v_lshlrev_b32 v11, 1, v21')
        k('v_lshlrev_b32 v22, 3, v3'); k('v_sub_u32 v12, v9, v22'); k('v_sub_u32 v13, v10, v22'); k('v_lshlrev_b32 v22, 4, v3'); k('v_sub_u32 v14, v11, v22')
        k('s_mul_i32 s83, s12, 163840'); k(f's_add_u32 s83, s83, {self.X1}')
    def p4(self):
        k=self.k
        ACC=24; GFa=100
        def gdst(s,kl):
            o=GFa+((s%3)*12+kl)*4; return f'a[{o}:{o+3}]'
        def gload(s,kl):
            if kl%4==0 and kl: k(f's_add_u32 s{60+s}, s{60+s}, 4096')
            k(f'buffer_load_dwordx4 {gdst(s,kl)}, v18, s[16:19], s{60+s} offen offset:{1024*(kl%4)} sc1')
        for kl in range(12): gload(0,kl)
        side=Side(k)
        for s in (1,2):
            for kl in range(12): side.add(lambda s=s,kl=kl: gload(s,kl))
        X=64; GBr=76; R=4
        for s in range(4):
            A=ACC+20*(s&1); wl=Side(k)
            if s>=1:
                B=ACC+20*((s-1)&1)
                wl.add(f'v_add_u32 v15, s{64+s-1}, v18', *[f'ds_write_b128 v15, v[{B+4*mt}:{B+4*mt+3}] offset:{5120*(s-1)+1024*mt}' for mt in range(5)])
            if s==1:
                for kl in range(12): wl.add(lambda kl=kl: gload(3,kl))
                wl.add(f'buffer_load_dwordx4 v[{X}:{X+3}], v9, s[16:19], s83 offen sc1', f'buffer_load_dwordx4 v[{X+4}:{X+7}], v9, s[16:19], s83 offen offset:64 sc1',
                       f'buffer_load_dwordx2 v[{X+8}:{X+9}], v12, s[16:19], s83 offen offset:128 sc1')
            if s==2:
                pass
            cnt=0
            for kl in range(12):
                for mt in range(5):
                    d=f'v[{A+4*mt}:{A+4*mt+3}]'; u=kl*5+mt
                    k(f'v_mfma_f32_16x16x32_bf16 {d}, {self.wd_dst(u)}, {gdst(s,kl)}, {d if kl else 0}')
                    cnt+=1
                    if s==0: side.emit(1)
                    elif cnt>=6 and cnt%2==0: wl.emit(1)
            side.flush(); wl.flush()
            if s==2:
                k(f's_mov_b32 s52, {WS_MOD+5120}'); k(f's_mov_b32 s53, {WS_MOD+5120+MODP}')
                for u in range(4): k(f'buffer_load_dwordx4 v[{GBr+4*u}:{GBr+4*u+3}], v11, s[16:19], s52 offen offset:{128*(u>>1)+16*(u&1)} sc1')
                k(f'buffer_load_dwordx4 v[{GBr+16}:{GBr+19}], v14, s[16:19], s52 offen offset:256 sc1')
                for u in range(4): k(f'buffer_load_dwordx4 a[{GFa+48+4*u}:{GFa+48+4*u+3}], v11, s[16:19], s53 offen offset:{128*(u>>1)+16*(u&1)} sc1')
                k(f'buffer_load_dwordx4 a[{GFa+64}:{GFa+67}], v14, s[16:19], s53 offen offset:256 sc1')
            self.stamp(23+s)
        k('s_waitcnt lgkmcnt(0)'); k('s_barrier')
        k('v_add_u32 v15, s67, v18')
        R=self.WDV; XU=R+60; P1=XU+20
        for u in range(15): k(f'ds_read_b128 v[{R+4*u}:{R+4*u+3}], v15 offset:{1024*u}')
        A=ACC+20
        for u in range(20): k(f'v_accvgpr_read_b32 v{P1+u}, a{GFa+48+u}')
        for u in range(20): k(f'v_add_f32 v{GBr+u}, v{GBr+u}, v{P1+u}')
        for u in range(10): k(f'v_cvt_pk_bf16_f32 v{P1+u}, v{GBr+2*u}, v{GBr+2*u+1}')
        for u in range(10): k(f'v_lshlrev_b32 v{GBr+2*u}, 16, v{P1+u}'); k(f'v_and_b32 v{GBr+2*u+1}, 0xffff0000, v{P1+u}')
        for u in range(10): k(f'v_lshlrev_b32 v{XU+2*u}, 16, v{X+u}'); k(f'v_and_b32 v{XU+2*u+1}, 0xffff0000, v{X+u}')
        for s in range(3):
            for u in range(20): k(f'v_add_f32 v{A+u}, v{A+u}, v{R+20*s+u}')
        for u in range(20): k(f'v_fmac_f32 v{XU+u}, v{A+u}, v{GBr+u}')
        for u in range(10): k(f'v_cvt_pk_bf16_f32 v{X+u}, v{XU+2*u}, v{XU+2*u+1}')
        k(f'buffer_store_dwordx4 v[{X}:{X+3}], v10, s[20:23], 0 offen'); k(f'buffer_store_dwordx4 v[{X+4}:{X+7}], v10, s[20:23], 0 offen offset:64')
        k(f'buffer_store_dwordx2 v[{X+8}:{X+9}], v13, s[20:23], 0 offen offset:128')

def make(path, **kw):
    c=Cfg()
    for a,b in kw.items(): setattr(c,a,b)
    g=Gen(c); k=g.build()
    t,d=k.finish(table_text(NAME+'_tab'))
    hdr=open('header.txt').read()
    open(path,'w').write(hdr+'; @launch grid=(256,1,1) block=(256,1,1) lds=163840\n.amdgcn_target "amdgcn-amd-amdhsa--gfx950"\n'+t+d)
    print(path,k.stats)
if __name__=='__main__':
    make('f_dbg.s',prof=True,noalias=True); make('f_prof.s',prof=True); make('f.s')
```

```python
import re

DUMMY={('a',246),('a',247)}
REG_RE = re.compile(r'^(?:([vas])(\d+)|([vas])\[(\d+):(\d+)\]|(vcc|exec|m0|vcc_lo|vcc_hi|exec_lo|exec_hi|scc))$')
TRANS = ('v_exp_f32','v_log_f32','v_rcp_f32','v_rsq_f32','v_sqrt_f32','v_sin_f32','v_cos_f32','v_rcp_iflag_f32',
         'v_exp_f16','v_log_f16','v_rcp_f16','v_rsq_f16','v_sqrt_f16','v_sin_f16','v_cos_f16')

def regs_of(tok):
    tok = tok.strip()
    tok = tok.lstrip('-')
    if tok.startswith('abs(') and tok.endswith(')'): tok = tok[4:-1]
    if tok.startswith('|') and tok.endswith('|'): tok = tok[1:-1]
    if tok.startswith('neg(') and tok.endswith(')'): tok = tok[4:-1]
    m = REG_RE.match(tok)
    if not m: return []
    if m.group(1): return [(m.group(1), int(m.group(2)))]
    if m.group(3): return [(m.group(3), i) for i in range(int(m.group(4)), int(m.group(5))+1)]
    sp = m.group(6)
    if sp.startswith('vcc'):
        return [('vcc',0),('vcc',1)] if sp=='vcc' else [('vcc', 0 if sp=='vcc_lo' else 1)]
    if sp.startswith('exec'):
        return [('exec',0),('exec',1)] if sp=='exec' else [('exec', 0 if sp=='exec_lo' else 1)]
    return [(sp,0)]

def split_ops(s):
    out=[]; depth=0; cur=''
    for ch in s:
        if ch in '[(': depth+=1
        if ch in '])': depth-=1
        if ch==',' and depth==0:
            out.append(cur.strip()); cur=''
        else: cur+=ch
    if cur.strip(): out.append(cur.strip())
    return out

class Ins:
    __slots__=('text','op','kind','dst','src','ops','mods','tag','passes','srcC','srcAB','label','target','ws','dpp','meta','lds_dma','wide_store','data','cls','join')
    def __init__(self, text):
        self.text=text; self.dst=set(); self.src=set(); self.tag=None; self.passes=0
        self.srcC=set(); self.srcAB=set(); self.label=None; self.target=None; self.ws=1; self.dpp=False
        self.meta=None; self.cls=None; self.join=None; self.lds_dma=False; self.wide_store=False; self.data=set()
        t=text.split(';')[0].strip()
        if t.endswith(':'):
            self.kind='label'; self.label=t[:-1]; self.op=''; self.ws=0; return
        if t=='' or t.startswith('.'):
            self.kind='dir'; self.op=''; self.ws=0; return
        parts=t.split(None,1)
        op=parts[0]; self.op=op
        rest=parts[1] if len(parts)>1 else ''
        ops=split_ops(rest)
        mods=[]
        if ops:
            last=ops[-1]; toks=[]; depth=0; cur=''
            for ch in last:
                if ch in '[(': depth+=1
                if ch in '])': depth-=1
                if ch==' ' and depth==0:
                    if cur: toks.append(cur)
                    cur=''
                else: cur+=ch
            if cur: toks.append(cur)
            ops[-1]=toks[0]; mods=toks[1:]
        self.ops=ops; self.mods=mods
        R=lambda i: set(regs_of(ops[i])) if i<len(ops) else set()
        base=re.sub(r'_(e32|e64|dpp|sdwa)$','',op)
        if op.startswith('v_mfma') or op.startswith('v_smfma'):
            self.kind='mfma'; self.dst=R(0); self.srcAB=R(1)|R(2); self.srcC=R(3); self.src=self.srcAB|self.srcC
            if '32x32x16' in op or '32x32x8' in op: self.passes=8
            elif '16x16x32' in op or '16x16x16' in op: self.passes=4
            elif '32x32x2_f32' in op: self.passes=16
            elif '16x16x4_f32' in op: self.passes=8
            else: raise ValueError('mfma passes? '+op)
        elif op.startswith('v_'):
            self.kind='valu'
            self.dpp = any(m.startswith(('row_','quad_perm','wave_','bcast')) for m in mods) or op.endswith('_dpp')
            if base.startswith('v_cmp'):
                self.dst=R(0)
                if base.startswith('v_cmpx'): self.dst|={('exec',0),('exec',1)}
                for i in range(1,len(ops)): self.src|=R(i)
            elif base.startswith('v_permlane') and 'swap' in base:
                self.dst=R(0)|R(1); self.src=R(0)|R(1)
            elif base in ('v_add_co_u32','v_sub_co_u32','v_subrev_co_u32','v_addc_co_u32','v_subb_co_u32','v_mad_u64_u32','v_div_scale_f32'):
                self.dst=R(0)|R(1)
                for i in range(2,len(ops)): self.src|=R(i)
            elif base=='v_nop':
                pass
            else:
                self.dst=R(0)
                for i in range(1,len(ops)): self.src|=R(i)
                if base in ('v_fmac_f32','v_dot2c_f32_bf16','v_dot2c_f32_f16','v_pk_fmac_f16','v_writelane_b32','v_fmac_f16') or self.dpp:
                    self.src|=R(0)
                if base=='v_cndmask_b32' and len(ops)==3: self.src|={('vcc',0),('vcc',1)}
                if base=='v_div_fmas_f32': self.src|={('vcc',0),('vcc',1)}
                if any(m.startswith('dst_sel') or m.startswith('op_sel') for m in mods): self.src|=R(0)
        elif op.startswith('ds_'):
            self.kind='ds'
            if op.startswith(('ds_read','ds_bpermute','ds_permute','ds_swizzle')) or '_rtn' in op:
                self.dst=R(0)
                for i in range(1,len(ops)): self.src|=R(i)
            else:
                for i in range(len(ops)): self.src|=R(i)
        elif op.startswith('buffer_'):
            self.kind='vmem'
            if op.startswith(('buffer_wbl2','buffer_inv')):
                pass
            elif 'lds' in mods:
                self.lds_dma=True
                for i in range(len(ops)): self.src|=R(i)
                self.src|={('m0',0)}
            elif op.startswith('buffer_load'):
                self.dst=R(0)
                for i in range(1,len(ops)): self.src|=R(i)
            else:
                for i in range(len(ops)): self.src|=R(i)
                self.data=R(0)
                if op.startswith('buffer_atomic') and 'sc0' in mods: self.dst=R(0)
                self.wide_store = op.endswith(('x3','x4'))
        elif op.startswith('global_'):
            self.kind='vmem'
            if op.startswith('global_load_lds'):
                self.lds_dma=True
                for i in range(len(ops)): self.src|=R(i)
                self.src|={('m0',0)}
            elif op.startswith('global_load'):
                self.dst=R(0)
                for i in range(1,len(ops)): self.src|=R(i)
            elif op.startswith('global_atomic') and 'sc0' in mods:
                self.dst=R(0)
                for i in range(1,len(ops)): self.src|=R(i)
            else:
                for i in range(len(ops)): self.src|=R(i)
                self.data=R(1)
                self.wide_store = op.endswith(('x3','x4'))
        elif op.startswith(('s_load','s_buffer_load','s_memtime','s_memrealtime','s_atomic')):
            self.kind='smem'; self.dst=R(0)
            for i in range(1,len(ops)): self.src|=R(i)
            if op.startswith('s_atomic'): self.src|=R(0)
        elif op in ('s_branch',) or op.startswith('s_cbranch'):
            self.kind='branch'; self.target=ops[0]
            if 'scc' in op: self.src={('scc',0)}
            if 'vcc' in op: self.src={('vcc',0),('vcc',1)}
            if 'exec' in op: self.src={('exec',0),('exec',1)}
        elif op=='s_endpgm': self.kind='end'
        elif op=='s_waitcnt': self.kind='wait'
        elif op=='s_nop':
            self.kind='nop'; self.ws=int(ops[0],0)+1
        elif op in ('s_barrier','s_setprio','s_sleep','s_sethalt','s_icache_prefetch','s_setreg_b32','s_setreg_imm32_b32'):
            self.kind='other'
        elif op.startswith('s_'):
            self.kind='salu'
            if op.startswith(('s_cmp','s_bitcmp')):
                self.dst={('scc',0)}
                for i in range(len(ops)): self.src|=R(i)
            else:
                self.dst=R(0)
                for i in range(1,len(ops)): self.src|=R(i)
                if 'saveexec' in op: self.dst|={('exec',0),('exec',1)}; self.src|={('exec',0),('exec',1)}
                if op.startswith(('s_addk','s_mulk','s_cmov')): self.src|=R(0)
                if op.startswith(('s_cselect','s_addc','s_subb','s_cmov')): self.src|={('scc',0)}
                if not op.startswith(('s_mov','s_movk','s_mul_i32','s_mul_hi','s_mulk','s_cselect','s_getpc','s_getreg','s_bfm','s_pack','s_sext','s_cmov','s_ff','s_flbit','s_brev')):
                    self.dst|={('scc',0)}
        else:
            raise ValueError('unknown instruction: '+text)

def parse_wait(text):
    vm=lg=None
    m=re.search(r'vmcnt\((\d+)\)',text)
    if m: vm=int(m.group(1))
    m=re.search(r'lgkmcnt\((\d+)\)',text)
    if m: lg=int(m.group(1))
    return vm,lg

class Kernel:
    def __init__(self, name):
        self.name=name; self.ins=[]; self.ntag=0; self.nlab=0; self.curcls=None; self.mute=False; self.hook=None
    def __call__(self, text):
        last=None
        for line in text.split('\n'):
            line=line.strip()
            if not line or line.startswith(';'): continue
            if self.mute: continue
            i=Ins(line); self.ins.append(i); last=i; i.cls=self.curcls
            if i.kind in ('vmem','ds','smem'):
                self.ntag+=1; i.tag=self.ntag
            if self.hook: self.hook(i)
        return last.tag if last is not None else None
    def comment(self, c):
        i=Ins('; '+c) if False else None
        x=Ins('.'); x.text='; '+c; self.ins.append(x)
    def wait(self, *tags):
        if self.mute: return
        x=Ins('.'); x.text=''; x.kind='waittag'; x.meta=set(t for t in tags if t is not None); self.ins.append(x)
    def forget(self, *tags):
        x=Ins('.'); x.text=''; x.kind='forget'; x.meta=set(t for t in tags if t is not None); self.ins.append(x)
    def label(self, base='L'):
        self.nlab+=1; return f'{self.name}_{base}{self.nlab}'
    def _cfg_flow(self, ins, init, step, merge, jmerge=None):
        labels={x.label:i for i,x in enumerate(ins) if x.kind=='label'}
        changed=True; at={}
        it=0
        while changed:
            changed=False; it+=1
            assert it<50
            st=init()
            for idx,x in enumerate(ins):
                if x.kind=='label':
                    o=at.get(x.label)
                    if st is None: st=None if o is None else dict(o)
                    elif o is not None: st=jmerge(st,o,x.join) if (jmerge and x.join) else merge(st,o)
                if st is None: continue
                st,ch=step(idx,x,st)
                changed|=ch
                if x.kind=='branch':
                    if x.target in labels:
                        o=at.get(x.target)
                        n=dict(st) if o is None else merge(dict(st),o)
                        if n!=o: at[x.target]=n; changed=True
                    if x.op=='s_branch': st=None
                if x.kind=='end': st=None
    def insert_waits(self):
        ins=self.ins
        need={}
        info={}
        for x in ins:
            if x.tag: info[x.tag]=('vm' if x.kind=='vmem' else 'lg', x.dst-DUMMY, x.kind=='smem')
        def merge(a,b):
            r=dict(a)
            for k,v in b.items(): r[k]=min(r[k],v) if k in r else v
            return r
        def apply(st,vm,lg):
            for t in list(st):
                c=info[t][0]
                if c=='vm' and vm is not None and st[t]>=vm: del st[t]
                elif c=='lg' and lg is not None:
                    if lg==0 or (st[t]>=lg and not any(info[u][2] for u in st if info[u][0]=='lg')): del st[t]
        def step(idx,x,st):
            st=dict(st); ch=False
            vm=lg=None
            touched=x.src|x.dst
            for t,y in st.items():
                c,d,sm=info[t]
                hit=(d & touched) or (x.kind=='waittag' and t in x.meta)
                if hit:
                    if c=='vm': vm=y if vm is None else min(vm,y)
                    else:
                        anysm=any(info[u][2] for u in st if info[u][0]=='lg')
                        yy=0 if anysm else y
                        lg=yy if lg is None else min(lg,yy)
            if vm is not None: vm=min(vm,63)
            if lg is not None: lg=min(lg,15)
            o=need.get(idx,[None,None])
            n=[o[0] if vm is None else (vm if o[0] is None else min(o[0],vm)), o[1] if lg is None else (lg if o[1] is None else min(o[1],lg))]
            if n!=o: need[idx]=n; ch=True
            apply(st,n[0],n[1])
            if x.kind=='wait':
                a,b=parse_wait(x.text); apply(st,a,b)
            if x.kind=='forget':
                for t in x.meta: st.pop(t,None)
            if x.tag:
                c=info[x.tag][0]
                for t in st:
                    if info[t][0]==c: st[t]+=1
                st[x.tag]=0
            return st,ch
        cls={x.tag:x.cls for x in ins if x.tag}
        def jmerge(a,b,j):
            r={}
            for t in set(a)|set(b):
                if cls[t]==j:
                    if t in a: r[t]=a[t]
                elif cls[t] is not None:
                    if t in b: r[t]=b[t]
                else: r[t]=min(a.get(t,1<<30),b.get(t,1<<30))
            return r
        self._cfg_flow(ins,dict,step,merge,jmerge)
        out=[]
        for idx,x in enumerate(ins):
            if idx in need and need[idx]!=[None,None]:
                vm,lg=need[idx]
                s='s_waitcnt'+(f' vmcnt({vm})' if vm is not None else '')+(f' lgkmcnt({lg})' if lg is not None else '')
                out.append(Ins(s))
            if x.kind not in ('waittag','forget'): out.append(x)
        self.ins=out
    def insert_nops(self):
        ins=self.ins; need={}
        XD={2:5,4:8,8:12,16:20}; XC={2:4,4:6,8:10,16:18}; XW={2:1,4:3,8:7,16:15}
        def merge(a,b):
            r=dict(a)
            for k,v in b.items(): r[k]=min(r[k],v) if k in r else v
            return r
        def required(x,st):
            req=0
            def chk(key,n):
                nonlocal req
                if key in st and st[key]<n: req=max(req,n-st[key])
            vsrc=[r for r in x.src if r[0] in 'va' and r[0]!='vcc']
            vdst=[r for r in x.dst if r[0] in 'va' and r[0]!='vcc']
            ssrc=[r for r in x.src if r[0] in ('s','vcc')]
            base=re.sub(r'_(e32|e64|dpp|sdwa)$','',x.op)
            if x.kind=='mfma':
                for r in vsrc: chk(('valu',r),2); chk(('dot',r),3)
                for r in x.srcAB:
                    for p in XD: chk(('mfma',r,p),XD[p])
                ckey=(min(x.srcC),len(x.srcC),x.passes) if x.srcC else None
                for r in x.srcC|x.dst:
                    for p in XC:
                        k=('mfma',r,p)
                        if k in st and st[k]<XC[p]:
                            full=('mfull',r,ckey)
                            if r in x.srcC and full in st and st[full]==st[k]:
                                if p==2: chk(k,2)
                            else: chk(k,XC[p])
                chk(('vexec',),4)
            if x.kind in ('valu','vmem','ds'):
                for r in vsrc+vdst:
                    for p in XD: chk(('mfma',r,p),XD[p])
            if x.kind=='valu':
                for r in vdst:
                    for p in XW: chk(('mfmaC',r,p),XW[p])
                    chk(('wstore',r),2)
                for r in ssrc: chk(('vsgpr',r),2)
                if x.dpp:
                    for r in vsrc: chk(('valu',r),2); chk(('load',r),0)
                    chk(('vexec',),5)
                if base.startswith(('v_readlane','v_readfirstlane')):
                    for r in vsrc: chk(('valu',r),1)
                    chk(('vexec',),4)
                if base.startswith(('v_readlane','v_writelane')):
                    for r in ssrc: chk(('vsgpr',r),4)
                if base.startswith('v_permlane'):
                    for r in vsrc: chk(('valu',r),2)
                    chk(('vexec',),4)
                if base not in TRANS:
                    for r in vsrc: chk(('trans',r),1)
                for r in vsrc+vdst: chk(('opsel',r),1)
                if base=='v_div_fmas_f32':
                    chk(('vsgpr',('vcc',0)),4)
                isdot=base.startswith('v_dot')
                for r in vsrc+vdst:
                    k=('dot',r)
                    if k in st and st[k]<3:
                        same=isdot and ('dotop',r,base) in st
                        if same and r in x.dst and (base.startswith('v_dot2c') or (len(x.ops)>3 and r in regs_of(x.ops[3]))) and r not in regs_of(x.ops[1]) and r not in regs_of(x.ops[2]): continue
                        chk(k,3)
            if x.kind in ('vmem','ds'):
                for r in vdst: chk(('wstore',r),1)
                for r in vsrc: chk(('dot',r),3); chk(('trans',r),1)
            if x.kind=='vmem':
                for r in ssrc: chk(('vsgpr',r),5)
                if x.lds_dma: chk(('m0',),1)
            if x.kind in ('salu','smem','branch'):
                for r in ssrc: chk(('vsgpr',r),1 if x.kind!='smem' else 5)
            return req
        def step(idx,x,st):
            ch=False
            if x.kind in ('label','dir'): return st,False
            st=dict(st)
            n=need.get(idx,0)
            if n:
                for k in st: st[k]+=n
            r=required(x,st)
            if r>0:
                need[idx]=n+r; ch=True
                for k in st: st[k]+=r
            for k in list(st):
                st[k]+=x.ws
                if st[k]>=21: del st[k]
            base=re.sub(r'_(e32|e64|dpp|sdwa)$','',x.op)
            if x.kind=='valu':
                for r in x.dst:
                    if r[0] in ('v','a'):
                        st[('valu',r)]=0
                        if base in TRANS: st[('trans',r)]=0
                        if base.startswith('v_dot'): st[('dot',r)]=0; st[('dotop',r,base)]=0
                        if any(m.startswith(('dst_sel','op_sel')) for m in x.mods) and not base.startswith('v_pk'): st[('opsel',r)]=0
                    elif r[0] in ('s','vcc'): st[('vsgpr',r)]=0
                    elif r[0]=='exec': st[('vexec',)]=0
            if x.kind=='mfma':
                key=(min(x.dst),len(x.dst),x.passes)
                for r in x.dst:
                    st[('mfma',r,x.passes)]=0; st[('mfull',r,key)]=0
                for r in x.srcC: st[('mfmaC',r,x.passes)]=0
            if x.kind=='vmem' and x.wide_store:
                for r in x.data: st[('wstore',r)]=0
            if x.kind=='salu' and ('m0',0) in x.dst: st[('m0',)]=0
            return st,ch
        self._cfg_flow(ins,dict,step,merge)
        out=[]; self.nnop=0
        for idx,x in enumerate(ins):
            n=need.get(idx,0)
            self.nnop+=n
            while n>0:
                m=min(n,16); y=Ins(f's_nop {m-1}'); out.append(y); n-=m
            out.append(x)
        self.ins=out
    def maxregs(self):
        mv=ma=ms=-1
        for x in self.ins:
            for r in x.src|x.dst:
                if r[0]=='v': mv=max(mv,r[1])
                elif r[0]=='a': ma=max(ma,r[1])
                elif r[0]=='s': ms=max(ms,r[1])
        return mv+1,ma+1,ms+1
    def finish(self, tail=''):
        self.insert_waits(); self.insert_nops()
        if getattr(self,'hops',None): self.pads=insert_hops(self,*self.hops)
        if getattr(self,'align',None) is not None: print('align',align_mfma(self,self.align))
        nv,na,ns=self.maxregs()
        nv=max(nv,1)
        acc=(nv+3)//4*4
        tot=acc+na if na else nv
        body='\n'.join(('' if x.kind=='label' else '    ')+x.text for x in self.ins)
        text=f'''.text
.globl {self.name}
.p2align 12
.p2align 8
.type {self.name},@function
{self.name}:
{body}
{tail}
'''
        desc=f'''.section .rodata,"a"
.p2align 6
.amdhsa_kernel {self.name}
  .amdhsa_next_free_vgpr {tot}
  .amdhsa_next_free_sgpr {max(ns,16)}
  .amdhsa_accum_offset {acc}
  .amdhsa_group_segment_fixed_size 0
  .amdhsa_kernarg_size 112
  .amdhsa_user_sgpr_count 2
  .amdhsa_user_sgpr_kernarg_segment_ptr 1
  .amdhsa_system_sgpr_workgroup_id_x 1
  .amdhsa_float_denorm_mode_32 3
.end_amdhsa_kernel
'''
        self.stats=dict(vgpr=nv,agpr=na,sgpr=ns,total=tot,ninstr=sum(1 for x in self.ins if x.kind not in('label','dir')),nops=self.nnop)
        return text,desc

def assemble_file(kernels, launches, path, header=''):
    out=header
    for n,g,b,l in launches:
        out+=f'; @launch kernel={n} grid=({g},1,1) block=({b},1,1) lds={l}\n'
    out+='.amdgcn_target "amdgcn-amd-amdhsa--gfx950"\n'
    descs=''
    for k in kernels:
        tail=''
        if isinstance(k,tuple): k,tail=k
        t,d=k.finish(tail); out+=t; descs+=d
        print(k.name,k.stats)
    out+=descs
    open(path,'w').write(out)

import subprocess, os, tempfile
def instr_sizes(kernel):
    body='\n'.join(x.text for x in kernel.ins if not x.text.startswith('.p2align'))
    extra=''
    for m in set(re.findall(r'(\w+_tab|\w+_hop0)\b',body)): extra+=f'{m}:\n'
    txt='.amdgcn_target "amdgcn-amd-amdhsa--gfx950"\n.text\n'+kernel.name+':\n'+body+'\n'+extra
    d=tempfile.mkdtemp(); open(d+'/a.s','w').write(txt)
    subprocess.run(['clang','-x','assembler','-target','amdgcn-amd-amdhsa','-mcpu=gfx950','-c',d+'/a.s','-o',d+'/a.o'],check=True)
    o=subprocess.run(['llvm-objdump','-d','--mcpu=gfx950',d+'/a.o'],capture_output=True,text=True).stdout
    sz=[]
    for l in o.split('\n'):
        m=re.search(r'//\s*([0-9A-F]{12}):((?:\s[0-9A-F]{8})+)',l)
        if m: sz.append(4*len(m.group(2).split()))
    return sz
WIDEN=('v_mul_f32','v_add_f32','v_exp_f32','v_rcp_f32','v_sub_f32','v_max_f32','v_mov_b32','v_lshlrev_b32','v_and_b32','v_add_u32','v_cos_f32','v_rsq_f32','v_xor_b32','v_or_b32','v_lshrrev_b32')
def align_mfma(kernel, phase=0, what=('mfma',)):
    sz=instr_sizes(kernel)
    real=[x for x in kernel.ins if x.kind not in ('label','dir')]
    assert len(sz)==len(real), (len(sz),len(real))
    off=0; cand=None; nw=0; miss=0
    for x,s in zip(real,sz):
        if x.kind in what:
            if off%8!=phase:
                if cand is not None:
                    cand.text=cand.text.replace(cand.op,cand.op+'_e64',1); off+=4; nw+=1
                else: miss+=1
            cand=None
        elif s==4 and x.op in WIDEN: cand=x
        off+=s
    return nw,miss

def insert_hops(kernel, start_label, back_label, extra=0, step=4096, targets=()):
    sz=instr_sizes(kernel); it=iter(sz)
    out=[]; off=None; nextb=0; pads=[]; ez=False; force=False
    for x in kernel.ins:
        if x.kind=='label' and x.label==start_label: off=0; nextb=0
        if x.kind in ('label','dir'):
            out.append(x)
            if x.kind=='label' and x.label in targets: force=True
            continue
        s=next(it)
        if force and not ez and not (off>=nextb):
            lab=f'{kernel.name}_hop{len(pads)}'; pads.append(lab)
            out.append(Ins(lab+':')); y=Ins(f's_cbranch_execz X'); out.append(y); y.meta='hop'; off+=4
        force=False
        if off is not None and off>=nextb and x.kind!='end' and not ez:
            lab=f'{kernel.name}_hop{len(pads)}'; pads.append(lab)
            out.append(Ins(lab+':')); y=Ins(f's_cbranch_execz X'); out.append(y); y.meta='hop'; off+=4; nextb+=step
        out.append(x)
        if ('exec',0) in x.dst or ('exec',1) in x.dst:
            t=x.text.replace(' ','')
            if t in ('s_mov_b64exec,-1','s_mov_b32exec_hi,-1'): ez=False
            else: ez=True
        if off is not None: off+=s
    nch=max(extra,1); i=0
    for y in out:
        if y.meta=='hop':
            y.text=f's_cbranch_execz {pads[i+nch] if i+nch<len(pads) else back_label}'; i+=1
        if isinstance(y.meta,tuple) and y.meta[0]=='hopstart':
            y.text=f's_cbranch_scc1 {pads[y.meta[1]]}'
    kernel.ins=out
    return pads
```

```python
from asmgen import *
from lay2 import *
from gen_p2 import table_text, f32, D2B
from gen_p34 import Side, K1c, K2c
import sys

NAME='adaLN_cond__spectral_fnet__geglu_ffn__prompt_kernel'
L_RING=40960; WST=24576
L_TAB=20480; L_MOD=20480; L_X1=20480; L_XR=10240; L_ZS=10240; L_US=0; L_CA=37888
L_H=[0,40960]
FL_GRP=32768; FL_GF=0x80000; FL_GF2=0x100000; FL_XC=0

class EV(dict):
    def __setitem__(self,a,b):
        assert a not in self, ('event collision',a)
        dict.__setitem__(self,a,b)
class Cfg:
    prof=False; noalias=False; force_slow=False
    iss_early=[0]; iss_ld=[]; iss_role=[1]; iss_b2=[2,3]; iss_b2b=[4]; iss_b2c=[]; iss_b3=[5]; iss_b4=[6]; iss_mid4=[]; iss_b5=[]; iss_g=[7,8]; iss_b5b=[]; iss_b6=[]; iss_stb=[9]; iss_b7=[]; iss_b9=[]
    tr_b2=[0]; tr_b3=[1,2,3]; tr_b4=[4]; tr_b5=[5,6]; tr_b7=[7,8]; tr_c0=[9]; tr_c0b=[]; tr_g=[]; c0bar=70
    pf={}
    slot={i:i%10 for i in range(20)}
    nwd1=5; poll1=100; post0=40; chk0=40; post1=72; post2n=40; post3=30; chk2=40; chk3=34; xbar={1:18,2:18,3:18}; gbwait=20; outfl='nt'; stamps=None; wsp=3; hold1=6; hold2=6; post2=10; hops=True; x1fl=''; x1sep=False; gfl=['sc1','sc1','sc1','']
    defer_sh=True; usplit=True; c0split=True; alias2=True; per=[16,16,15]; nob2p=False; a2u=[1]; rdp=[1,3,5,8]; p4pair=True; tailopt=True; shdma='role'; post2s=0; pd2=30; pd3=24; pk2=True; zout=True; galias=True; wdlate=False; zsh=True; cont=False; pk3=True; prio=0; rate=0; split=True; tlb=0; shlate=True; nl1=47; gap3=3; gap4=5; ep_sp=30; pk=False; pkcost=2; zfl=''; hfl=''; gnt=''; alias3=True; w4=[]; sweep_at='sw_early'; pfd=2; hopstep=4096; hoptg=False; rec=32; shst='b4'; ztouch='b2'; otouch='none'; gtouch=''; utouch=''; a2pre=[]; a2post=[0,1]; gpfl='sc1'; gasync=False; gsleep=0; gsleep2=0; wb_at=[]; sweep=True; pretouch=True; codetouch=True; pace=0; pacewb=False; probe=None

def srd(k, r, lo, size):
    k(f's_mov_b32 s{r}, s{lo}'); k(f's_and_b32 s{r+1}, s{lo+1}, 0xffff'); k(f's_mov_b32 s{r+2}, {size}'); k(f's_mov_b32 s{r+3}, 0x20000')

class Gen:
    def __init__(self, cfg):
        self.c=cfg; self.k=Kernel(NAME); self.wt={}; self.nst=0
        self.H2=0x1180000-0x300000*0 if False else WS_H2; self.X1=WS_X1
        if cfg.noalias: self.H2=0x1200000; self.X1=0x1500000
        if cfg.x1sep: self.X1=0x1500000
        self.wssize=0x1800000 if cfg.noalias or cfg.x1sep else WS_SIZE
    def stamp(self, slot):
        if self.c.probe==slot:
            self.k('s_memrealtime s[98:99]'); self.k('s_waitcnt lgkmcnt(0)'); self.k('s_sub_u32 s95, s98, s96'); self.k('s_lshl_b32 s95, s95, 2')
        if not self.c.prof or slot<0 or (self.c.stamps and slot not in self.c.stamps): return
        k=self.k
        k('s_memrealtime s[90:91]'); k('s_memtime s[100:101]'); k('s_waitcnt lgkmcnt(0)')
        k(f'v_writelane_b32 v19, s90, {slot}'); k(f'v_writelane_b32 v19, s100, {32+slot}')
    def stamp_flush(self):
        if not self.c.prof: return
        k=self.k; L=k.label('sf')
        k('s_mov_b64 exec, -1')
        k('s_lshl_b32 s94, s2, 8'); k('s_lshl_b32 s93, s3, 16'); k('s_add_u32 s94, s94, s93'); k(f's_add_u32 s94, s94, {WS_DBG}')
        k('v_lshlrev_b32 v1, 2, v1'); k('buffer_store_dword v19, v1, s[16:19], s94 offen')
        k(f'{L}:')
    def w0(self):
        if self.who: self.k.mute=(self.who!='w0'); self.nop=True; return None
        assert self.k.curcls is None
        L=self.k.label('w0'); self.k('s_cmp_lg_u32 s3, 0'); self.k(f's_cbranch_scc1 {L}'); self.k.curcls='w0'; self.open=L; return L
    def wn(self):
        if self.who: self.k.mute=(self.who!='wn'); self.nop=True; return None
        assert self.k.curcls is None
        L=self.k.label('wn'); self.k('s_cmp_eq_u32 s3, 0'); self.k(f's_cbranch_scc1 {L}'); self.k.curcls='wn'; self.open=L; return L
    open=None
    who=None; nop=False; q=None
    def end(self,L):
        if L is None: self.k.mute=False; self.nop=False; return
        c=None
        if L==self.open: c=self.k.curcls; self.k.curcls=None; self.open=None
        self.k(f'{L}:'); self.k.ins[-1].join=c
    def w_setup(self):
        k=self.k; T=240
        k('s_cmp_le_u32 s3, 2'); k('s_cselect_b32 s28, s36, s38'); k('s_cselect_b32 s29, s37, s39'); k('s_and_b32 s29, s29, 0xffff')
        k(f's_mov_b32 s30, {D*F*2}'); k('s_mov_b32 s31, 0x20000')
        k('s_cmp_le_u32 s3, 1'); k('s_cselect_b32 s32, s36, s38'); k('s_cselect_b32 s33, s37, s39'); k('s_and_b32 s33, s33, 0xffff')
        k(f's_mov_b32 s34, {D*F*2}'); k('s_mov_b32 s35, 0x20000')
        k('s_sub_u32 s52, s3, 1'); k('s_lshl_b32 s56, s52, 12'); k(f's_add_u32 s56, s56, {L_RING}')
        k('s_mul_i32 s57, s13, 192')
        k(f's_mov_b32 s53, {(2**32+11)//12}')
        k('s_lshl_b32 s52, s52, 2')
        for m in range(4):
            k(f's_add_u32 s54, s52, {m}'); k('s_cmp_ge_u32 s54, 6'); k('s_cselect_b32 s55, 6, 0'); k('s_sub_u32 s54, s54, s55'); k('s_lshl_b32 s54, s54, 6')
            k(f'v_add_u32 v{T}, s54, v1'); k(f'v_mul_hi_u32 v{T+1}, v{T}, s53')
            k(f'v_mul_u32_u24 v{T+2}, 12, v{T+1}'); k(f'v_sub_u32 v{T+2}, v{T}, v{T+2}'); k(f'v_lshlrev_b32 v{T+2}, 4, v{T+2}')
            k(f'v_lshrrev_b32 v{T+3}, 3, v{T+1}'); k(f'v_and_b32 v{T+4}, 7, v{T+1}')
            k(f'v_lshl_add_u32 v{T+5}, v{T+4}, 4, v{T+3}'); k(f'v_mul_u32_u24 v{T+5}, 3072, v{T+5}'); k(f'v_add_u32 v{4+m}, v{T+5}, v{T+2}')
            k(f'v_lshrrev_b32 v{T+5}, 1, v{T+4}'); k(f'v_lshl_add_u32 v{T+5}, v{T+3}, 2, v{T+5}'); k(f'v_and_b32 v{T+4}, 1, v{T+4}')
            k(f'v_lshl_add_u32 v{T+5}, v{T+4}, 4, v{T+5}'); k(f'v_mul_u32_u24 v{T+5}, 3072, v{T+5}'); k(f'v_add_u32 v{8+m}, v{T+5}, v{T+2}')
    def w_setup_tr(self):
        k=self.k; T=240
        k(f'v_lshrrev_b32 v{T}, 2, v2'); k(f'v_lshl_add_u32 v{T}, v3, 3, v{T}'); k(f'v_mul_u32_u24 v{T}, 192, v{T}')
        k('s_mul_i32 s52, s3, 48'); k(f's_add_u32 s52, s52, {L_RING}'); k(f'v_add_u32 v{T}, s52, v{T}')
        k(f'v_and_b32 v{T+1}, 3, v2'); k(f'v_lshl_add_u32 v12, v{T+1}, 3, v{T}')
        k(f'v_and_b32 v{T+1}, 1, v2'); k(f'v_lshl_add_u32 v13, v{T+1}, 3, v{T}'); k(f'v_bfe_u32 v{T+1}, v2, 1, 1')
        k(f'v_mul_u32_u24 v{T+1}, 6144, v{T+1}'); k(f'v_add3_u32 v13, v13, v{T+1}, 32')
        for p in (1,2):
            k(f'v_add_u32 v{12+2*p}, {2*p*WST}, v12'); k(f'v_add_u32 v{13+2*p}, {2*p*WST}, v13')
    def w_issue(self, stages, then=None, masked=False, burst=False):
        k=self.k
        if not stages:
            if then: k.wait(*then)
            return
        if self.who and self.c.rate and not burst:
            if self.who=='wn':
                for ks in stages:
                    reg=4 if ks<16 else 8
                    row=(4*(ks&3)+128*(ks>>2)) if ks<16 else 512+32*(ks-16)
                    for m in range(4):
                        self.q.append((ks, ([f's_add_u32 s58, s57, {row*3072}'] if m==0 else [])+[f's_add_u32 m0, s56, {self.c.slot[ks]*12288+1024*m}'], f'buffer_load_dwordx4 v{reg+m}, s[{28 if m<2 else 32}:{31 if m<2 else 35}], s58 offen lds'))
            return
        if masked: k('s_cmp_eq_u32 s3, 0'); k('s_cselect_b64 exec, 0, -1')
        else: L=self.wn()
        for st in stages:
            for ks in (st,):
                reg=4 if ks<16 else 8
                row=(4*(ks&3)+128*(ks>>2)) if ks<16 else 512+32*(ks-16)
                k(f's_add_u32 s58, s57, {row*3072}'); k(f's_add_u32 m0, s56, {self.c.slot[st]*12288}')
                for m in range(4):
                    t=k(f'buffer_load_dwordx4 v{reg+m}, s[{28 if m<2 else 32}:{31 if m<2 else 35}], s58 offen lds')
                    self.wt.setdefault(st,[]).append(t)
                    if m<3: k('s_add_u32 m0, m0, 1024')
        if masked: k('s_mov_b64 exec, -1')
        elif then:
            k.wait(*then); self.end(L); L=self.w0(); k.wait(*then); self.end(L); k.forget(*then)
        else: self.end(L)
    def pf_setup(self):
        k=self.k; T=240
        k('s_lshr_b32 s52, s2, 3'); k('s_and_b32 s53, s52, 15'); k('s_lshl_b32 s53, s53, 1'); k('s_lshr_b32 s52, s52, 4')
        k(f's_mul_i32 s92, s52, {4*3072}'); k(f's_mul_i32 s93, s52, {32*3072}')
        k(f'v_min_u32 v{T}, 47, v1'); k(f'v_cmp_le_u32 vcc, 24, v{T}'); k(f'v_cndmask_b32 v{T+1}, 0, 1, vcc')
        k(f'v_mul_u32_u24 v{T+2}, 24, v{T+1}'); k(f'v_sub_u32 v{T+2}, v{T}, v{T+2}'); k(f'v_lshlrev_b32 v{T+2}, 7, v{T+2}')
        k(f'v_add_u32 v{T+1}, s53, v{T+1}')
        k(f'v_lshrrev_b32 v{T+3}, 3, v{T+1}'); k(f'v_and_b32 v{T+4}, 7, v{T+1}')
        k(f'v_lshl_add_u32 v{T+5}, v{T+4}, 4, v{T+3}'); k(f'v_mul_u32_u24 v{T+5}, 3072, v{T+5}'); k(f'v_add_u32 v{T+5}, v{T+5}, v{T+2}'); k(f'v_accvgpr_write_b32 a244, v{T+5}')
        k(f'v_lshrrev_b32 v{T+5}, 1, v{T+4}'); k(f'v_lshl_add_u32 v{T+5}, v{T+3}, 2, v{T+5}'); k(f'v_and_b32 v{T+4}, 1, v{T+4}')
        k(f'v_lshl_add_u32 v{T+5}, v{T+4}, 4, v{T+5}'); k(f'v_mul_u32_u24 v{T+5}, 3072, v{T+5}'); k(f'v_add_u32 v{T+5}, v{T+5}, v{T+2}'); k(f'v_accvgpr_write_b32 a245, v{T+5}')
    def pf(self, point):
        sts=self.c.pf.get(point,[])
        if not sts: return
        k=self.k; L=k.label('pf'); k('s_cmp_lg_u32 s3, 2'); k(f's_cbranch_scc1 {L}')
        for st in sts:
            ks=2*st; row=(4*(ks&3)+128*(ks>>2)) if ks<16 else 512+32*(ks-16)
            k(f'v_accvgpr_read_b32 v252, a{244 if ks<16 else 245}')
            k(f's_add_u32 s58, s{92 if ks<16 else 93}, {row*3072}')
            k('buffer_load_dword a246, v252, s[28:31], s58 offen'); k('buffer_load_dword a247, v252, s[32:35], s58 offen')
            if point=='chain' and st!=sts[-1]: k(f's_waitcnt vmcnt({2*self.c.pfd-2})')
        self.end(L)
    def q_pop(self):
        k=self.k; h=k.hook; k.hook=None
        ks,pre,op=self.q.pop(0)
        for x in pre: k(x)
        self.wt.setdefault(ks,[]).append(k(op)); k.hook=h; self.acc=0
    def q_flush(self, stages=None):
        while self.q and (stages is None or any(e[0] in stages for e in self.q)): self.q_pop()
    def pace(self, i):
        if i.kind in ('label','dir'): return
        self.acc+=4 if i.kind=='mfma' else (2 if i.op.startswith(('v_exp','v_rcp','v_cos','v_rsq')) else 1)
        if ('exec',0) in i.dst or ('exec',1) in i.dst: self.ezf=i.text.replace(' ','') not in ('s_mov_b64exec,-1','s_mov_b32exec_hi,-1')
        if self.q and self.acc>=self.c.rate and not self.nop and not self.ezf and i.kind in ('valu','ds','mfma') and not self.sccl: self.q_pop()
    acc=0; ezf=False; sccl=False
    def w_wait(self, stages, extra=()):
        if self.who=='wn': self.q_flush(stages)
        if self.who=='w0': return
        toks=[t for st in stages for t in self.wt[st]]+list(extra)
        if not toks: return
        if self.k.curcls=='wn': self.k.wait(*toks)
        else:
            L=self.wn(); self.k.wait(*toks); self.end(L)
    def w_tr_list(self, stages):
        out=[]
        for st in stages:
            sl=self.c.slot[st]
            for ks in (st,):
                base=(sl&3)*12288; r0=12+2*(sl>>2)
                for T in range(3):
                    for hh in range(2):
                        a=(ks*3+T)*4+2*hh
                        out.append(f'ds_read_b64_tr_b16 a[{a}:{a+1}], v{r0+1 if T==2 else r0} offset:{base+768*hh+(6144 if T==1 else 0)}')
        return out
    def w_tr(self, stages):
        t=None
        for s in self.w_tr_list(stages): t=self.k(s); self.trtok=t
        return t
    trtok=None
    def check_sched(self):
        c=self.c
        ip=dict(early=0,ld=0,role=0,b2=1,b2b=1,b2c=2,b3=2,b4=3,mid4=3,b5=4,g=5,b5b=5,b6=6,stb=6,b7=7,b9=8)
        tp=dict(b2=(1,2),b3=(2,3),b4=(3,5),b5=(4,6),g=(5,6),b7=(7,8),c0=(9,99),c0b=(10,99))
        I={}; Tr={}
        if c.nob2p: ip['b2c']=1
        for n,p in ip.items():
            for st in getattr(c,'iss_'+n)+(c.w4 if n=='b9' else []): assert st not in I; I[st]=p
        for n,p in tp.items():
            for st in getattr(c,'tr_'+n): assert st not in Tr; Tr[st]=p
        if not I: return
        assert sorted(I)==sorted(Tr)==list(range(20)), (I,Tr)
        for st in I:
            assert I[st]<Tr[st][0], ('tr before issue',st)
            if Tr[st][0]>=9: assert c.slot[st]>=4
            if st>=18: assert Tr[st][0]>=7
            if c.shlate and c.slot[st]>=8: assert I[st]>=2
            for o in I:
                if o!=st and c.slot[o]==c.slot[st] and (I[o],o)<(I[st],st): assert Tr[o][1]<=I[st], ('slot reuse',o,st)
    def early(self):
        k=self.k; c=self.c
        k(f's_add_u32 s60, s50, {WS_FLG}'); k('s_addc_u32 s61, s51, 0'); k('s_load_dword s14, s[60:61], 0')
        srd(k,16,50,self.wssize)
        self.w_setup()
        if c.sweep:
            L=self.w0()
            k('v_lshlrev_b32 v240, 7, v1'); k('s_mul_i32 s52, s2, 7680')
            k('s_mov_b32 s32, s38'); k('s_and_b32 s33, s39, 0xffff')
            k('buffer_load_dword a246, v240, s[28:31], s52 offen'); k('buffer_load_dword a246, v240, s[32:35], s52 offen')
            self.end(L)
        if c.pf: self.pf_setup(); self.pf('early')
        self.w_setup_tr()
        k('v_lshlrev_b32 v18, 4, v1')
        Lp=k.label('pc'); k('s_getpc_b64 s[52:53]'); k(f'{Lp}:'); k(f's_add_u32 s52, s52, {NAME}_tab-{Lp}'); k('s_addc_u32 s53, s53, 0'); srd(k,24,52,17408)
        k('s_lshl_b32 s53, s3, 12'); k(f's_add_u32 m0, s53, {L_TAB}'); self.tabt=[]
        for u in range(4): self.tabt.append(k(f'buffer_load_dwordx4 v18, s[24:27], s53 offen offset:{1024*u} lds'))
        k(f's_mov_b32 m0, {L_TAB+16384}'); k('s_mov_b32 s53, 16384')
        self.tabt.append(k(f'buffer_load_dwordx4 v18, s[24:27], s53 offen lds'))
    def role_ln_a(self):
        k=self.k
        X=20; X2=52
        k('s_mul_i32 s52, s3, 320')
        k(f's_mov_b32 s53, 655360'); k('v_mul_u32_u24 v24, s53, v3'); k('v_add_u32 v24, s52, v24')
        k('v_lshl_add_u32 v250, v2, 4, v24'); k('v_lshl_add_u32 v251, v2, 2, v24')
        k('s_and_b32 s66, s2, 7'); k('s_lshl_b32 s54, s13, 3'); k('s_add_u32 s66, s66, s54'); k('s_mul_i32 s54, s66, 1280')
        srd(k,20,4,S*D*2)
        for r in range(8):
            k(f'buffer_load_dwordx4 v[{X+4*r}:{X+4*r+3}], v250, s[20:23], s54 offen')
            k(f'buffer_load_dword v{X2+r}, v251, s[20:23], s54 offen offset:256')
            if r<7: k('s_add_u32 s54, s54, 81920')
    def role_ln(self):
        k=self.k
        X=20; X2=52; B=60; Fm=100; V=116; Fp=132; MU=140; BI=144; DD=152; T=232
        k('s_mov_b32 s62, 0x05040100'); k('s_mov_b32 s63, 0x07060302')
        k(f'v_lshlrev_b32 v{T+2}, 3, v3'); k(f'v_cvt_f32_u32 v{T+2}, v{T+2}')
        k('s_bfe_u32 s67, s2, 0x10003')
        k('s_lshl_b32 s52, s67, 3'); k(f'v_lshrrev_b32 v{T}, 1, v2'); k(f'v_add_u32 v{T}, s52, v{T}'); k(f'v_and_b32 v{T+1}, 1, v2')
        k('s_cmp_eq_u32 s67, 0'); k('s_cselect_b32 s52, 1, 99'); k('v_cmp_eq_u32 vcc, s52, v2'); k(f'v_cndmask_b32 v{T}, v{T}, 16, vcc'); k(f'v_cndmask_b32 v{T+1}, v{T+1}, 0, vcc')
        k(f'v_cvt_f32_u32 v{T}, v{T}'); k(f'v_cvt_f32_u32 v{T+1}, v{T+1}')
        k(f'v_mul_f32 v{T}, 0x3d000000, v{T}'); k(f'v_mul_f32 v{T+1}, 0x3e800000, v{T+1}')
        k(f'v_fma_f32 v{T+1}, v{T}, v{T+2}, v{T+1}')
        for jj in range(8): k(f'v_fmamk_f32 v{Fm+jj}, v{T}, {float(jj)}, v{T+1}')
        for jj in range(8): k(f'v_cos_f32 v{Fm+jj}, v{Fm+jj}')
        k('s_mul_i32 s52, s3, 320'); k(f's_mov_b32 s53, {2*163840}'); k(f'v_mul_u32_u24 v{T}, s53, v3'); k(f'v_add_u32 v{T}, s52, v{T}')
        k(f'v_lshl_add_u32 v250, v2, 4, v{T}'); k(f'v_lshl_add_u32 v251, v2, 2, v{T}')
        k('s_mul_i32 s64, s66, 2560'); k(f's_mul_i32 s52, s67, {8*163840}'); k('s_add_u32 s64, s64, s52')
        if WS_U: k(f's_add_u32 s64, s64, {WS_U}')
        k(f's_add_u32 s65, s64, 163840')
        k(f'v_mov_b32 v{T+3}, 0x3f803f80')
        for i in range(16): k(f'v_mov_b32 v{V+i}, 0')
        k('s_lshl_b32 s52, s3, 8')
        k(f'v_lshrrev_b32 v{T+4}, 3, v2'); k(f'v_lshlrev_b32 v{T+4}, 7, v{T+4}'); k(f'v_bfe_u32 v{T+5}, v2, 2, 1'); k(f'v_lshl_add_u32 v{T+4}, v{T+5}, 4, v{T+4}')
        k(f'v_lshl_add_u32 v{T+4}, v3, 5, v{T+4}'); k(f'v_add_u32 v{T+4}, s52, v{T+4}')
        k(f'v_and_b32 v{T+5}, 7, v2'); k(f'v_lshlrev_b32 v{T+5}, 2, v{T+5}'); k(f'v_lshl_add_u32 v{T+5}, v3, 5, v{T+5}')
        self.w_issue(self.c.iss_early, masked=True)
        self.stamp(1)
        for r in range(8):
            for d in range(5):
                x=X+4*r+d if d<4 else X2+r
                k(f'v_dot2c_f32_bf16 v{V+r}, v{x}, v{T+3}'); k(f'v_dot2c_f32_bf16 v{V+8+r}, v{x}, v{x}')
        self.stamp(2)
        self.pf('ld'); self.w_issue(self.c.iss_ld)
        for i in range(8): k(f'v_add_f32_dpp v{V+i}, v{V+i}, v{V+i} row_ror:8 row_mask:0xf bank_mask:0x3')
        for i in range(8): k(f'v_add_f32_dpp v{V+i}, v{V+8+i}, v{V+8+i} row_ror:8 row_mask:0xf bank_mask:0xc')
        for i in range(4): k(f'v_add_f32_dpp v{V+i}, v{V+i}, v{V+i} row_shl:4 row_mask:0xf bank_mask:0x5')
        for i in range(4): k(f'v_add_f32_dpp v{V+i}, v{V+4+i}, v{V+4+i} row_shr:4 row_mask:0xf bank_mask:0xa')
        for i in range(4): k(f'v_add_f32_dpp v{V+i}, v{V+i}, v{V+i} quad_perm:[1,0,3,2] row_mask:0xf bank_mask:0xf')
        for i in range(4): k(f'v_add_f32_dpp v{V+i}, v{V+i}, v{V+i} quad_perm:[2,3,0,1] row_mask:0xf bank_mask:0xf')
        t=k(f'ds_write_b128 v{T+4}, v[{V}:{V+3}]')
        def perms(js):
            for j in js:
                for i in range(4):
                    if j<8: a,b=X+8*i+4+(j>>1), X+8*i+(j>>1)
                    else: a,b=X2+2*i+1, X2+2*i
                    k(f'v_perm_b32 v{B+4*j+i}, v{a}, v{b}, s{62+(j&1)}')
        perms(range(0,3))
        k.wait(t); k('s_barrier')
        for w in range(4): k(f'ds_read2_b32 v[{V+4+2*w}:{V+5+2*w}], v{T+5} offset0:{64*w} offset1:{64*w+32}')
        perms(range(3,10))
        k(f'v_add_f32 v{V}, v{V+4}, v{V+6}'); k(f'v_add_f32 v{V+1}, v{V+5}, v{V+7}')
        k(f'v_add_f32 v{V+2}, v{V+8}, v{V+10}'); k(f'v_add_f32 v{V+3}, v{V+9}, v{V+11}')
        k(f'v_add_f32 v{V}, v{V}, v{V+2}'); k(f'v_add_f32 v{V+1}, v{V+1}, v{V+3}')
        k(f'v_mul_f32 v{V}, 0xbacccccd, v{V}'); k(f'v_mul_f32 v{V+1}, 0x3acccccd, v{V+1}')
        k(f'v_fma_f32 v{V+1}, -v{V}, v{V}, v{V+1}'); k(f'v_max_f32 v{V+1}, 0, v{V+1}'); k(f'v_add_f32 v{V+1}, 0x3727c5ac, v{V+1}')
        k(f'v_rsq_f32 v{V+1}, v{V+1}')
        for jj in range(8): k(f'v_mov_b32_dpp v{V+4+jj}, v{V} row_newbcast:{jj} row_mask:0xf bank_mask:0xf')
        for jj in range(8): k(f'v_mul_f32_dpp v{Fm+jj}, v{V+1}, v{Fm+jj} row_newbcast:{jj} row_mask:0xf bank_mask:0xf')
        for i in range(4): k(f'v_cvt_pk_bf16_f32 v{MU+i}, v{V+4+2*i}, v{V+5+2*i}')
        for i in range(4): k(f'v_cvt_pk_bf16_f32 v{Fp+i}, v{Fm+2*i}, v{Fm+2*i+1}')
        k(f'v_mfma_f32_16x16x32_bf16 v[{BI}:{BI+3}], v[{Fp}:{Fp+3}], v[{MU}:{MU+3}], 0')
        for j in range(10):
            d=DD+4*j
            k(f'v_mfma_f32_16x16x32_bf16 v[{d}:{d+3}], v[{Fp}:{Fp+3}], v[{B+4*j}:{B+4*j+3}], v[{BI}:{BI+3}]')
        for i in range(4):
            o=X+4*i; o2=X2+i
            for jp in range(4): k(f'v_cvt_pk_bf16_f32 v{o+jp}, v{DD+8*jp+i}, v{DD+8*jp+4+i}')
            k(f'v_cvt_pk_bf16_f32 v{o2}, v{DD+32+i}, v{DD+36+i}')
            self.drain.append(k(f'buffer_store_dwordx4 v[{o}:{o+3}], v250, s[16:19], s{64+(i>>1)} offen offset:{1280*(i&1)} sc1'))
            self.drain.append(k(f'buffer_store_dword v{o2}, v251, s[16:19], s{64+(i>>1)} offen offset:{1280*(i&1)+256} sc1'))
    def role_mod_a(self):
        k=self.k
        Wr=20; C=60; Sf=68; SP=80; A=88; P=96; Q=108; Rr=120; T=232
        k('s_sub_u32 s64, s2, 128'); k('s_and_b32 s65, s64, 1'); k('s_lshr_b32 s64, s64, 1')
        k('v_and_b32 v250, 7, v0'); k('v_lshrrev_b32 v251, 3, v0')
        k(f's_mov_b32 s52, {10*7680}'); k(f'v_lshlrev_b32 v{T}, 4, v250'); k(f'v_mad_u32_u24 v{T}, v251, s52, v{T}')
        k(f'v_mul_u32_u24 v{T+1}, 20, v251')
        k(f's_mul_i32 s53, s65, {320*7680}'); k('s_lshl_b32 s54, s64, 7'); k('s_add_u32 s53, s53, s54'); k('s_mul_i32 s54, s65, 640')
        srd(k,20,44,640*3840*2); srd(k,24,42,1280)
        k(f'buffer_load_dwordx4 v[{C}:{C+3}], v{T+1}, s[24:27], s54 offen'); k(f'buffer_load_dword v{C+4}, v{T+1}, s[24:27], s54 offen offset:16')
        for i in range(10):
            k(f'buffer_load_dwordx4 v[{Wr+4*i}:{Wr+4*i+3}], v{T}, s[20:23], s53 offen')
            if i<9: k('s_add_u32 s53, s53, 7680')
    def role_mod(self):
        k=self.k
        Wr=20; C=60; Sf=68; SP=80; A=88; P=96; Q=108; Rr=120; T=232
        k('s_mov_b32 s62, 0x05040100'); k('s_mov_b32 s63, 0x07060302')
        n=10
        for i in range(n):
            if i&1: k(f'v_and_b32 v{Sf+i}, 0xffff0000, v{C+(i>>1)}')
            else: k(f'v_lshlrev_b32 v{Sf+i}, 16, v{C+(i>>1)}')
        for i in range(n): k(f'v_mul_f32 v{P+i}, 0xbfb8aa3b, v{Sf+i}')
        for i in range(n): k(f'v_exp_f32 v{P+i}, v{P+i}')
        for i in range(n): k(f'v_add_f32 v{P+i}, 1.0, v{P+i}')
        for i in range(n): k(f'v_rcp_f32 v{Rr+i}, v{P+i}')
        for i in range(n): k(f'v_mul_f32 v{Q+i}, v{Sf+i}, v{Rr+i}')
        for i in range(n): k(f'v_fma_f32 v{P+i}, -v{Q+i}, v{P+i}, v{Sf+i}')
        for i in range(n): k(f'v_fma_f32 v{P+i}, v{P+i}, v{Rr+i}, v{Q+i}')
        for i in range(n):
            k(f'v_cmp_o_f32 vcc, v{P+i}, v{P+i}'); k(f'v_cndmask_b32 v{Sf+i}, v{Q+i}, v{P+i}, vcc')
        for i in range(5): k(f'v_cvt_pk_bf16_f32 v{SP+i}, v{Sf+2*i}, v{Sf+2*i+1}')
        for j in range(8): k(f'v_mov_b32 v{A+j}, 0')
        k('s_mul_i32 s66, s64, 26'); k('s_lshr_b32 s66, s66, 8')
        k('s_mul_i32 s52, s66, 10'); k('s_sub_u32 s52, s64, s52'); k('s_lshl_b32 s52, s52, 6')
        U=140
        k(f'v_add_u32 v{U}, s52, v1')
        k('s_mul_i32 s53, s66, 640'); k('s_add_u32 s54, s53, 768'); k('s_cmp_lt_u32 s66, 2'); k('s_cselect_b32 s53, s53, s54'); k('s_cmp_eq_u32 s66, 5'); k('s_cselect_b32 s53, 1280, s53')
        k(f'v_add_lshl_u32 v{U+3}, v{U}, s53, 2')
        k(f's_mul_i32 s67, s65, {MODP}'); k(f's_add_u32 s67, s67, {WS_MOD}')
        k(f'v_lshrrev_b32 v{U+1}, 4, v0'); k(f'v_lshlrev_b32 v{U+1}, 8, v{U+1}'); k(f'v_lshl_add_u32 v{U+1}, v250, 5, v{U+1}')
        k(f'v_lshlrev_b32 v{U+2}, 2, v1')
        self.w_issue(self.c.iss_early, masked=True)
        self.stamp(1)
        for i2 in range(5):
            for j in range(8): k(f'v_perm_b32 v{P+j}, v{Wr+8*i2+4+(j>>1)}, v{Wr+8*i2+(j>>1)}, s{62+(j&1)}')
            for j in range(8): k(f'v_dot2c_f32_bf16 v{A+j}, v{P+j}, v{SP+i2}')
        self.stamp(2)
        self.pf('ld'); self.w_issue(self.c.iss_ld)
        for j in range(8): k(f'v_add_f32_dpp v{A+j}, v{A+j}, v{A+j} row_ror:8 row_mask:0xf bank_mask:0xf')
        k(f'ds_write_b128 v{U+1}, v[{A}:{A+3}]'); t=k(f'ds_write_b128 v{U+1}, v[{A+4}:{A+7}] offset:16')
        k.wait(t); k('s_barrier')
        L=self.w0()
        for i in range(8): k(f'ds_read2st64_b32 v[{Wr+2*i}:{Wr+2*i+1}], v{U+2} offset0:{2*i} offset1:{2*i+1}')
        for i in range(8): k(f'v_add_f32 v{Wr+2*i}, v{Wr+2*i}, v{Wr+2*i+1}')
        for a,b in [(0,2),(4,6),(8,10),(12,14),(0,4),(8,12),(0,8)]: k(f'v_add_f32 v{Wr+a}, v{Wr+a}, v{Wr+b}')
        self.drain.append(k(f'buffer_store_dword v{Wr}, v{U+3}, s[16:19], s67 offen sc1'))
        self.end(L)
    def role_shuf_a(self):
        k=self.k; T=232
        L=self.wn()
        k('s_sub_u32 s74, s2, 128'); k('s_mul_i32 s74, s74, 3'); k('s_add_u32 s74, s74, s3'); k('s_sub_u32 s74, s74, 1')
        k('s_lshr_b32 s52, s74, 3'); k('s_mul_i32 s52, s52, 40960'); k('s_and_b32 s53, s74, 7'); k('s_mul_i32 s53, s53, 160'); k('s_add_u32 s52, s52, s53')
        k('s_mul_i32 s75, s3, 5120')
        if self.c.shlate: k(f's_add_u32 s75, s75, {L_RING+4*WST}')
        k('s_mov_b32 m0, s75')
        k(f's_mov_b32 s54, {(2**32+9)//10}')
        srd(k,24,40,F*D*2)
        toks=self.shtoks=[]
        for i in range(5):
            k(f'v_add_u32 v{T+2}, {64*i}, v1'); k(f'v_mul_hi_u32 v{T+3}, v{T+2}, s54'); k(f'v_mul_u32_u24 v{T+3}, {1280-160}, v{T+3}'); k(f'v_lshl_add_u32 v{T+3}, v{T+2}, 4, v{T+3}')
            toks.append(k(f'buffer_load_dwordx4 v{T+3}, s[24:27], s52 offen lds'))
            if i<4: k('s_add_u32 m0, m0, 1024')
        self.end(L)
    def role_shuf(self):
        k=self.k; toks=self.shtoks; T=232; O=216
        L=self.wn()
        k(f'v_lshrrev_b32 v{T}, 2, v2'); k(f'v_lshl_add_u32 v{T}, v3, 3, v{T}'); k(f'v_mul_u32_u24 v{T}, 160, v{T}'); k(f'v_add_u32 v{T}, s75, v{T}')
        k(f'v_and_b32 v{T+1}, 3, v2'); k(f'v_lshl_add_u32 v{T+2}, v{T+1}, 3, v{T}'); k(f'v_lshl_add_u32 v{T+1}, v{T+1}, 4, v{T}')
        k('s_and_b32 s52, s74, 7'); k('s_mul_i32 s52, s52, 48'); k('s_lshr_b32 s53, s74, 3'); k('s_add_u32 s52, s52, s53'); k('s_mul_i32 s52, s52, 5120'); k(f's_add_u32 s84, s52, {WS_WDS}')
        k('s_add_u32 s85, s84, 4096')
        k.wait(*toks)
        for mt in range(5):
            for hh in range(2):
                if mt<4: k(f'ds_read_b64_tr_b16 a[{O+4*mt+2*hh}:{O+4*mt+2*hh+1}], v{T+1} offset:{640*hh+64*(mt>>1)+8*(mt&1)}')
                else: t=k(f'ds_read_b64_tr_b16 a[{O+4*mt+2*hh}:{O+4*mt+2*hh+1}], v{T+2} offset:{640*hh+128}')
        if self.c.defer_sh: k.wait(t)
        else: self.drain+=self.shuf_store()
        self.end(L)
    def shuf_store(self):
        k=self.k; O=216
        return [k(f'buffer_store_dwordx4 a[{O+4*mt}:{O+4*mt+3}], v18, s[16:19], s{84+(mt>>2)} offen offset:{1024*(mt&3)} sc1') for mt in range(5)]
    def poll(self, ld, chk, sleep=0):
        k=self.k; Lp=k.label('p'); Lx=k.label('x')
        k('s_mov_b32 s52, 0'); k(f'{Lp}:')
        if sleep: k(f's_sleep {sleep}')
        k(ld); k('s_waitcnt vmcnt(0)')
        k('s_add_u32 s52, s52, 1'); k('s_cmp_gt_u32 s52, 0x40000'); k(f's_cbranch_scc1 {Lx}')
        for s in chk: k(s)
        k(f's_cbranch_vccnz {Lp}'); k(f'{Lx}:')
    def gpost(self, kind):
        k=self.k; Ls=k.label('s'); Le=k.label('e')
        k(f's_add_u32 s53, s68, {kind*4096}'); k('s_lshl_b32 s52, s13, 2'); k('s_add_u32 s52, s52, s53')
        k('v_mov_b32 v252, s14'); k('v_mov_b32 v253, 0'); k('s_mov_b64 exec, 1')
        k('s_cmp_eq_u32 s15, 0'); k(f's_cbranch_scc1 {Ls}')
        k('buffer_store_dword v252, v253, s[16:19], s52 offen'); k(f's_branch {Le}')
        k(f'{Ls}:'); k('buffer_wbl2 sc1'); k('s_waitcnt vmcnt(0)'); k('buffer_store_dword v252, v253, s[16:19], s52 offen sc1')
        k(f'{Le}:'); k('s_mov_b64 exec, -1')
    def gpoll(self, kind):
        k=self.k; Le=k.label('e')
        k(f's_add_u32 s53, s68, {kind*4096}'); k('v_lshlrev_b32 v253, 2, v2')
        self.poll('buffer_load_dword v252, v253, s[16:19], s53 offen sc1', ['v_cmp_ne_u32 vcc, s14, v252'])
        k('s_cmp_lg_u32 s15, 0'); k(f's_cbranch_scc1 {Le}')
        k('buffer_inv sc1'); k('s_waitcnt vmcnt(0)')
        k(f'{Le}:')
    def wpost(self, kind, wb):
        k=self.k; Ls=k.label('s'); Le=k.label('e')
        k(f's_add_u32 s52, s86, {kind*4096}'); k('s_mov_b64 exec, 1')
        k('s_cmp_eq_u32 s15, 0'); k(f's_cbranch_scc1 {Ls}')
        k('buffer_store_dword v252, v253, s[16:19], s52 offen'); k(f's_branch {Le}')
        k(f'{Ls}:')
        if wb: k('buffer_wbl2 sc1'); k('s_waitcnt vmcnt(0)')
        k('buffer_store_dword v252, v253, s[16:19], s52 offen sc1')
        k(f'{Le}:'); k('s_mov_b64 exec, -1')
    def apoll(self, kind):
        k=self.k; k(f's_add_u32 s87, s68, {kind*4096}'); k('buffer_load_dword v251, v14, s[16:19], s87 offen sc1')
    def acheck(self):
        k=self.k; Lo=k.label('ok')
        k('v_cmp_ne_u32 vcc, s14, v251'); k(f's_cbranch_vccz {Lo}')
        self.poll('buffer_load_dword v251, v14, s[16:19], s87 offen sc1', ['v_cmp_ne_u32 vcc, s14, v251'])
        k(f'{Lo}:')
    def build(self):
        k=self.k; c=self.c
        END=k.label('end'); LM=k.label('mod'); LS=k.label('shuf'); LN_=k.label('none'); LJ=k.label('join')
        self.drain=[]; self.check_sched()
        k('s_cmp_ge_u32 s2, 256'); k(f's_cbranch_scc1 {END}')
        k(f's_load_dwordx2 s[4:5], s[0:1], {KA["x"]}'); k(f's_load_dwordx16 s[36:51], s[0:1], {KA["wg"]}')
        if c.prof: k('v_mov_b32 v19, -1')
        if c.pace: k('s_memrealtime s[96:97]'); k('s_mov_b32 s95, 0')
        self.stamp(0)
        k('v_lshrrev_b32 v1, 6, v0'); k('v_readfirstlane_b32 s3, v1')
        k('v_and_b32 v1, 63, v0'); k('v_and_b32 v2, 15, v0'); k('v_lshrrev_b32 v3, 4, v1')
        k('s_and_b32 s12, s2, 7'); k('s_lshl_b32 s12, s12, 1'); k('s_bfe_u32 s13, s2, 0x10003'); k('s_add_u32 s12, s12, s13'); k('s_lshr_b32 s13, s2, 4')
        if c.codetouch:
            L=self.w0(); Lp=k.label('pc')
            k('s_getpc_b64 s[52:53]'); k(f'{Lp}:'); k(f's_sub_u32 s52, s52, {Lp}-{NAME}'); k('s_subb_u32 s53, s53, 0'); srd(k,24,52,f'{NAME}_tab-{NAME}+17408')
            k('s_bfe_u32 s54, s2, 0x30003'); k('s_lshl_b32 s54, s54, 13'); k('v_lshlrev_b32 v240, 7, v1')
            k('buffer_load_dword a246, v240, s[24:27], s54 offen')
            self.end(L)
        LA=k.label('a'); LB=k.label('b'); LE=k.label('e')
        k('s_cmp_ge_u32 s2, 128'); k(f's_cbranch_scc1 {LA}')
        self.role_ln_a(); k(f's_branch {LE}')
        k(f'{LA}:'); k('s_cmp_ge_u32 s2, 248'); k(f's_cbranch_scc1 {LB}')
        self.role_mod_a()
        k(f'{LB}:')
        self.role_shuf_a()
        k(f'{LE}:')
        self.early()
        if c.hops:
            back=k.label('back'); main=k.label('main')
            k('s_mov_b64 exec, 0')
            for w in range(4):
                k(f's_cmp_eq_u32 s3, {w}'); y=Ins('s_nop 0'); y.meta=('hopstart',w); k.ins.append(y)
            k(f'{back}:'); k('s_mov_b64 exec, -1')
            k(f's_branch {main}'); k('.p2align 12'); k(f'{main}:')
            k.hops=(main,back,4)
        k('s_cmp_ge_u32 s2, 128'); k(f's_cbranch_scc1 {LM}')
        self.role_ln(); k(f's_branch {LJ}')
        k(f'{LN_}:'); self.w_issue(c.iss_early); self.pf('ld'); self.w_issue(c.iss_ld); k(f's_branch {LS}')
        k(f'{LM}:'); k('s_cmp_ge_u32 s2, 248'); k(f's_cbranch_scc1 {LN_}')
        self.role_mod()
        k(f'{LS}:')
        self.role_shuf()
        k(f'{LJ}:')
        self.stamp(3)
        self.pf('role')
        k('s_mul_i32 s14, s14, 0x9E3779B1'); k('s_add_u32 s14, s14, 0x7F4A7C15')
        k('s_getreg_b32 s52, hwreg(HW_REG_XCC_ID, 0, 4)'); k('s_add_u32 s52, s52, 1'); k('s_xor_b32 s59, s14, s52')
        L=self.w0()
        k('s_lshl_b32 s52, s12, 7'); k('s_lshl_b32 s53, s13, 2'); k('s_add_u32 s52, s52, s53'); k(f's_add_u32 s52, s52, {WS_FLG+FL_XC}')
        k('v_mov_b32 v240, s59'); k('v_mov_b32 v241, 0'); k('s_mov_b64 exec, 1')
        self.drain.append(k('buffer_store_dword v240, v241, s[16:19], s52 offen sc1'))
        k('s_mov_b64 exec, -1')
        self.end(L)
        self.w_issue(c.iss_role, self.drain+self.tabt+[t for st in c.tr_b2 for t in self.wt[st]])
        k('s_barrier')
        L=self.w0()
        k('v_lshlrev_b32 v241, 10, v2'); k('v_mov_b32 v240, s14'); k('s_lshl_b32 s52, s2, 2'); k(f's_add_u32 s52, s52, {WS_FLG+FL_GF}')
        k('s_mov_b64 exec, 0xffff'); k('buffer_store_dword v240, v241, s[16:19], s52 offen sc1'); k('s_mov_b64 exec, -1')
        self.end(L)
        self.stamp(4)
        self.pf('b2')
        self.p2_pre()
        self.p2a()
        self.p2b()
        self.p3()
        self.p4()
        if c.pacewb: k('s_waitcnt vmcnt(0)'); k('buffer_wbl2 sc1'); k('s_waitcnt vmcnt(0)')
        if c.pace:
            Lq=k.label('pace'); k(f'{Lq}:'); k('s_memrealtime s[98:99]'); k('s_waitcnt lgkmcnt(0)'); k('s_sub_u32 s98, s98, s96'); k('s_sub_u32 s98, s98, s95'); k(f's_cmp_lt_i32 s98, {c.pace}'); k(f's_cbranch_scc1 {Lq}')
        if c.prof: k('s_waitcnt vmcnt(0)')
        self.stamp(31); self.stamp_flush()
        k(f'{END}:'); k('s_endpgm')
        return k
    A2=20; BF=52; ACC=100; CAV=124; FA=136; TW=152; G4=176; XV=212; T=232
    def p2_pre(self):
        k=self.k; c=self.c; T=self.T; A2=self.A2
        srd(k,20,4,S*D*2)
        k('s_lshl_b32 s68, s12, 8'); k(f's_add_u32 s68, s68, {WS_FLG+FL_GRP}')
        k('s_lshl_b32 s69, s13, 7'); k('s_add_u32 s52, s69, s12'); k('s_sub_u32 s53, s69, 1008'); k('s_cmp_lt_u32 s13, 8'); k('s_cselect_b32 s53, s69, s53')
        k('s_cmp_eq_u32 s12, 0'); k('s_cselect_b32 s69, s53, s52')
        k('s_lshl_b32 s70, s3, 5'); k('s_add_u32 s70, s70, s69'); k('s_sub_u32 s71, 2048, s70'); k('s_cmp_eq_u32 s70, 0'); k('s_cselect_b32 s71, 1024, s71')
        k('s_mul_i32 s72, s3, 2560'); k(f's_add_u32 s72, s72, {L_XR}')
        self.misc=[]; self.sht=[]
        L=self.wn()
        k('s_sub_u32 s52, s3, 1')
        k(f'v_lshlrev_b32 v{T}, 2, v1')
        for u in range(3):
            L3=k.label('xr')
            k('s_mul_i32 s53, s52, 3'); k(f's_add_u32 s53, s53, {u}')
            if u==2: k('s_cmp_eq_u32 s53, 8'); k(f's_cbranch_scc1 {L3}')
            k('s_lshr_b32 s54, s53, 1'); k('s_lshl_b32 s54, s54, 5'); k('s_add_u32 s54, s54, s69')
            k('s_sub_u32 s55, 2048, s54'); k('s_cmp_eq_u32 s54, 0'); k('s_cselect_b32 s55, 1024, s55')
            k('s_bitcmp1_b32 s53, 0'); k('s_cselect_b32 s54, s55, s54'); k('s_mul_i32 s54, s54, 1280')
            k('s_mul_i32 s53, s53, 1280'); k(f's_add_u32 m0, s53, {L_XR}'); k('s_nop 0')
            self.misc.append(k(f'buffer_load_dwordx4 v18, s[20:23], s54 offen lds'))
            self.misc.append(k(f'buffer_load_dword v{T}, s[20:23], s54 offen offset:1024 lds'))
            k(f'{L3}:')
        if c.pretouch:
            k('s_lshl_b32 s53, s12, 4'); k('s_add_u32 s53, s53, s13'); k('s_mul_i32 s53, s53, 10240'); k('s_mul_i32 s54, s52, 5120'); k('s_add_u32 s53, s53, s54')
            k(f's_add_u32 s53, s53, {WS_Z}'); k('s_cmp_eq_u32 s3, 3'); k('s_cselect_b32 s53, s68, s53')
            k(f'v_min_u32 v{T}, 39, v1'); k(f'v_lshlrev_b32 v{T}, 7, v{T}'); k(f'v_and_b32 v{T+1}, 15, v1'); k(f'v_lshlrev_b32 v{T+1}, 11, v{T+1}'); k(f'v_bfe_u32 v{T+2}, v1, 0, 1'); k(f'v_mul_u32_u24 v{T+2}, {2048-128}, v{T+2}'); k(f'v_sub_u32 v{T+1}, v{T+1}, v{T+2}')
            k('s_cselect_b64 vcc, -1, 0'); k(f'v_cndmask_b32 v{T}, v{T}, v{T+1}, vcc')
            k(f'buffer_load_dword a246, v{T}, s[16:19], s53 offen')
            if c.alias2:
                k('s_mul_i32 s53, s52, 27'); k(f'v_min_u32 v{T}, 26, v1'); k(f'v_add_u32 v{T}, s53, v{T}'); k(f'v_min_u32 v{T}, 79, v{T}')
                k(f's_mov_b32 s53, {(2**32+9)//10}'); k(f'v_mul_hi_u32 v{T+1}, v{T}, s53'); k(f'v_mul_u32_u24 v{T+2}, 10, v{T+1}'); k(f'v_sub_u32 v{T}, v{T}, v{T+2}')
                k(f'v_lshrrev_b32 v{T+2}, 1, v{T+1}'); k(f'v_lshl_add_u32 v{T+2}, v{T+2}, 5, s69'); k(f'v_sub_u32 v{T+3}, 2048, v{T+2}')
                k(f'v_cmp_eq_u32 vcc, 0, v{T+2}'); k(f'v_mov_b32 v{T+4}, 1024'); k(f'v_cndmask_b32 v{T+3}, v{T+3}, v{T+4}, vcc')
                k(f'v_and_b32 v{T+1}, 1, v{T+1}'); k(f'v_cmp_eq_u32 vcc, 1, v{T+1}'); k(f'v_cndmask_b32 v{T+2}, v{T+2}, v{T+3}, vcc')
                k(f'v_mul_u32_u24 v{T+2}, 1280, v{T+2}'); k(f'v_lshl_add_u32 v{T}, v{T}, 7, v{T+2}')
                srd(k,24,46,S*D*2)
                k(f'buffer_load_dword a247, v{T}, s[24:27], 0 offen')
        self.end(L)
        self.w_issue(c.iss_b2)
        self.tw2=self.w_tr(c.tr_b2)
        FA=self.FA; TW=self.TW; G4=self.G4
        for u in range(2): k(f'ds_read_b128 v[{FA+4*u}:{FA+4*u+3}], v18 offset:{L_TAB+1024*u}')
        for u in range(6): k(f'ds_read_b128 v[{TW+4*u}:{TW+4*u+3}], v18 offset:{L_TAB+2048+1024*u}')
        for u in range(9): self.tw2=k(f'ds_read_b128 v[{G4+4*u}:{G4+4*u+3}], v18 offset:{L_TAB+8192+1024*u}')
        k('s_cmp_ge_u32 s3, 2'); k('s_cselect_b32 s52, -1008, 0'); k('s_cmp_eq_u32 s12, 0'); k('s_cselect_b32 s52, s52, s12')
        k('s_lshl_b32 s53, s3, 9'); k('s_add_u32 s73, s52, s53')
        k('s_cmp_eq_u32 s12, 0'); k('s_cselect_b32 s54, 1, 0'); k('s_lshr_b32 s55, s3, 1')
        k('s_and_b32 s52, s54, s55'); k('s_andn2_b32 s53, s54, s55')
        k(f'v_and_b32 v{T+1}, 1, v2'); k(f'v_cvt_f32_u32 v{T+1}, v{T+1}'); k(f'v_mul_f32 v{T+1}, 0x3e800000, v{T+1}')
        k('s_cmp_eq_u32 s12, 0'); k('s_cselect_b32 s54, 0, 0xbe800000'); k(f'v_add_f32 v{T+3}, s54, v{T+1}')
        k(f'v_mov_b32 v{T+6}, 0x3e800000')
        k(f'v_lshlrev_b32 v{T+4}, 2, v3'); k(f'v_cvt_f32_u32 v{T+4}, v{T+4}')
        k('s_cmp_lg_u32 s52, 0'); k('s_cselect_b64 s[62:63], -1, 0'); k('s_cmp_lg_u32 s53, 0'); k('s_cselect_b64 s[64:65], -1, 0')
        k(f'v_cndmask_b32 v{T+1}, v{T+1}, v{T+6}, s[62:63]'); k(f'v_cndmask_b32 v{T+3}, v{T+3}, v{T+6}, s[64:65]')
        for mt in range(2):
            k(f'v_lshrrev_b32 v{T}, 1, v2'); k(f'v_lshl_add_u32 v{T}, v{T}, 5, s73')
            if mt: k(f'v_add_u32 v{T}, 256, v{T}')
            k(f'v_cvt_f32_u32 v{T}, v{T}'); k(f'v_mul_f32 v{T}, 0x3a000000, v{T}')
            k(f'v_cndmask_b32 v{T+2}, v{T}, 0, s[64:65]'); k(f'v_cndmask_b32 v{T}, v{T}, 0, s[62:63]')
            k(f'v_mov_b32 v{T+5}, v{T+1}')
            if mt==0:
                k('s_cmp_eq_u32 s73, 0'); k('s_cselect_b32 s54, 1, 99'); k('v_cmp_eq_u32 vcc, s54, v2')
                k(f'v_cndmask_b32 v{T}, v{T}, 0.5, vcc'); k(f'v_cndmask_b32 v{T+5}, v{T+5}, 0, vcc')
            k(f'v_fma_f32 v{T+5}, v{T}, v{T+4}, v{T+5}'); k(f'v_fma_f32 v{T+7}, v{T+2}, v{T+4}, v{T+3}')
            for ks in range(4):
                for u in range(4):
                    cc=16*ks+u
                    k(f'v_fmamk_f32 v{T+8+2*u}, v{T}, {float(cc)}, v{T+5}'); k(f'v_fmamk_f32 v{T+9+2*u}, v{T+2}, {float(cc)}, v{T+7}')
                for u in range(8): k(f'v_cos_f32 v{T+8+u}, v{T+8+u}')
                for u in range(4): k(f'v_cvt_pk_bf16_f32 v{A2+16*mt+4*ks+u}, v{T+8+2*u}, v{T+9+2*u}')
        k('s_cmp_eq_u32 s70, 0'); k('s_cselect_b64 vcc, -1, 0'); k('s_cselect_b32 s52, 0xffff, -1')
        for u in range(8):
            k(f'v_xor_b32 v{FA+8+u}, 0x80000000, v{FA+u}'); k(f'v_lshlrev_b32 v{T+4}, 16, v{FA+u}')
            k(f'v_cndmask_b32 v{FA+8+u}, v{FA+8+u}, v{T+4}, vcc'); k(f'v_and_b32 v{FA+u}, s52, v{FA+u}')
        k(f's_mov_b32 s54, {(2**32+4)//5}')
        for m in range(5):
            k(f'v_add_u32 v{T}, {64*m}, v1'); k(f'v_mul_hi_u32 v{T+1}, v{T}, s54'); k(f'v_mul_u32_u24 v{T+2}, 5, v{T+1}'); k(f'v_sub_u32 v{T+2}, v{T}, v{T+2}')
            k(f'v_mul_u32_u24 v{T+1}, 1280, v{T+1}'); k(f'v_lshl_add_u32 v{self.ACC+m}, v{T+2}, 4, v{T+1}')
        k(f's_mov_b32 s54, {(2**32+9)//10}')
        k(f'v_mul_hi_u32 v{T+1}, v1, s54'); k(f'v_mul_u32_u24 v{T+2}, 10, v{T+1}'); k(f'v_sub_u32 v{T+2}, v1, v{T+2}')
        k(f'v_lshrrev_b32 v{T+3}, 1, v{T+1}'); k(f'v_and_b32 v{T+1}, 1, v{T+1}'); k(f'v_mul_u32_u24 v{T+3}, 2560, v{T+3}')
        k(f'v_lshl_add_u32 v{T+3}, v{T+1}, 14, v{T+3}'); k(f'v_lshl_add_u32 v{self.ACC+5}, v{T+2}, 4, v{T+3}')
        for u in range(20): k(f'v_mov_b32 v{self.XV+u}, 0')
        self.w_issue(c.iss_b2b); self.pf('pre')
    def p2a(self):
        k=self.k; c=self.c; T=self.T; A2=self.A2; BF=self.BF; ACC=self.ACC; CAV=self.CAV; FA=self.FA; TW=self.TW; G4=self.G4; XV=self.XV
        self.stamp(5)
        L=self.w0()
        k('s_lshl_b32 s53, s12, 10'); k(f's_add_u32 s53, s53, {WS_FLG+FL_GF}')
        self.poll(f'buffer_load_dwordx4 v[{T}:{T+3}], v18, s[16:19], s53 offen sc1',
                  [f'v_xor_b32 v{T}, s14, v{T}', f'v_xor_b32 v{T+1}, s14, v{T+1}', f'v_xor_b32 v{T+2}, s14, v{T+2}', f'v_xor_b32 v{T+3}, s14, v{T+3}',
                   f'v_or3_b32 v{T}, v{T}, v{T+1}, v{T+2}', f'v_or_b32 v{T}, v{T}, v{T+3}', f'v_cmp_ne_u32 vcc, 0, v{T}'])
        self.stamp(6)
        ut=[]
        k('s_mul_i32 s53, s12, 163840'); k('s_mul_i32 s54, s13, 80'); k('s_add_u32 s53, s53, s54')
        if WS_U: k(f's_add_u32 s53, s53, {WS_U}')
        k(f's_mov_b32 m0, {L_US}')
        for u in range(0 if c.usplit else 10):
            ut.append(k(f'buffer_load_dwordx4 v{ACC+u%5}, s[16:19], s53 offen sc1 lds'))
            k('s_add_u32 m0, m0, 1024')
            if u==4: k(f's_add_u32 s53, s53, {64*1280}')
        k(f's_mov_b32 m0, {L_CA}'); k('s_mul_i32 s53, s13, 160'); k(f's_add_u32 s53, s53, {WS_MOD}')
        k('s_mov_b32 exec_hi, 0xff')
        ut.append(k(f'buffer_load_dwordx4 v{ACC+5}, s[16:19], s53 offen sc1 lds'))
        k('s_mov_b32 exec_hi, -1')
        L2=k.label('n'); k('s_cmp_lg_u32 s2, 0'); k(f's_cbranch_scc1 {L2}')
        k(f'v_mov_b32 v{T+2}, s14'); k(f'v_mov_b32 v{T+3}, 0'); k(f's_mov_b32 s53, {WS_FLG}'); k('s_mov_b64 exec, 1')
        k(f'buffer_store_dword v{T+2}, v{T+3}, s[16:19], s53 offen sc1'); k('s_mov_b64 exec, -1')
        k(f'{L2}:')
        self.end(L)
        self.w_wait(c.tr_b3); k.wait(*self.misc); k.wait(self.tw2)
        self.stamp(27)
        k('s_barrier')
        self.stamp(28)
        if c.usplit:
            k('s_mul_i32 s53, s12, 163840'); k('s_mul_i32 s54, s13, 80'); k('s_add_u32 s53, s53, s54'); k(f's_mul_i32 s54, s3, {32*1280}'); k('s_add_u32 s53, s53, s54')
            if WS_U: k(f's_add_u32 s53, s53, {WS_U}')
            k('s_mul_i32 s54, s3, 2560'); k(f's_add_u32 m0, s54, {L_US}')
            for u in range(3):
                if u==2: k('s_mov_b32 exec_hi, 0')
                ut.append(k(f'buffer_load_dwordx4 v{ACC+u}, s[16:19], s53 offen sc1 lds'))
                if u<2: k('s_add_u32 m0, m0, 1024')
            k('s_mov_b32 exec_hi, -1')
        k('s_lshl_b32 s53, s12, 7'); k(f's_add_u32 s53, s53, {WS_FLG+FL_XC}'); k(f'v_lshlrev_b32 v{T}, 2, v2')
        k(f'buffer_load_dword v253, v{T}, s[16:19], s53 offen sc1')
        L=self.wn(); self.modt=[]
        if c.defer_sh:
            L4=k.label('sh'); k('s_cmp_lt_u32 s2, 128'); k(f's_cbranch_scc1 {L4}'); self.sht=self.shuf_store(); k(f'{L4}:')
        k('s_sub_u32 s52, s3, 1'); k('s_mul_i32 s52, s52, 5')
        for u in range(6):
            L3=k.label('m')
            if u==5: k('s_cmp_lg_u32 s3, 3'); k(f's_cbranch_scc1 {L3}')
            k(f's_add_u32 s53, s52, {u}'); k('s_lshl_b32 s54, s53, 10'); k(f's_add_u32 m0, s54, {L_MOD}')
            k('s_lshr_b32 s55, s53, 3'); k('s_lshl_b32 s55, s55, 13'); k('s_add_u32 s54, s54, s55'); k(f's_add_u32 s54, s54, {WS_MOD+8192}')
            self.modt.append(k('buffer_load_dwordx4 v18, s[16:19], s54 offen sc1 lds'))
            k(f'{L3}:')
        self.end(L)
        self.pf('b3'); self.w_issue(c.iss_b3)
        tw=self.w_tr(c.tr_b3)
        k(f'v_lshlrev_b32 v{T+4}, 1, v2'); k(f'v_lshl_add_u32 v250, v3, 8, v{T+4}'); k(f'v_lshl_add_u32 v251, v3, 6, v{T+4}')
        k('v_add_u32 v250, s72, v250'); k('v_add_u32 v251, s72, v251')
        for ab in range(2):
            for jj in range(8): k(f'ds_read_u16_d16_hi v{XV+10*ab+jj}, v250 offset:{1280*ab+32*jj}')
            for j in range(2): tw=k(f'ds_read_u16_d16_hi v{XV+10*ab+8+j}, v251 offset:{1280*ab+1024+32*j}')
        k(f'v_lshrrev_b32 v{T+4}, 2, v2'); k(f'v_lshl_add_u32 v{T+4}, v3, 3, v{T+4}'); k(f'v_mul_u32_u24 v{T+4}, 80, v{T+4}')
        k(f'v_and_b32 v{T+5}, 3, v2'); k(f'v_lshl_add_u32 v248, v{T+5}, 3, v{T+4}')
        k('s_mul_i32 s52, s3, 2560'); k(f'v_mul_u32_u24 v249, 320, v3'); k('v_lshl_add_u32 v249, v2, 2, v249'); k('v_add_u32 v249, s52, v249')
        k('v_lshlrev_b32 v246, 2, v2'); k(f'v_add_u32 v246, {L_CA}, v246')
        if c.usplit: k.wait(*ut)
        else: L=self.w0(); k.wait(*ut); self.end(L)
        k.wait(tw); self.w_wait(c.tr_b4)
        self.stamp(29)
        k('s_barrier')
        self.stamp(7)
        for ks in range(4):
            for nt in range(3):
                for hh in range(2):
                    o=BF+12*ks+4*nt+2*hh
                    k(f'ds_read_b64_tr_b16 v[{o}:{o+1}], v248 offset:{L_US+2560*ks+320*hh+2*D2B[nt]}')
            if ks==0:
                for nt in range(3):
                    k(f'ds_read2_b32 v[{CAV+2*nt}:{CAV+2*nt+1}], v246 offset0:{D2B[nt]} offset1:{40+D2B[nt]}')
                    k(f'ds_read2_b32 v[{CAV+6+2*nt}:{CAV+7+2*nt}], v246 offset0:{80+D2B[nt]} offset1:{120+D2B[nt]}')
        for ks in range(4):
            for mt in range(2):
                for nt in range(3):
                    d=f'v[{ACC+12*mt+4*nt}:{ACC+12*mt+4*nt+3}]'
                    k(f'v_mfma_f32_16x16x32_bf16 {d}, v[{A2+16*mt+4*ks}:{A2+16*mt+4*ks+3}], v[{BF+12*ks+4*nt}:{BF+12*ks+4*nt+3}], {d if ks else 0}')
            if ks==0:
                for nt in range(3):
                    k(f'v_add_f32 v{CAV+2*nt}, v{CAV+2*nt}, v{CAV+2*nt+1}'); k(f'v_add_f32 v{CAV+6+2*nt}, v{CAV+6+2*nt}, v{CAV+7+2*nt}')
                for nt in range(3): k(f'v_cvt_pk_bf16_f32 v{CAV+2*nt}, v{CAV+2*nt}, v{CAV+6+2*nt}')
            if ks==1:
                for nt in range(3):
                    k(f'v_and_b32 v{CAV+6+2*nt}, 0xffff0000, v{CAV+2*nt}'); k(f'v_lshlrev_b32 v{CAV+2*nt}, 16, v{CAV+2*nt}')
                for nt in range(3): k(f'v_add_f32 v{CAV+6+2*nt}, 1.0, v{CAV+6+2*nt}'); k(f'v_mul_f32 v{CAV+2*nt}, 0x45000000, v{CAV+2*nt}')
            if ks==2:
                for nt in range(3): k(f'v_cvt_pk_bf16_f32 v{CAV+6+2*nt}, v{CAV+6+2*nt}, v{CAV+6+2*nt}')
                for nt in range(3): k(f'v_and_b32 v{CAV+6+2*nt}, 0xffff0000, v{CAV+6+2*nt}')
                self.pf('b4'); self.w_issue(c.iss_b4)
            if ks==3: self.w_tr(c.tr_b4)
        for mt in range(2):
            for nt in range(3):
                for j in range(4): k(f'v_mul_f32 v{ACC+12*mt+4*nt+j}, v{ACC+12*mt+4*nt+j}, v{CAV+6+2*nt}')
        Ld=k.label('d')
        k('s_cmp_lg_u32 s73, 0'); k(f's_cbranch_scc1 {Ld}'); k('s_mov_b64 exec, 0xffff')
        for nt in range(3): k(f'v_add_f32 v{ACC+4*nt}, v{ACC+4*nt}, v{CAV+2*nt}')
        k('s_mov_b64 exec, -1'); k(f'{Ld}:')
        for mt in range(2):
            for nt in range(3):
                for rr in range(2):
                    a=ACC+12*mt+4*nt+2*rr
                    k(f'v_cvt_pk_bf16_f32 v{a}, v{a}, v{a+1}')
                    t=k(f'ds_write_b32 v249, v{a} offset:{L_ZS+1280*mt+160*rr+4*D2B[nt]}')
        self.pf('mid4'); self.w_issue(c.iss_mid4)
        k(f'v_cmp_ne_u32 vcc, s59, v253'); k('s_cmp_eq_u64 vcc, 0'); k(f's_cselect_b32 s15, {0 if c.force_slow else 1}, 0')
        self.stamp(30)
        k.wait(t); self.w_wait(c.tr_b5); k.wait(*self.sht)
        k('s_barrier')
        self.stamp(8)
        L=self.w0(); zt=[]
        for u in range(10): k(f'ds_read_b128 v[{BF+4*u}:{BF+4*u+3}], v18 offset:{L_ZS+1024*u}')
        k('s_lshl_b32 s53, s12, 4'); k('s_add_u32 s53, s53, s13'); k('s_mul_i32 s53, s53, 10240'); k(f's_add_u32 s53, s53, {WS_Z}')
        for u in range(10):
            if u%4==0 and u: k('s_add_u32 s53, s53, 4096')
            zt.append(k(f'buffer_store_dwordx4 v[{BF+4*u}:{BF+4*u+3}], v18, s[16:19], s53 offen offset:{1024*(u%4)}'))
        self.end(L)
        self.pf('b5'); self.w_issue(c.iss_b5)
        self.tw5=self.w_tr(c.tr_b5)
        k(f's_mov_b32 s54, {(2**32+39)//40}')
        for m in range(5):
            k(f'v_add_u32 v{T}, {64*m}, v1'); k(f'v_mul_hi_u32 v{T+1}, v{T}, s54'); k(f'v_mul_u32_u24 v{T+2}, 40, v{T+1}'); k(f'v_sub_u32 v{T+2}, v{T}, v{T+2}')
            k(f'v_mul_u32_u24 v{T+1}, 10240, v{T+1}'); k(f'v_lshl_add_u32 v{ACC+m}, v{T+2}, 4, v{T+1}')
        L=self.w0(); gt=[]
        k.wait(*zt)
        self.stamp(9)
        self.gpost(0); self.gpoll(0)
        self.stamp(10)
        k('s_mul_i32 s53, s12, 163840'); k('s_mul_i32 s54, s13, 640'); k('s_add_u32 s53, s53, s54'); k(f's_add_u32 s53, s53, {WS_Z}')
        k(f's_mov_b32 m0, {L_US}')
        for u in range(10):
            gt.append(k(f'buffer_load_dwordx4 v{ACC+u%5}, s[16:19], s53 offen sc1 lds'))
            k('s_add_u32 m0, m0, 1024')
            if u==4: k(f's_add_u32 s53, s53, {8*10240}')
        if c.defer_sh:
            k('v_lshlrev_b32 v253, 10, v2'); k('v_mov_b32 v252, s14'); k('s_lshl_b32 s52, s2, 2'); k(f's_add_u32 s52, s52, {WS_FLG+FL_GF2}')
            k('s_mov_b64 exec, 0xffff'); k('buffer_store_dword v252, v253, s[16:19], s52 offen sc1'); k('s_mov_b64 exec, -1')
        self.end(L)
        k.wait(self.trtok)
        k.wait(*self.modt); self.w_wait(c.tr_g)
        k('s_barrier'); self.w_issue(c.iss_g)
        self.tw5=self.w_tr(c.tr_g)
        GA,SB,CB=self.GA,self.SB,self.CB; M0=20; M1=52
        for p,base in ((0,M0),(1,M1)):
            for u in range(8): k(f'ds_read_b128 v[{base+4*u}:{base+4*u+3}], v18 offset:{L_MOD+8192*p+1024*u}')
        src=lambda v,u: (8*v+u) if u<8 else (24+4*(v>>1)+2*(v&1)+u-8)
        for v in range(3):
            for u in range(10): k(f'v_add_f32 v{M0+src(v,u)}, v{M0+src(v,u)}, v{M1+src(v,u)}')
        for v,dst in enumerate((GA,SB,CB)):
            for u in range(5): k(f'v_cvt_pk_bf16_f32 v{M1+5*v+u}, v{M0+src(v,2*u)}, v{M0+src(v,2*u+1)}')
            for u in range(5): k(f'v_lshlrev_b32 v{dst+2*u}, 16, v{M1+5*v+u}'); k(f'v_and_b32 v{dst+2*u+1}, 0xffff0000, v{M1+5*v+u}')
        for u in range(10): k(f'v_add_f32 v{CB+u}, 1.0, v{CB+u}')
        for u in range(5): k(f'v_cvt_pk_bf16_f32 v{M1+u}, v{CB+2*u}, v{CB+2*u+1}')
        for u in range(5): k(f'v_lshlrev_b32 v{CB+2*u}, 16, v{M1+u}'); k(f'v_and_b32 v{CB+2*u+1}, 0xffff0000, v{M1+u}')
        k('s_mul_i32 s52, s3, 160'); k(f's_add_u32 s52, s52, {L_US}'); k(f'v_mul_u32_u24 v248, 2560, v3'); k('v_lshl_add_u32 v248, v2, 2, v248'); k('v_add_u32 v248, s52, v248')
        k('v_add_u32 v249, 1280, v248')
        self.w_issue(c.iss_b5b)
        L=self.w0(); k.wait(*gt); self.end(L)
        if self.tw5: k.wait(self.tw5)
        k('s_barrier')
        self.stamp(11)
    GA=106; SB=116; CB=126
    def p2b(self):
        k=self.k; c=self.c; T=self.T; FA=self.FA; TW=self.TW; G4=self.G4; XV=self.XV; GA,SB,CB=self.GA,self.SB,self.CB
        ZF=20; VV=32; PB=80; Y=32
        for mt in range(3):
            for h in range(2): k(f'ds_read2_b32 v[{ZF+4*mt+2*h}:{ZF+4*mt+2*h+1}], v{248+h} offset0:{D2B[mt]} offset1:{160+D2B[mt]}')
        self.w_issue(c.iss_b6)
        for ab in range(2):
            for mt in range(3):
                for o in range(2):
                    d=VV+24*ab+8*mt+4*o
                    k(f'v_mfma_f32_16x16x32_bf16 v[{d}:{d+3}], v[{ZF+4*mt}:{ZF+4*mt+3}], v[{FA+8*ab+4*o}:{FA+8*ab+4*o+3}], 0')
        YY=[ZF, 32]
        for ab in range(2):
            for mt in range(3):
                re=VV+24*ab+8*mt; im=re+4; cc=TW+8*mt; s=cc+4
                for j in range(4): k(f'v_mul_f32 v{T+j}, v{re+j}, v{cc+j}'); k(f'v_mul_f32 v{T+4+j}, v{im+j}, v{cc+j}')
                for j in range(4): k(f'v_fmac_f32 v{T+j}, v{im+j}, v{s+j}'); k(f'v_fma_f32 v{T+4+j}, -v{re+j}, v{s+j}, v{T+4+j}')
                for j in range(4): k(f'v_cvt_pk_bf16_f32 v{PB+12*ab+4*mt+j}, v{T+j}, v{T+4+j}')
            for mt in range(3):
                for et in range(3):
                    d=f'v[{YY[ab]+4*et}:{YY[ab]+4*et+3}]'
                    k(f'v_mfma_f32_16x16x32_bf16 {d}, v[{G4+12*et+4*mt}:{G4+12*et+4*mt+3}], v[{PB+12*ab+4*mt}:{PB+12*ab+4*mt+3}], {d if mt else 0}')
        self.stamp(12)
        if c.defer_sh:
            L=self.w0(); k('s_lshl_b32 s87, s12, 10'); k(f's_add_u32 s87, s87, {WS_FLG+FL_GF2+512}'); k('v_lshlrev_b32 v253, 3, v1')
            k('buffer_load_dwordx2 v[246:247], v253, s[16:19], s87 offen sc1'); self.end(L)
        self.w_issue(c.iss_stb)
        k('s_lshl_b32 s74, s3, 1')
        k(f'v_and_b32 v{T+8}, 7, v1'); k(f'v_xor_b32 v{T+8}, s74, v{T+8}'); k(f'v_lshlrev_b32 v{T+8}, 4, v{T+8}'); k(f'v_lshl_add_u32 v{T+8}, v1, 7, v{T+8}')
        k(f'v_xor_b32 v{T+9}, 16, v{T+8}')
        k(f'v_bfe_u32 v{T+10}, v1, 2, 3'); k(f'v_xor_b32 v{T+10}, s74, v{T+10}'); k(f'v_lshlrev_b32 v{T+10}, 4, v{T+10}')
        k(f'v_lshrrev_b32 v{T+11}, 2, v1'); k(f'v_lshl_add_u32 v{T+10}, v{T+11}, 7, v{T+10}'); k(f'v_and_b32 v{T+11}, 3, v1'); k(f'v_lshl_add_u32 v{T+10}, v{T+11}, 2, v{T+10}')
        k(f'v_xor_b32 v{T+11}, 16, v{T+10}')
        for ab in range(2):
            for u in range(10): k(f'v_fmac_f32 v{XV+10*ab+u}, v{GA+u}, v{YY[ab]+u}')
        for ab in range(2):
            k(f'v_add_f32 v{T+2*ab}, v{XV+10*ab}, v{XV+10*ab+1}'); k(f'v_mul_f32 v{T+2*ab+1}, v{XV+10*ab}, v{XV+10*ab}')
        for ab in range(2): k(f'v_fmac_f32 v{T+2*ab+1}, v{XV+10*ab+1}, v{XV+10*ab+1}')
        for u in range(2,10):
            for ab in range(2):
                k(f'v_add_f32 v{T+2*ab}, v{T+2*ab}, v{XV+10*ab+u}'); k(f'v_fmac_f32 v{T+2*ab+1}, v{XV+10*ab+u}, v{XV+10*ab+u}')
        k(f'v_permlane16_swap_b32 v{T}, v{T+1}'); k(f'v_permlane16_swap_b32 v{T+2}, v{T+3}')
        k(f'v_add_f32 v{T}, v{T}, v{T+1}'); k(f'v_add_f32 v{T+2}, v{T+2}, v{T+3}')
        k(f'v_permlane32_swap_b32 v{T}, v{T+2}'); k(f'v_add_f32 v{T}, v{T}, v{T+2}')
        for sh in (8,4,2,1): k(f'v_add_f32_dpp v{T}, v{T}, v{T} row_ror:{sh} row_mask:0xf bank_mask:0xf')
        k(f'v_mul_f32 v{T}, 0x3acccccd, v{T}')
        for u in range(4): k(f'v_readlane_b32 s{52+u}, v{T}, {16*u}')
        for ab in range(2): k(f'v_mov_b32 v{T+2+ab}, s{53+2*ab}'); k(f'v_mov_b32 v{T+4+ab}, s{52+2*ab}')
        for ab in range(2): k(f'v_fma_f32 v{T+2+ab}, -v{T+4+ab}, v{T+4+ab}, v{T+2+ab}')
        for ab in range(2): k(f'v_max_f32 v{T+2+ab}, 0, v{T+2+ab}')
        for ab in range(2): k(f'v_add_f32 v{T+2+ab}, 0x3727c5ac, v{T+2+ab}')
        for ab in range(2): k(f'v_rsq_f32 v{T+2+ab}, v{T+2+ab}')
        for ab in range(2): k(f'v_mul_f32 v{T+4+ab}, -v{T+4+ab}, v{T+2+ab}')
        H=48
        for ab in range(2):
            for u in range(10): k(f'v_fma_f32 v{H+12*ab+u}, v{XV+10*ab+u}, v{T+2+ab}, v{T+4+ab}')
            for u in range(10): k(f'v_fma_f32 v{H+12*ab+u}, v{H+12*ab+u}, v{CB+u}, v{SB+u}')
            for u in range(5): k(f'v_cvt_pk_bf16_f32 v{PB+8*ab+u}, v{H+12*ab+2*u}, v{H+12*ab+2*u+1}')
            k(f'ds_write_b128 v{T+8+ab}, v[{PB+8*ab}:{PB+8*ab+3}] offset:{L_ZS}')
            t=k(f'ds_write_b32 v{T+10+ab}, v{PB+8*ab+4} offset:{L_ZS+8192}')
        k('s_lshr_b32 s53, s13, 1'); k('s_lshl_b32 s54, s12, 3'); k('s_add_u32 s53, s53, s54'); k('s_mul_i32 s53, s53, 20480')
        k('s_and_b32 s54, s13, 1'); k('s_lshl_b32 s54, s54, 7'); k('s_add_u32 s53, s53, s54'); k(f's_add_u32 s53, s53, {self.H2}')
        k(f'v_lshrrev_b32 v{T}, 3, v1'); k(f'v_xor_b32 v{T+1}, v{T}, v1'); k(f'v_and_b32 v{T+1}, 7, v{T+1}'); k(f'v_lshlrev_b32 v{T+1}, 4, v{T+1}')
        k(f'v_lshl_add_u32 v{T+1}, v{T}, 8, v{T+1}')
        k.wait(t); self.w_wait(c.tr_b7)
        k('s_barrier')
        self.stamp(13)
        L=self.w0(); ht=[]
        R=136
        for u in range(10): k(f'ds_read_b128 v[{R+4*u}:{R+4*u+3}], v18 offset:{L_ZS+1024*u}')
        for u in range(10):
            if u%2==0 and u: k('s_add_u32 s53, s53, 4096')
            ht.append(k(f'buffer_store_dwordx4 v[{R+4*u}:{R+4*u+3}], v{T+1}, s[16:19], s53 offen offset:{2048*(u%2)}'))
        self.end(L)
        self.w_issue(c.iss_b7)
        k(f'v_add_u32 v250, {L_X1-L_XR}, v250'); k(f'v_add_u32 v251, {L_X1-L_XR}, v251'); k(f's_add_u32 s72, s72, {L_X1-L_XR}')
        for ab in range(2):
            for u in range(5): k(f'v_cvt_pk_bf16_f32 v{20+8*ab+u}, v{XV+10*ab+2*u}, v{XV+10*ab+2*u+1}')
            for u in range(10):
                op='ds_write_b16_d16_hi' if u&1 else 'ds_write_b16'
                if u<8: t=k(f'{op} v250, v{20+8*ab+(u>>1)} offset:{1280*ab+32*u}')
                else: t=k(f'{op} v251, v{20+8*ab+(u>>1)} offset:{1280*ab+1024+32*(u-8)}')
        k(f'v_add_u32 v{T+2}, s72, v18'); k(f'v_lshlrev_b32 v107, 2, v1'); k(f'v_add_u32 v{T+3}, s72, v107')
        k.wait(t)
        X1R=96
        for ab in range(2):
            k(f'ds_read_b128 v[{X1R+4*ab}:{X1R+4*ab+3}], v{T+2} offset:{1280*ab}'); tx=k(f'ds_read_b32 v{X1R+8+ab}, v{T+3} offset:{1280*ab+1024}')
        L=self.w0(); k.wait(*ht); self.stamp(14); self.gpost(1); self.end(L)
        tw=self.w_tr(c.tr_b7)
        self.p3_setup()
        L=self.w0()
        if c.defer_sh:
            Lo=k.label('ok'); chk=['v_xor_b32 v246, s14, v246', 'v_xor_b32 v247, s14, v247', 'v_or_b32 v246, v246, v247', 'v_cmp_ne_u32 vcc, 0, v246']
            for x in chk: k(x)
            k(f's_cbranch_vccz {Lo}'); k('v_lshlrev_b32 v253, 3, v1')
            self.poll('buffer_load_dwordx2 v[246:247], v253, s[16:19], s87 offen sc1', chk)
            k(f'{Lo}:')
        self.gpoll(1); self.end(L)
        k.wait(tx)
        if tw: k.wait(tw)
        k('s_barrier')
        self.stamp(15)
    HB=24; AC=56; EP=104; WDV=116
    def p3_setup(self, part=None):
        k=self.k; T=20
        if part!=0:
            k(f'v_and_b32 v{T}, 1, v3'); k(f'v_lshrrev_b32 v{T+1}, 1, v3')
            k(f'v_mul_u32_u24 v248, 49152, v{T}'); k(f'v_lshl_add_u32 v248, v{T+1}, 8, v248'); k('v_lshl_add_u32 v248, v2, 4, v248')
            k(f'v_mul_u32_u24 v249, 49152, v{T+1}'); k(f'v_lshl_add_u32 v249, v{T}, 3, v249'); k('v_lshl_add_u32 v249, v2, 4, v249')
            k(f'v_mov_b32 v250, 0x{f32(K1c):08x}'); k(f'v_mov_b32 v254, 0x{f32(K2c):08x}'); k(f'v_add_u32 v255, {L_H[1]}, v18')
        if part!=1:
            k('s_mul_i32 s75, s13, 3072'); k('s_mul_i32 s52, s3, 768'); k('s_add_u32 s75, s75, s52')
            k(f's_mul_i32 s66, s12, {8*49152}'); k('s_mul_i32 s67, s12, 163840')
            srd(k,20,46,S*D*2)
            k('s_mul_i32 s76, s12, 163840'); k('s_mul_i32 s77, s3, 10240'); k('s_add_u32 s76, s76, s77'); k(f's_add_u32 s76, s76, {self.H2}')
            k('s_lshl_b32 s78, s12, 7'); k('s_lshl_b32 s52, s13, 3'); k('s_add_u32 s78, s78, s52'); k('s_add_u32 s78, s78, s74'); k('s_mul_i32 s78, s78, 1280'); k(f's_add_u32 s78, s78, {self.X1}')
            k('s_and_b32 s79, s13, 7'); k('s_mul_i32 s80, s79, 48'); k('s_mul_i32 s52, s3, 12'); k('s_add_u32 s80, s80, s52'); k('s_mul_i32 s80, s80, 5120'); k(f's_add_u32 s88, s80, {WS_WDS}')
    def gfl(self,c): return '' if (c==0 and self.a3()) else self.c.gfl[c]
    def zo(self): return self.c.zout and not self.c.noalias
    def a3(self): return not self.c.zout and self.c.galias and self.c.alias3 and self.c.alias2 and not self.c.noalias
    def w4_setup(self):
        k=self.k; T=232
        k('s_cmp_lt_u32 s3, 2'); k('s_cselect_b32 s28, s36, s38'); k('s_cselect_b32 s29, s37, s39'); k('s_and_b32 s29, s29, 0xffff')
        k(f's_mov_b32 s53, {(2**32+11)//12}'); k('s_and_b32 s52, s3, 1'); k('s_mul_i32 s52, s52, 192'); k('s_mul_i32 s56, s3, 3072'); k(f's_add_u32 s56, s56, {L_RING}')
        for m in range(3):
            k(f'v_add_u32 v{T}, s52, v1')
            if m: k(f'v_add_u32 v{T}, {64*m}, v{T}')
            k(f'v_mul_hi_u32 v{T+1}, v{T}, s53'); k(f'v_mul_u32_u24 v{T+2}, 12, v{T+1}'); k(f'v_sub_u32 v{T+2}, v{T}, v{T+2}')
            k(f'v_lshrrev_b32 v{T+3}, 3, v{T+1}'); k(f'v_bfe_u32 v{T+4}, v{T+1}, 1, 2'); k(f'v_lshl_add_u32 v{T+3}, v{T+3}, 2, v{T+4}'); k(f'v_and_b32 v{T+4}, 1, v{T+1}')
            k(f'v_lshl_add_u32 v{T+3}, v{T+4}, 4, v{T+3}'); k(f'v_mul_u32_u24 v{T+3}, 3072, v{T+3}'); k(f'v_lshl_add_u32 v{4+m}, v{T+2}, 4, v{T+3}')
    def w4_items(self):
        k=self.k; out=[]
        for st in self.c.w4:
            for ks in (st,):
                assert ks>=16
                for m in range(3):
                    pre=[f's_add_u32 m0, s56, {self.c.slot[st]*12288+1024*m}']
                    if m==0: pre.insert(0,f's_add_u32 s58, s57, {(512+32*(ks-16))*3072}')
                    out.append((pre, lambda m=m,st=st: self.wt.setdefault(st,[]).append(k(f'buffer_load_dwordx4 v{4+m}, s[28:31], s58 offen lds'))))
        return out
    def gf2_check(self): pass
    def gf2_issue(self): pass
    def gbase(self, cidx):
        if not self.c.galias: return ('s66', WS_G+2*cidx*49152)
        if self.zo(): return ('s67', self.H2+(0 if self.c.gfl[2] else 98304*(cidx-2))) if self.c.gfl[cidx]=='' else ('s66', WS_G+2*cidx*49152)
        if self.c.alias2 and not self.c.noalias and self.c.alias3 and cidx!=1: return ('s67', {0:WS_Z,2:self.H2,3:self.H2+98304}[cidx])
        if self.c.alias2 and not self.c.noalias and cidx>=2: return ('s67', self.H2 if cidx==2 else WS_Z)
        return ('s66', WS_G+2*cidx*49152)
    def h2_dma(self, cidx, toks):
        k=self.k; out=[]
        def first(): k(f's_add_u32 s81, s76, {cidx*40960}'); k(f's_add_u32 m0, s77, {L_H[cidx&1]}')
        out.append(first)
        for u in range(10):
            if u%4==0 and u: out.append(lambda: (k('s_add_u32 s81, s81, 4096'), k('s_add_u32 m0, m0, 4096')))
            out.append(lambda u=u: toks.append(k(f'buffer_load_dwordx4 v18, s[16:19], s81 offen offset:{1024*(u%4)} sc1 lds')))
        return out
    def wd_dst(self,u):
        return f'v[{self.WDV+4*u}:{self.WDV+4*u+3}]' if u<self.NL0 else f'a[{4*(u-self.NL0)}:{4*(u-self.NL0)+3}]'
    NL0=33; L_WD=81920
    @property
    def NL1(self): return self.c.nl1
    def wd_loads(self, us):
        k=self.k; out=[]; prev=None
        for u in us:
            pre=[]
            if u//4!=prev: pre.append(f's_add_u32 s80, s88, {4096*(u//4)}')
            if self.NL0<=u<self.NL1:
                pre.insert(0,f's_add_u32 m0, s85, {(u-self.NL0-(u%4))*1024}')
                out.append((pre, lambda u=u: self.wdl.append(k(f'buffer_load_dwordx4 v18, s[16:19], s80 offen offset:{1024*(u%4)} sc1 lds'))))
            else: out.append((pre, f'buffer_load_dwordx4 {self.wd_dst(u)}, v18, s[16:19], s80 offen offset:{1024*(u%4)} sc1'))
            prev=u//4
        return out
    def h2_dma2(self, cidx, toks):
        k=self.k; out=[]
        for u in range(10):
            pre=[]
            if u%4==0: pre=[f's_add_u32 m0, s77, {L_H[cidx&1]+4096*(u//4)}', f's_add_u32 s81, s76, {cidx*40960+4096*(u//4)}']
            out.append((pre, lambda u=u: toks.append(k(f'buffer_load_dwordx4 v18, s[16:19], s81 offen offset:{1024*(u%4)} sc1 lds'))))
        return out
    def epi(self, cidx):
        A=self.AC+24*(cidx&1); EP=self.EP; L=[]; k=self.k; fl=self.gfl(cidx) or self.c.gnt
        acc=lambda nt,T,j: A+12*nt+4*T+j
        for j in range(4): L.append(f'v_permlane32_swap_b32 v{acc(0,2,j)}, v{acc(1,2,j)}')
        groups=[[(acc(0,0,j),acc(0,1,j)) for j in range(4)],[(acc(1,0,j),acc(1,1,j)) for j in range(4)],[(acc(0,2,j),acc(1,2,j)) for j in range(4)]]
        for gi,gr in enumerate(groups):
            t=EP
            if self.c.pk or (self.c.pk3 and cidx==3):
                g0,u0=gr[0]; P=lambda r,j: f'v[{r+2*j}:{r+2*j+1}]'
                for j in range(2): L.append(f'v_pk_mul_f32 {P(t,j)}, {P(g0,j)}, {P(g0,j)}')
                for j in range(2): L.append(f'v_pk_fma_f32 {P(t,j)}, {P(t,j)}, v[254:255], v[250:251] op_sel_hi:[1,0,0]')
                for j in range(2): L.append(f'v_pk_mul_f32 {P(t,j)}, {P(t,j)}, {P(g0,j)}')
                for j in range(4): L.append(f'v_exp_f32 v{t+j}, v{t+j}')
                for j in range(2): L.append(f'v_pk_mul_f32 {P(g0,j)}, {P(g0,j)}, {P(u0,j)}')
                for j in range(2): L.append(f'v_pk_add_f32 {P(t,j)}, {P(t,j)}, 1.0 op_sel_hi:[1,0]')
                for j in range(4): L.append(f'v_rcp_f32 v{t+j}, v{t+j}')
                for j in range(2): L.append(f'v_pk_mul_f32 {P(g0,j)}, {P(g0,j)}, {P(t,j)}')
            else:
                for j,(g,u) in enumerate(gr): L.append(f'v_mul_f32 v{t+j}, v{g}, v{g}')
                for j,(g,u) in enumerate(gr): L.append(f'v_fma_f32 v{t+j}, v{t+j}, v254, v250')
                for j,(g,u) in enumerate(gr): L.append(f'v_mul_f32 v{t+j}, v{t+j}, v{g}')
                for j,(g,u) in enumerate(gr): L.append(f'v_exp_f32 v{t+j}, v{t+j}')
                for j,(g,u) in enumerate(gr): L.append(f'v_mul_f32 v{g}, v{g}, v{u}')
                for j,(g,u) in enumerate(gr): L.append(f'v_add_f32 v{t+j}, 1.0, v{t+j}')
                for j,(g,u) in enumerate(gr): L.append(f'v_rcp_f32 v{t+j}, v{t+j}')
                for j,(g,u) in enumerate(gr): L.append(f'v_mul_f32 v{g}, v{g}, v{t+j}')
            o=EP+4+2*gi
            L.append(f'v_cvt_pk_bf16_f32 v{o}, v{gr[0][0]}, v{gr[1][0]}'); L.append(f'v_cvt_pk_bf16_f32 v{o+1}, v{gr[2][0]}, v{gr[3][0]}')
            if gi==1:
                L.append(f's_add_u32 s82, s75, {self.gbase(cidx)[0]}'); L.append(f's_add_u32 s82, s82, {self.gbase(cidx)[1]}')
                L.append(f'v_permlane16_swap_b32 v{EP+4}, v{EP+6}'); L.append(f'v_permlane16_swap_b32 v{EP+5}, v{EP+7}')
                L.append(lambda: self.gst[cidx].append(k(f'buffer_store_dwordx4 v[{EP+4}:{EP+7}], v248, s[16:19], s82 offen {fl}')))
        L.append(lambda: self.gst[cidx].append(k(f'buffer_store_dwordx2 v[{EP+8}:{EP+9}], v249, s[16:19], s82 offen offset:512 {fl}')))
        return L
    def cost(self,x): return 2 if isinstance(x,str) and x.startswith(('v_exp','v_rcp','ds_read_b128')) else (self.c.pkcost if isinstance(x,str) and x.startswith('v_pk') else 1)
    def do(self,x): return None if isinstance(x,int) else (x() if callable(x) else self.k(x))
    def fill(self, side, slots, now=0):
        while side and slots>=self.cost(side[0]) and now>=self.until:
            x=side.pop(0)
            if isinstance(x,int): self.until=now+x; continue
            slots-=self.cost(x); self.do(x)
        return slots
    until=0
    def vm_step(self, vm, slots, now, gap):
        if not vm or slots<=0: return slots
        e=vm[0]
        if len(e)>2 and now<e[2]-len(e[0]): return slots
        if e[0]:
            self.do(e[0].pop(0)); return slots-1
        if now-self.lastvm<gap or (len(e)>2 and now<e[2]): return slots
        self.do(e[1]); vm.pop(0); self.lastvm=now
        return slots-1
    GFa=108
    def gdst(self,s,kl):
        o=self.GFa+((s%3)*12+kl)*4; return f'a[{o}:{o+3}]'
    def g_loads(self,s):
        out=[]
        for kl in range(12):
            pre=[f's_add_u32 s{60+s}, s{60+s}, 4096'] if kl%4==0 and kl else []
            out.append((pre, f'buffer_load_dwordx4 {self.gdst(s,kl)}, v18, s[16:19], s{60+s} offen offset:{1024*(kl%4)} sc1'))
        return out
    def p3(self):
        k=self.k; c=self.c; self.gst={i:[] for i in range(4)}; self.wdl=[]
        ht={i:[] for i in range(4)}
        if c.c0split:
            k('s_lshr_b32 s52, s3, 1'); k('s_mul_i32 s52, s52, 20480'); k('s_and_b32 s53, s3, 1'); k('s_mul_i32 s53, s53, 5120'); k('s_add_u32 s52, s52, s53')
            k('s_sub_u32 s81, s76, s77'); k('s_add_u32 s81, s81, s52'); k('s_mov_b32 m0, s52')
            hta=[]
            for h in range(2):
                for u in range(5):
                    if u==4: k('s_add_u32 s81, s81, 4096'); k('s_add_u32 m0, m0, 4096')
                    t=k(f'buffer_load_dwordx4 v18, s[16:19], s81 offen offset:{1024*(u%4)} sc1 lds'); (ht[0] if h==0 else hta).append(t)
                if h==0: k(f's_add_u32 s81, s81, {10240-4096}'); k(f's_add_u32 m0, m0, {10240-4096}')
        else:
          for pre,op in self.h2_dma2(0,ht[0]):
            for x in pre: k(x)
            op()
        X1R=96
        for ab in range(2):
            if c.alias2:
                k(f's_mul_i32 s52, s{70+ab}, 1280')
                self.gst[0].append(k(f'buffer_store_dwordx4 v[{X1R+4*ab}:{X1R+4*ab+3}], v18, s[20:23], s52 offen {c.x1fl}'))
                self.gst[0].append(k(f'buffer_store_dword v{X1R+8+ab}, v107, s[20:23], s52 offen offset:1024 {c.x1fl}'))
            if c.noalias or not c.alias2:
                self.gst[0].append(k(f'buffer_store_dwordx4 v[{X1R+4*ab}:{X1R+4*ab+3}], v18, s[16:19], s78 offen offset:{1280*ab} {c.x1fl}'))
                self.gst[0].append(k(f'buffer_store_dword v{X1R+8+ab}, v107, s[16:19], s78 offen offset:{1280*ab+1024} {c.x1fl}'))
        if c.pretouch and not (c.alias2 and c.galias):
            c0=min(i for i in range(4) if c.gfl[i]=='' ); nl=12*(4-c0)
            k(f's_mov_b32 s52, {(2**32+5)//6}'); k(f'v_min_u32 v20, {nl-1}, v1'); k('v_mul_hi_u32 v21, v20, s52')
            k(f'v_mul_u32_u24 v21, {49152-768}, v21'); k('v_lshl_add_u32 v21, v20, 7, v21'); k('s_add_u32 s52, s75, s66'); k(f's_add_u32 s52, s52, {WS_G+2*c0*49152}')
            k('buffer_load_dword a246, v21, s[16:19], s52 offen')
        self.w_issue(c.iss_b9)
        k('v_lshrrev_b32 v20, 2, v1'); k('v_min_u32 v20, 9, v20'); k('s_mul_i32 s53, s79, 320'); k('v_lshl_add_u32 v20, v20, 5, s53')
        for p in range(2):
            k(f's_mov_b32 s52, {WS_MOD+5120+MODP*p}')
            for h in range(2): k(f'buffer_load_dwordx4 v[{80+8*p+4*h}:{83+8*p+4*h}], v20, s[16:19], s52 offen offset:{16*h} sc1')
        if c.otouch=='c0':
            k('s_mul_i32 s52, s70, 1280'); k('s_mul_i32 s53, s71, 1280'); k('s_sub_u32 s53, s53, 1280')
            k('v_min_u32 v21, 19, v1'); k('v_cmp_gt_u32 vcc, 10, v21'); k('v_mov_b32 v22, s53'); k('v_mov_b32 v23, s52'); k('v_cndmask_b32 v22, v22, v23, vcc')
            k('v_lshl_add_u32 v21, v21, 7, v22'); k('buffer_load_dword a246, v21, s[20:23], 0 offen sc1')
        n0=len(k.ins); self.p3_setup(part=1); self.p4_setup()
        rec=[x.text for x in k.ins[n0:]]; del k.ins[n0:]
        p4s=[]; i=0
        touch=lambda t: any(f'v{r},' in t+',' for r in range(12,18))
        while i<len(rec):
            if rec[i].startswith('s_cmp'): p4s.append(lambda a=rec[i],b=rec[i+1]: (k(a),k(b))); i+=2
            else: p4s.append(rec[i]); i+=1
        cut=min(j for j,x in enumerate(p4s) if isinstance(x,str) and touch(x))
        p4a,p4b=p4s[:cut],p4s[cut:]
        gbc=[f'v_add_f32 v{80+u}, v{80+u}, v{88+u}' for u in range(8)]+[f'v_cvt_pk_bf16_f32 v{80+u}, v{80+2*u}, v{81+2*u}' for u in range(4)]
        gbc+=[f'v_accvgpr_write_b32 a{252+u}, v{80+u}' for u in range(4)]
        if c.wdlate:
            wd=self.wd_loads(list(range(0,c.per[0]))+list(range(self.NL0,self.NL1))+list(range(c.per[0],self.NL0))); self.wdx=self.wd_loads(range(self.NL1,60))
        else: wd=self.wd_loads(range(60)); self.wdx=[]
        per=c.per
        rt={}
        def rd(g,nt):
            cj,ks=divmod(g,20); o=self.HB+8*(g%4)+4*nt
            return k(f'ds_read_b128 v[{o}:{o+3}], v{255 if cj&1 else 18} offset:{20480*nt+1024*ks}')
        for ci in range(4):
            if ci==0 or not c.cont:
                k.wait(*ht[ci])
                if ci==0: self.w_wait(c.tr_c0)
                k('s_barrier')
                rd(20*ci,0); rt[20*ci]=rd(20*ci+1,0); rd(20*ci,1); rt[20*ci+1]=rd(20*ci+1,1)
            self.stamp(16+ci)
            side=[]; vm=[]; ev=EV()
            if ci==0:
                if c.tr_c0b:
                    side+=self.w_tr_list(c.tr_c0)
                    side+=p4a+gbc
                    ev[c.c0bar]=lambda side=side: (k.wait(*[t for st in c.tr_c0b for t in self.wt[st]]), k('s_barrier'), side.__setitem__(slice(0,0),self.w_tr_list(c.tr_c0b)), side.extend(p4b))
                else:
                    side+=self.w_tr_list(c.tr_c0)
                    side+=p4s+gbc
            if ci>0: side+=self.epi(ci-1)
            if ci<3:
                h=self.h2_dma2(ci+1,ht[ci+1]); w=[wd.pop(0) for _ in range(per[ci])]
                vm=h+w; gap=4
                if ci==0 and c.w4: vm=self.w4_items()+vm; gap=3
            else:
                wl=[]; gl=[]
                for e in wd:
                    if 'a[' not in e[1]: wl.append(e); continue
                    idx=int(e[1].split('a[')[1].split(':')[0]); wl.append((e[0],e[1],12*((idx+3)//24+1)))
                for e in self.g_loads(0):
                    idx=int(e[1].split('a[')[1].split(':')[0]); gl.append((e[0],e[1],max(12*((idx+3)//24+1),c.chk0+1)))
                vm=wl[:c.nwd1]+gl+wl[c.nwd1:]
                gap=c.gap3
                ev[c.chk0-20]=lambda: self.apoll(2)
                ev[c.chk0]=lambda: self.acheck()
                ev[c.post1]=lambda: (k.wait(*self.gst[1]), self.wpost(3,c.gfl[1]==''))
                ev[c.poll1]=lambda: self.apoll(3)
                lds=[f'ds_read_b128 a[{4*u}:{4*u+3}], v15 offset:{1024*u}' for u in range(self.NL1-self.NL0)]
                ev[27]=lambda: k.wait(*self.wdl)
            if ci==0 and c.c0split: ev[47]=lambda: (k.wait(*hta), k('s_barrier'))
            if ci==2: ev[c.post0]=lambda: (k.wait(*self.gst[0]), self.wpost(2,True))
            self.lastvm=-99; self.until=0; nm=0
            A=self.AC+24*(ci&1)
            for kp in range(10):
                for m in range(12):
                    if 1:
                        nt=m//6; T=(m%6)//2; ks=2*kp+(m&1); g=20*ci+ks; g0=20*ci+2*kp
                        if m==0: k.wait(rt[g0] if kp==0 else rt[g0+1])
                        d=f'v[{A+12*nt+4*T}:{A+12*nt+4*T+3}]'; a=(ks*3+T)*4; o=self.HB+8*(g%4)+4*nt
                        k(f'v_mfma_f32_16x16x32_bf16 {d}, a[{a}:{a+3}], v[{o}:{o+3}], {d if ks else 0}')
                        nm+=1; slots=2
                        if nm in ev: ev.pop(nm)(); slots=0
                        if kp<9 and m in c.rdp:
                            j=c.rdp.index(m); rt[g0+3]=rd(g0+2+(j&1), j>>1); slots-=1
                        if m==11 and kp<9: slots-=1
                        if ci==3 and nm>=28 and lds and m in (0,2,4,7,9) and int(lds[0].split('a[')[1].split(':')[0])+3<24*(nm//12): k(lds.pop(0)); slots-=1
                        slots=self.vm_step(vm,slots,nm,gap)
                        self.fill(side,slots,nm)
            assert not ev
            for x in side: self.do(x)
            while vm:
                e=vm.pop(0)
                for x in e[0]: self.do(x)
                self.do(e[1])
            if ci==3: assert not lds
        self.stamp(20)
    def p4_setup(self):
        k=self.k
        k('s_lshr_b32 s83, s13, 3')
        k('s_mul_i32 s52, s83, 49152'); k('s_mul_i32 s53, s3, 12288'); k('s_add_u32 s52, s52, s53')
        for s in range(4): k(f's_add_u32 s{60+s}, s52, {self.gbase(s)[0]}'); k(f's_add_u32 s{60+s}, s{60+s}, {self.gbase(s)[1]}')
        if self.a3(): k(f's_mul_i32 s52, s83, {WS_Z-self.H2-49152}'); k('s_add_u32 s63, s63, s52')
        k('s_mul_i32 s85, s3, 20480'); k(f's_add_u32 s85, s85, {self.L_WD}')
        k('s_lshl_b32 s86, s13, 4'); k('s_lshl_b32 s52, s3, 2'); k('s_add_u32 s86, s86, s52'); k('s_add_u32 s86, s86, s68')
        k('v_mov_b32 v252, s14'); k('v_mov_b32 v253, 0')
        k('v_and_b32 v20, 3, v1'); k('v_lshrrev_b32 v21, 2, v1'); k('v_min_u32 v21, 9, v21')
        k('s_lshl_b32 s52, s3, 2'); k('v_add_u32 v20, s52, v20')
        k('v_lshrrev_b32 v22, 2, v21'); k('v_mul_u32_u24 v22, 2560, v22'); k('v_and_b32 v23, 3, v21')
        k('v_cmp_le_u32 vcc, 8, v21'); k('v_lshlrev_b32 v9, 1, v23'); k('v_cndmask_b32 v23, v23, v9, vcc')
        k('v_mul_u32_u24 v23, 320, v23'); k('v_add_u32 v22, v22, v23'); k('v_lshl_add_u32 v9, v20, 4, v22')
        k('v_mov_b32 v22, 1280'); k('v_mov_b32 v23, 320'); k('v_cndmask_b32 v22, v22, v23, vcc'); k('v_add_u32 v10, v9, v22')
        k('s_mul_i32 s53, s79, 160'); k('v_lshl_add_u32 v21, v21, 4, s53')
        k('s_lshl_b32 s52, s83, 4'); k('v_add_u32 v20, s52, v20')
        k('v_mul_u32_u24 v11, 1280, v20'); k('v_add_u32 v11, v11, v21')
        k('v_lshrrev_b32 v22, 1, v20'); k('v_lshl_add_u32 v22, v22, 5, s12')
        k('v_and_b32 v20, 1, v20')
        k('s_cmp_eq_u32 s12, 0'); k('s_cselect_b32 s53, -1008, 0')
        for s in range(4):
            r=[12,13,16,17][s]
            if s: k('v_add_u32 v22, 512, v22')
            if s==2: k('v_add_u32 v22, s53, v22')
            k('v_sub_u32 v23, 2048, v22')
            if s==0: k('v_cmp_eq_u32 vcc, 0, v22'); k(f'v_mov_b32 v{r}, 1024'); k(f'v_cndmask_b32 v23, v23, v{r}, vcc')
            k('v_cmp_eq_u32 vcc, 1, v20'); k(f'v_cndmask_b32 v{r}, v22, v23, vcc')
            k(f'v_mul_u32_u24 v{r}, 1280, v{r}'); k(f'v_add_u32 v{r}, v{r}, v21')
        k('s_mul_i32 s84, s12, 163840'); k(f's_add_u32 s84, s84, {self.X1}')
        k('s_mul_i32 s64, s3, 6400'); k('v_add_u32 v15, s85, v18'); k('v_lshlrev_b32 v14, 2, v1')
    def fin(self, s):
        R=64; X=248; GB=self.GBr; L=[]; buf=25600*(s&1); k=self.k
        if s==3: R=self.WDV
        for w in range(4):
            L.append(f'ds_read_b128 v[{R+8*w}:{R+8*w+3}], v9 offset:{buf+6400*w}'); L.append(f'ds_read_b128 v[{R+8*w+4}:{R+8*w+7}], v10 offset:{buf+6400*w}')
        XU=4 if s&1 else 20
        L.append(self.c.hold1)
        if s==3 and self.c.tailopt:
            P=lambda r,u: f'v[{r+2*u}:{r+2*u+1}]'
            for u in range(4): L.append(f'v_pk_add_f32 {P(R,u)}, {P(R,u)}, {P(R+8,u)}')
            for u in range(4): L.append(f'v_pk_add_f32 {P(R+16,u)}, {P(R+16,u)}, {P(R+24,u)}')
            for u in range(4): L.append(f'v_pk_add_f32 {P(R,u)}, {P(R,u)}, {P(R+16,u)}')
            for u in range(4): L.append(f'v_pk_fma_f32 {P(R,u)}, {P(R,u)}, {P(GB,u)}, {P(64,u)}')
            for u in range(4): L.append(f'v_cvt_pk_bf16_f32 v{R+u}, v{R+2*u}, v{R+2*u+1}')
            L.append(lambda: (k('s_mov_b32 exec_hi, 0xff'), k(f'buffer_store_dwordx4 v[{R}:{R+3}], v17, s[20:23], 0 offen {self.c.outfl}')))
            return L
        for u in range(8): L.append(f'v_add_f32 v{R+u}, v{R+u}, v{R+8+u}')
        for u in range(8): L.append(f'v_add_f32 v{R+16+u}, v{R+16+u}, v{R+24+u}')
        for u in range(4): L.append(f'v_lshlrev_b32 v{R+8+2*u}, 16, v{XU+u}'); L.append(f'v_and_b32 v{R+9+2*u}, 0xffff0000, v{XU+u}')
        for u in range(8): L.append(f'v_add_f32 v{R+u}, v{R+u}, v{R+16+u}')
        for u in range(8): L.append(f'v_fmac_f32 v{R+8+u}, v{R+u}, v{GB+u}')
        for u in range(4): L.append(f'v_cvt_pk_bf16_f32 v{R+u}, v{R+8+2*u}, v{R+9+2*u}')
        r=[12,13,16,17][s]
        L.append(lambda: (k('s_mov_b32 exec_hi, 0xff'), k(f'buffer_store_dwordx4 v[{R}:{R+3}], v{r}, s[20:23], 0 offen {self.c.outfl}'), k('s_mov_b32 exec_hi, -1')))
        return L
    GBr=96
    def p4(self):
        k=self.k; c=self.c
        ACC=24; GB=self.GBr
        x1ld=(lambda s: ([], f'buffer_load_dwordx4 v[{4 if s&1 else 20}:{7 if s&1 else 23}], v{[12,13,16,17][s]}, s[20:23], 0 offen sc1')) if c.alias2 else lambda s: ([f's_add_u32 s65, s84, {32*s*1280}'], f'buffer_load_dwordx4 v[{4 if s&1 else 20}:{7 if s&1 else 23}], v11, s[16:19], s65 offen sc1')
        k('v_lshl_add_u32 v8, v3, 6, v18'); k('v_add_u32 v8, s64, v8')
        if self.a3():
            k(f's_mov_b32 s52, {WS_Z-self.H2-49152}'); k('v_and_b32 v20, 1, v3'); k('v_lshrrev_b32 v21, 1, v3'); k('v_mad_u32_u24 v248, v20, s52, v248'); k('v_mad_u32_u24 v249, v21, s52, v249')
        ep=self.epi(3); self.gtok={}
        def vmk(e,s,kl): return (e[0], lambda: self.gtok.__setitem__((s,kl), k(e[1])))+tuple(e[2:])
        for x in ep[:12]: self.do(x)
        self.stamp(27)
        self.acheck()
        self.stamp(28)
        vm=self.wdx+[vmk(e,1,i) for i,e in enumerate(self.g_loads(1))]+[x1ld(0)]
        for n,x in enumerate(ep[12:]):
            self.do(x)
            if n==c.post2n and not c.post2s: k.wait(*self.gst[2]); self.wpost(4,c.gfl[2]=='')
            if n%c.ep_sp==0 and vm:
                e=vm.pop(0)
                for y in e[0]: self.do(y)
                self.do(e[1])
        assert len(ep)-12>c.post2n
        self.stamp(29)
        carry=vm
        self.stamp(21)
        for s in range(4):
            A=ACC+20*(s&1); side=[]; vm=carry; carry=[]; ev=EV()
            if s==0:
                if c.post2s: ev[c.post2s]=lambda: (k.wait(*self.gst[2]), self.wpost(4,c.gfl[2]==''))
                ev[c.chk2-c.pd2]=lambda: self.apoll(4); ev[c.chk2]=lambda: self.acheck()
                vm+=[vmk(e+(c.chk2+1,),2,i) for i,e in enumerate(self.g_loads(2))]
                ev[c.post3]=lambda: (k.wait(*self.gst[3]), self.wpost(5,c.gfl[3]==''))
                side+=[f'v_accvgpr_read_b32 v{GB+2*u+1}, a{252+u}' for u in range(4)]+[x for u in range(4) for x in (f'v_lshlrev_b32 v{GB+2*u}, 16, v{GB+2*u+1}', f'v_and_b32 v{GB+2*u+1}, 0xffff0000, v{GB+2*u+1}')]
                vm.append(x1ld(1))
            else:
                B=ACC+20*((s-1)&1)
                wr=[f'ds_write_b128 v8, v[{B+4*mt}:{B+4*mt+3}] offset:{25600*((s-1)&1)+1280*mt}' for mt in range(5)]
            if s==1:
                ev[c.chk3-c.pd3]=lambda: self.apoll(5); ev[c.chk3]=lambda: self.acheck()
                vm+=[vmk(e+(c.chk3+1,),3,i) for i,e in enumerate(self.g_loads(3))]
            self.lastvm=-99; self.until=0; nm=0; stage=0
            order=[(kl,mt) for kl in range(12) for mt in range(5)]
            if c.p4pair: order=[(2*kp+j,mt) for kp in range(6) for mt in range(5) for j in range(2)]
            if s==3 and c.tailopt: order=order[:20]+[(kl,mt) for mt in range(5) for kl in range(4,12)]
            for kl,mt in order:
                if 1:
                    if mt==0 and kl%4==0 and (s,kl+3) in self.gtok: k.wait(self.gtok[(s,kl+3)])
                    d=f'v[{A+4*mt}:{A+4*mt+3}]'; u=kl*5+mt
                    k(f'v_mfma_f32_16x16x32_bf16 {d}, {self.wd_dst(u)}, {self.gdst(s,kl)}, {d if kl else 0}')
                    nm+=1; slots=2
                    if nm in (20,40): slots-=1
                    if nm in ev: ev.pop(nm)(); slots=0
                    if s>=1:
                        if wr and nm>=4 and nm%c.wsp==0: tw=k(wr.pop(0)); slots-=1; lastw=nm
                        if stage==0 and not side and not wr and nm>=lastw+c.hold2:
                            stage=1
                            k.wait(tw); k('s_barrier'); slots=0
                            side+=self.fin(s-1)
                            if s<3: side.append(lambda s=s,vm=vm: vm.append(x1ld(s+1)))
                    if s==3 and c.tailopt and nm in (32,40,48,56):
                        m2=(nm-32)//8; k(f'ds_write_b128 v8, v[{A+4*m2}:{A+4*m2+3}] offset:{25600+1280*m2}'); slots-=1
                    slots=self.vm_step(vm,slots,nm,c.gap4)
                    self.fill(side,slots,nm)
            assert s==0 or stage==1
            assert not ev
            for x in side: self.do(x)
            if s<3: carry=[e[:2] for e in vm]; vm=[]
            while vm:
                e=vm.pop(0)
                for x in e[0]: self.do(x)
                self.do(e[1])
            self.stamp(23+s)
        B=ACC+20
        if c.tailopt:
            for u in range(4): k(f'v_lshlrev_b32 v{64+2*u}, 16, v{4+u}'); k(f'v_and_b32 v{65+2*u}, 0xffff0000, v{4+u}')
        for mt in range(4 if c.tailopt else 0,5): tw=k(f'ds_write_b128 v8, v[{B+4*mt}:{B+4*mt+3}] offset:{25600+1280*mt}')
        k.wait(tw); k('s_barrier')
        for x in self.fin(3): self.do(x)

def make(path, **kw):
    c=Cfg()
    for a,b in kw.items(): setattr(c,a,b)
    g=Gen(c); k=g.build()
    t,d=k.finish(table_text(NAME+'_tab'))
    hdr=open('header.txt').read()
    open(path,'w').write(hdr+'; @launch grid=(256,1,1) block=(256,1,1) lds=163840\n.amdgcn_target "amdgcn-amd-amdhsa--gfx950"\n'+t+d)
    print(path,k.stats)
if __name__=='__main__':
    make('f_dbg.s',prof=True,noalias=True); make('f_prof.s',prof=True); make('f.s')
```

```python
from gen_f import *
import gen_f

class Gen2(Gen):
    BF=20; ACC=68; CAV=92; FA=104; TW=120; G4=144; XV=180; UO=192; A2=200; T=232
    GA=200; SB=210; CB=220
    def pre0(self, mts, first=True):
        k=self.k; c=self.c; T=self.T; A2=self.A2; UO=self.UO
        if first: k(f's_add_u32 s60, s50, {WS_FLG}'); k('s_addc_u32 s61, s51, 0'); k('s_load_dword s14, s[60:61], 0')
        if not mts: return
        k('s_cmp_ge_u32 s3, 2'); k('s_cselect_b32 s52, -1008, 0'); k('s_cmp_eq_u32 s12, 0'); k('s_cselect_b32 s52, s52, s12')
        k('s_lshl_b32 s53, s3, 9'); k('s_add_u32 s73, s52, s53')
        k('s_cmp_eq_u32 s12, 0'); k('s_cselect_b32 s54, 1, 0'); k('s_lshr_b32 s55, s3, 1')
        k('s_and_b32 s52, s54, s55'); k('s_andn2_b32 s53, s54, s55')
        k(f'v_and_b32 v{T+1}, 1, v2'); k(f'v_cvt_f32_u32 v{T+1}, v{T+1}'); k(f'v_mul_f32 v{T+1}, 0x3e800000, v{T+1}')
        k('s_cmp_eq_u32 s12, 0'); k('s_cselect_b32 s54, 0, 0xbe800000'); k(f'v_add_f32 v{T+3}, s54, v{T+1}')
        k(f'v_mov_b32 v{T+6}, 0x3e800000')
        k(f'v_lshlrev_b32 v{T+4}, 2, v3'); k(f'v_cvt_f32_u32 v{T+4}, v{T+4}')
        k('s_cmp_lg_u32 s52, 0'); k('s_cselect_b64 s[68:69], -1, 0'); k('s_cmp_lg_u32 s53, 0'); k('s_cselect_b64 s[70:71], -1, 0')
        k(f'v_cndmask_b32 v{T+1}, v{T+1}, v{T+6}, s[68:69]'); k(f'v_cndmask_b32 v{T+3}, v{T+3}, v{T+6}, s[70:71]')
        for mt in mts:
            k(f'v_lshrrev_b32 v{T}, 1, v2'); k(f'v_lshl_add_u32 v{T}, v{T}, 5, s73')
            if mt: k(f'v_add_u32 v{T}, 256, v{T}')
            k(f'v_cvt_f32_u32 v{T}, v{T}'); k(f'v_mul_f32 v{T}, 0x3a000000, v{T}')
            k(f'v_cndmask_b32 v{T+2}, v{T}, 0, s[70:71]'); k(f'v_cndmask_b32 v{T}, v{T}, 0, s[68:69]')
            k(f'v_mov_b32 v{T+5}, v{T+1}')
            if mt==0:
                k('s_cmp_eq_u32 s73, 0'); k('s_cselect_b32 s54, 1, 99'); k('v_cmp_eq_u32 vcc, s54, v2')
                k(f'v_cndmask_b32 v{T}, v{T}, 0.5, vcc'); k(f'v_cndmask_b32 v{T+5}, v{T+5}, 0, vcc')
            k(f'v_fma_f32 v{T+5}, v{T}, v{T+4}, v{T+5}'); k(f'v_fma_f32 v{T+7}, v{T+2}, v{T+4}, v{T+3}')
            for ks in range(4):
                for u in range(4):
                    cc=16*ks+u
                    k(f'v_fmamk_f32 v{T+8+2*u}, v{T}, {float(cc)}, v{T+5}'); k(f'v_fmamk_f32 v{T+9+2*u}, v{T+2}, {float(cc)}, v{T+7}')
                for u in range(8): k(f'v_cos_f32 v{T+8+u}, v{T+8+u}')
                for u in range(4): k(f'v_cvt_pk_bf16_f32 v{A2+16*mt+4*ks+u}, v{T+8+2*u}, v{T+9+2*u}')
    def early(self):
        k=self.k; c=self.c; T=self.T; UO=self.UO
        srd(k,16,50,self.wssize)
        k('v_lshlrev_b32 v18, 4, v1')
        Lp=k.label('pc'); k('s_getpc_b64 s[52:53]'); k(f'{Lp}:'); k(f's_add_u32 s52, s52, {NAME}_tab-{Lp}'); k('s_addc_u32 s53, s53, 0'); srd(k,24,52,17408)
        k('s_lshl_b32 s53, s3, 12'); k(f's_add_u32 m0, s53, {L_TAB}'); self.tabt=[]
        for u in range(4): self.tabt.append(k(f'buffer_load_dwordx4 v18, s[24:27], s53 offen offset:{1024*u} lds'))
        k(f's_mov_b32 m0, {L_TAB+16384}'); k('s_mov_b32 s53, 16384')
        self.tabt.append(k(f'buffer_load_dwordx4 v18, s[24:27], s53 offen lds'))
        if c.tlb:
            L=k.label('tl'); k('s_cmp_lg_u32 s3, 3'); k(f's_cbranch_scc1 {L}')
            k(f'v_lshlrev_b32 v{T}, {c.tlb}, v1'); k(f'v_add_u32 v{T}, 0x3ff80, v{T}')
            k(f'buffer_load_dword a246, v{T}, s[16:19], 0 offen')
            srd(k,28,46,S*D*2); k(f'buffer_load_dword a247, v{T}, s[28:31], 0 offen')
            k(f'{L}:')
        if c.gtouch:
            k(f'v_and_b32 v{T}, 7, v1'); k(f'v_lshlrev_b32 v{T}, 7, v{T}'); k(f'v_bfe_u32 v{T+1}, v1, 3, 1'); k(f'v_mul_u32_u24 v{T+1}, {FL_GF2-FL_GF}, v{T+1}'); k(f'v_add_u32 v{T}, v{T}, v{T+1}')
            k('s_lshl_b32 s53, s12, 10'); k(f's_add_u32 s53, s53, {WS_FLG+FL_GF}')
            L=k.label('gt'); k('s_add_u32 s52, s13, s3'); k('s_cmp_lg_u32 s52, 0'); k(f's_cbranch_scc1 {L}')
            k(f'buffer_load_dword a246, v{T}, s[16:19], s53 offen {c.gtouch}'); k(f'{L}:')
        if c.utouch:
            L=k.label('ut'); k('s_cmp_ge_u32 s2, 128'); k(f's_cbranch_scc1 {L}')
            k(f'v_min_u32 v{T}, 39, v1'); k(f'v_cmp_le_u32 vcc, 20, v{T}'); k(f'v_mov_b32 v{T+1}, {163840-2560}'); k(f'v_cndmask_b32 v{T+1}, 0, v{T+1}, vcc'); k(f'v_lshl_add_u32 v{T}, v{T}, 7, v{T+1}')
            k('s_bfe_u32 s52, s2, 0x10003'); k('s_lshl_b32 s52, s52, 2'); k('s_add_u32 s52, s52, s3'); k(f's_mul_i32 s52, s52, {2*163840}'); k('s_mul_i32 s53, s66, 2560'); k('s_add_u32 s52, s52, s53')
            k(f'buffer_load_dword a246, v{T}, s[16:19], s52 offen {c.utouch}'); k(f'{L}:')
        self.w_setup()
        self.pf('sw_early')
        if c.pf: self.pf_setup(); self.pf('early')
        k('s_mul_i32 s14, s14, 0x9E3779B1'); k('s_add_u32 s14, s14, 0x7F4A7C15')
        k('s_getreg_b32 s52, hwreg(HW_REG_XCC_ID, 0, 4)'); k('s_add_u32 s52, s52, 1'); k('s_xor_b32 s59, s14, s52')
    def pf(self, point):
        k=self.k; c=self.c
        if c.sweep and point==c.sweep_at:
            L=self.w0()
            k('v_lshlrev_b32 v252, 7, v1'); k('s_mul_i32 s52, s2, 7680')
            k('s_mov_b32 s32, s38'); k('s_and_b32 s33, s39, 0xffff')
            k('buffer_load_dword a246, v252, s[28:31], s52 offen'); k('buffer_load_dword a246, v252, s[32:35], s52 offen')
            self.end(L)
        Gen.pf(self, point)
    def late_setup(self):
        k=self.k; T=self.T; UO=self.UO
        self.w_setup_tr()
        k('s_lshl_b32 s68, s12, 8'); k(f's_add_u32 s68, s68, {WS_FLG+FL_GRP}')
        k('s_lshl_b32 s69, s13, 7'); k('s_add_u32 s52, s69, s12'); k('s_sub_u32 s53, s69, 1008'); k('s_cmp_lt_u32 s13, 8'); k('s_cselect_b32 s53, s69, s53')
        k('s_cmp_eq_u32 s12, 0'); k('s_cselect_b32 s69, s53, s52')
        k('s_lshl_b32 s70, s3, 5'); k('s_add_u32 s70, s70, s69'); k('s_sub_u32 s71, 2048, s70'); k('s_cmp_eq_u32 s70, 0'); k('s_cselect_b32 s71, 1024, s71')
        k('s_mul_i32 s72, s3, 2560'); k(f's_add_u32 s72, s72, {L_XR}')
        srd(k,20,4,S*D*2)
        if self.zo():
            for r in range(4):
                k(f's_add_u32 s52, s69, {32*r}'); k('s_sub_u32 s53, 2048, s52')
                if r==0: k('s_cmp_eq_u32 s52, 0'); k('s_cselect_b32 s53, 1024, s53')
                k(f's_mul_i32 s{4+2*r}, s52, 1280'); k(f's_mul_i32 s{5+2*r}, s53, 1280')
            srd(k,24,46,S*D*2)
        k(f's_mov_b32 s54, {(2**32+4)//5}')
        for m in range(5):
            k(f'v_add_u32 v{T}, {64*m}, v1'); k(f'v_mul_hi_u32 v{T+1}, v{T}, s54'); k(f'v_mul_u32_u24 v{T+1}, {1280-80}, v{T+1}'); k(f'v_lshl_add_u32 v{UO+m}, v{T}, 4, v{T+1}')
        k(f's_mov_b32 s54, {(2**32+9)//10}')
        k(f'v_mul_hi_u32 v{T+1}, v1, s54'); k(f'v_mul_u32_u24 v{T+2}, 10, v{T+1}'); k(f'v_sub_u32 v{T+2}, v1, v{T+2}')
        k(f'v_lshrrev_b32 v{T+3}, 1, v{T+1}'); k(f'v_and_b32 v{T+1}, 1, v{T+1}'); k(f'v_mul_u32_u24 v{T+3}, 2560, v{T+3}')
        k(f'v_lshl_add_u32 v{T+3}, v{T+1}, 14, v{T+3}'); k(f'v_lshl_add_u32 v{UO+5}, v{T+2}, 4, v{T+3}')
        R=self.c.rec; sh=R.bit_length()-1
        k(f'v_lshrrev_b32 v253, 2, v1'); k(f'v_lshlrev_b32 v253, {sh+8}, v253'); k(f'v_and_b32 v{T}, 3, v1'); k(f'v_lshl_add_u32 v253, v{T}, 4, v253')
        k(f's_lshl_b32 s62, s2, {sh}'); k(f's_add_u32 s62, s62, {WS_FLG+FL_GF}')
        k(f's_lshl_b32 s63, s12, {sh+8}'); k(f's_add_u32 s63, s63, {WS_FLG+FL_GF}')
        k('s_lshr_b32 s52, s12, 3'); k('s_lshl_b32 s52, s52, 3'); k(f'v_and_b32 v{T}, 7, v1'); k(f'v_lshrrev_b32 v{T+1}, 3, v1'); k(f'v_lshl_add_u32 v{T}, v{T+1}, 4, v{T}')
        k(f'v_add_lshl_u32 v198, v{T}, s52, {sh}')
        k(f'v_min_u32 v{T}, 39, v1'); k(f'v_add_u32 v{T}, 128, v{T}'); k(f'v_lshlrev_b32 v199, {sh}, v{T}')
        k(f'v_add_u32 v{T}, 168, v1'); k(f'v_lshlrev_b32 v254, {sh}, v{T}')
        k('s_and_b32 s52, s2, 15'); k(f'v_lshl_add_u32 v{T}, v2, 4, s52'); k(f'v_add_u32 v{T+1}, 232, v2'); k('v_cmp_gt_u32 vcc, 16, v1'); k(f'v_cndmask_b32 v{T}, v{T+1}, v{T}, vcc'); k(f'v_lshlrev_b32 v255, {sh}, v{T}')
    def rpost(self, soff, r=240):
        k=self.k; R=self.c.rec
        k(f'v_mov_b32 v{r}, s14'); k(f'v_mov_b32 v{r+1}, s59'); k(f'v_mov_b32 v{r+2}, s14'); k(f'v_mov_b32 v{r+3}, s14')
        if R==32: k('s_mov_b32 exec_lo, 0x33333333'); k('s_mov_b32 exec_hi, 0x33333333')
        k(f'buffer_store_dwordx4 v[{r}:{r+3}], v253, s[16:19], {soff} offen sc1')
        if R==128: k(f'buffer_store_dwordx4 v[{r}:{r+3}], v253, s[16:19], {soff} offen offset:64 sc1')
        if R==32: k('s_mov_b64 exec, -1')
    def build(self):
        k=self.k; c=self.c
        END=k.label('end'); LM=k.label('mod'); LS=k.label('shuf'); LN_=k.label('none'); LJ=k.label('join')
        self.drain=[]; self.check_sched()
        k('s_cmp_ge_u32 s2, 256'); k(f's_cbranch_scc1 {END}')
        k(f's_load_dwordx2 s[4:5], s[0:1], {KA["x"]}'); k(f's_load_dwordx16 s[36:51], s[0:1], {KA["wg"]}')
        if c.prof: k('v_mov_b32 v19, -1')
        if c.pace: k('s_memrealtime s[96:97]'); k('s_mov_b32 s95, 0')
        self.stamp(0)
        k('v_lshrrev_b32 v1, 6, v0'); k('v_readfirstlane_b32 s3, v1')
        k('v_and_b32 v1, 63, v0'); k('v_and_b32 v2, 15, v0'); k('v_lshrrev_b32 v3, 4, v1')
        k('s_and_b32 s12, s2, 7'); k('s_lshl_b32 s12, s12, 1'); k('s_bfe_u32 s13, s2, 0x10003'); k('s_add_u32 s12, s12, s13'); k('s_lshr_b32 s13, s2, 4')
        if c.codetouch:
            L=self.w0(); Lp=k.label('pc')
            k('s_getpc_b64 s[52:53]'); k(f'{Lp}:'); k(f's_sub_u32 s52, s52, {Lp}-{NAME}'); k('s_subb_u32 s53, s53, 0'); srd(k,24,52,f'{NAME}_tab-{NAME}+17408')
            k('s_bfe_u32 s54, s2, 0x30003'); k('s_lshl_b32 s54, s54, 13'); k('v_lshlrev_b32 v240, 7, v1')
            k('buffer_load_dword a246, v240, s[24:27], s54 offen')
            self.end(L)
        LA=k.label('a'); LB=k.label('b'); LE=k.label('e'); n0=len(k.ins)
        k('s_cmp_ge_u32 s2, 128'); k(f's_cbranch_scc1 {LA}')
        self.role_ln_a(); k(f's_branch {LE}')
        k(f'{LA}:'); k('s_cmp_ge_u32 s2, 248'); k(f's_cbranch_scc1 {LB}')
        self.role_mod_a()
        k(f'{LB}:')
        if c.shdma=='early': self.role_shuf_a()
        else: self.shtoks=[]
        k(f'{LE}:')
        roletoks=[x.tag for x in k.ins[n0:] if x.kind=='vmem' and not (c.shlate and x.tag in self.shtoks)]
        self.pre0(c.a2pre)
        if c.hops:
            back=k.label('back'); main=k.label('main')
            k('s_mov_b64 exec, 0')
            for w in range(4):
                k(f's_cmp_eq_u32 s3, {w}'); y=Ins('s_nop 0'); y.meta=('hopstart',w); k.ins.append(y)
            k(f'{back}:'); k('s_mov_b64 exec, -1')
            k(f's_branch {main}'); k('.p2align 12'); k(f'{main}:')
            self.tg=[LM,LJ] if c.hoptg else []; k.hops=(main,back,4,c.hopstep,self.tg)
        self.early()
        k('s_cmp_ge_u32 s2, 128'); k(f's_cbranch_scc1 {LM}')
        self.role_ln(); k(f's_branch {LJ}')
        k(f'{LN_}:'); self.w_issue(c.iss_early); self.pf('ld'); self.w_issue(c.iss_ld); k(f's_branch {LS}')
        k(f'{LM}:'); k('s_cmp_ge_u32 s2, 248'); k(f's_cbranch_scc1 {LN_}')
        self.role_mod()
        k(f'{LS}:')
        if c.shdma=='role': self.role_shuf_a()
        if not c.shlate: self.role_shuf()
        k(f'{LJ}:'); k.forget(*roletoks)
        self.stamp(3)
        self.pf('role')
        self.pre0([m for m in (0,1) if m not in c.a2pre and m not in c.a2post], False)
        self.late_setup()
        self.z_touch('role')
        self.w_issue(c.iss_role, self.drain+self.tabt+[t for st in c.tr_b2 for t in self.wt[st]])
        k('s_barrier')
        if c.split:
            LW=k.label('wn'); LX=k.label('x9'); wt0={a:list(b) for a,b in self.wt.items()}
            if c.hoptg and c.hops: self.tg+=[LW,LX]
            k('s_cmp_lg_u32 s3, 0'); k(f's_cbranch_scc1 {LW}')
            self.who='w0'
            if c.prio: k(f's_setprio {c.prio}')
            self.p2a(); self.p2b()
            if c.prio: k('s_setprio 0')
            k(f's_branch {LX}')
            k(f'{LW}:'); self.who='wn'; self.q=[]; self.wt=wt0; self.trtok=None; k.hook=self.pace; k.curcls='wn'
            self.p2a(); self.p2b(); self.q_flush(); k.hook=None; k.curcls=None; self.who=None
            k(f'{LX}:')
        else:
            self.p2a()
            self.p2b()
        self.p3()
        self.p4()
        if c.pacewb: k('s_waitcnt vmcnt(0)'); k('buffer_wbl2 sc1'); k('s_waitcnt vmcnt(0)')
        if c.pace:
            Lq=k.label('pace'); k(f'{Lq}:'); k('s_memrealtime s[98:99]'); k('s_waitcnt lgkmcnt(0)'); k('s_sub_u32 s98, s98, s96'); k('s_sub_u32 s98, s98, s95'); k(f's_cmp_lt_i32 s98, {c.pace}'); k(f's_cbranch_scc1 {Lq}')
        if c.prof: k('s_waitcnt vmcnt(0)')
        self.stamp(31); self.stamp_flush()
        k(f'{END}:'); k('s_endpgm')
        return k
    def p2a(self):
        k=self.k; c=self.c; T=self.T; A2=self.A2; BF=self.BF; ACC=self.ACC; CAV=self.CAV; FA=self.FA; TW=self.TW; G4=self.G4; XV=self.XV; UO=self.UO
        PL=f'buffer_load_dword v{T+8}, v198, s[16:19], s63 offen {c.gpfl}\nbuffer_load_dword v{T+9}, v199, s[16:19], s63 offen {c.gpfl}'
        CH=[f'v_xor_b32 v{T+8}, s14, v{T+8}', f'v_xor_b32 v{T+9}, s14, v{T+9}', f'v_or_b32 v{T+8}, v{T+8}, v{T+9}', f'v_cmp_ne_u32 vcc, 0, v{T+8}']
        PL2=f'buffer_load_dword v{T+8}, v254, s[16:19], s63 offen sc1\nbuffer_load_dwordx2 v[{T+10}:{T+11}], v255, s[16:19], s63 offen sc1'
        CH2=[f'v_xor_b32 v{T+8}, s14, v{T+8}', f'v_xor_b32 v{T+9}, s14, v{T+10}', f'v_or_b32 v{T+8}, v{T+8}, v{T+9}', f'v_cmp_ne_u32 vcc, 0, v{T+8}']
        L=self.w0(); self.rpost('s62'); self.end(L)
        self.stamp(4)
        self.misc=[]; self.sht=[]
        L=self.wn()
        k('s_sub_u32 s52, s3, 1'); k(f'v_lshlrev_b32 v{T}, 2, v1')
        for u in range(3):
            L3=k.label('xr')
            k('s_mul_i32 s53, s52, 3'); k(f's_add_u32 s53, s53, {u}')
            if u==2: k('s_cmp_eq_u32 s53, 8'); k(f's_cbranch_scc1 {L3}')
            k('s_lshr_b32 s54, s53, 1'); k('s_lshl_b32 s54, s54, 5'); k('s_add_u32 s54, s54, s69')
            k('s_sub_u32 s55, 2048, s54'); k('s_cmp_eq_u32 s54, 0'); k('s_cselect_b32 s55, 1024, s55')
            k('s_bitcmp1_b32 s53, 0'); k('s_cselect_b32 s54, s55, s54'); k('s_mul_i32 s54, s54, 1280')
            k('s_mul_i32 s53, s53, 1280'); k(f's_add_u32 m0, s53, {L_XR}'); k('s_nop 0')
            self.misc.append(k(f'buffer_load_dwordx4 v18, s[20:23], s54 offen lds'))
            self.misc.append(k(f'buffer_load_dword v{T}, s[20:23], s54 offen offset:1024 lds'))
            k(f'{L3}:')
        self.end(L)
        self.z_touch('b2')
        if c.otouch=='b2': self.out_touch()
        self.pf('b2'); self.w_issue(c.iss_b2)
        if c.gasync: L=self.w0(); k(PL); self.end(L)
        self.w_tr(c.tr_b2)
        for u in range(2): k(f'ds_read_b128 v[{FA+4*u}:{FA+4*u+3}], v18 offset:{L_TAB+1024*u}')
        for u in range(6): k(f'ds_read_b128 v[{TW+4*u}:{TW+4*u+3}], v18 offset:{L_TAB+2048+1024*u}')
        for u in range(9): tw2=k(f'ds_read_b128 v[{G4+4*u}:{G4+4*u+3}], v18 offset:{L_TAB+8192+1024*u}')
        k('s_cmp_eq_u32 s70, 0'); k('s_cselect_b64 vcc, -1, 0'); k('s_cselect_b32 s52, 0xffff, -1')
        for u in range(8):
            k(f'v_xor_b32 v{FA+8+u}, 0x80000000, v{FA+u}'); k(f'v_lshlrev_b32 v{T+4}, 16, v{FA+u}')
            k(f'v_cndmask_b32 v{FA+8+u}, v{FA+8+u}, v{T+4}, vcc'); k(f'v_and_b32 v{FA+u}, s52, v{FA+u}')
        def a2(mts):
            if mts: k('s_mov_b64 s[80:81], s[68:69]'); k('s_mov_b64 s[82:83], s[70:71]'); self.pre0(mts, False); k('s_mov_b64 s[68:69], s[80:81]'); k('s_mov_b64 s[70:71], s[82:83]')
        late=[m for m in c.a2post if m in c.a2u] if (c.nob2p and self.who=='w0') else []
        a2([m for m in c.a2post if m not in late])
        if c.shlate:
            Ls=k.label('sl'); k('s_cmp_lt_u32 s2, 128'); k(f's_cbranch_scc1 {Ls}'); self.role_shuf(); k(f'{Ls}:')
        self.w_issue(c.iss_b2b); self.pf('pre')
        if not c.nob2p: self.w_wait(c.tr_b3, self.misc); k.wait(tw2); k('s_barrier')
        self.stamp(5)
        self.z_touch('b2c')
        if c.shst=='b2c': self.sh_store()
        self.w_issue(c.iss_b2c); self.pf('chain')
        L=self.w0(); ut=[]; Lo=k.label('ok')
        if c.gasync:
            for x in CH: k(x)
            k(f's_cbranch_vccz {Lo}')
        self.poll(PL, CH, c.gsleep)
        k(f'{Lo}:')
        self.stamp(6)
        k('s_mul_i32 s53, s12, 163840'); k('s_mul_i32 s52, s13, 80'); k('s_add_u32 s53, s53, s52')
        if WS_U: k(f's_add_u32 s53, s53, {WS_U}')
        k(f's_mov_b32 m0, {L_US}')
        for u in range(10):
            ut.append(k(f'buffer_load_dwordx4 v{UO+u%5}, s[16:19], s53 offen sc1 lds'))
            k('s_add_u32 m0, m0, 1024')
            if u==4: k(f's_add_u32 s53, s53, {64*1280}')
        k(f's_mov_b32 m0, {L_CA}'); k('s_mul_i32 s53, s13, 160'); k(f's_add_u32 s53, s53, {WS_MOD}')
        k('s_mov_b32 exec_hi, 0xff')
        ut.append(k(f'buffer_load_dwordx4 v{UO+5}, s[16:19], s53 offen sc1 lds'))
        k('s_mov_b32 exec_hi, -1')
        self.end(L)
        a2(late)
        if self.who: self.wn()
        L=k.label('w1'); k('s_cmp_lg_u32 s3, 1'); k(f's_cbranch_scc1 {L}')
        self.poll(PL2, CH2, c.gsleep2)
        k(f'v_cmp_ne_u32 vcc, s59, v{T+11}'); k('s_and_b32 s52, vcc_lo, 0xffff'); k('s_cmp_eq_u32 s52, 0'); k(f's_cselect_b32 s15, {0 if c.force_slow else 1}, 0')
        k(f'v_mov_b32 v{T}, s15'); k(f'v_mov_b32 v{T+1}, {L_CA+640}'); tmode=k(f'ds_write_b32 v{T+1}, v{T}'); k.wait(tmode)
        def modl():
            self.modt=[]; oc=k.curcls; k.curcls='wn'
            for u in range(16):
                if u%4==0: k(f's_mov_b32 m0, {L_MOD+1024*u}'); k(f's_mov_b32 s54, {WS_MOD+8192+1024*u+8192*(u>>3)}')
                self.modt.append(k(f'buffer_load_dwordx4 v18, s[16:19], s54 offen offset:{1024*(u%4)} sc1 lds'))
            k.curcls=oc
        if not c.nob2p: modl()
        L2=k.label('n'); k('s_cmp_lg_u32 s2, 0'); k(f's_cbranch_scc1 {L2}')
        self.poll(f'buffer_load_dword v{T+8}, v198, s[16:19], s63 offen sc1\nbuffer_load_dword v{T+9}, v198, s[16:19], s63 offen offset:{8*c.rec} sc1\nbuffer_load_dword v{T+10}, v199, s[16:19], s63 offen sc1\nbuffer_load_dword v{T+11}, v255, s[16:19], s63 offen offset:{16*c.rec} sc1',
                  [f'v_xor_b32 v{T+8+u}, s14, v{T+8+u}' for u in range(3)]+[f'v_xor_b32 v{T+11}, s14, v{T+11}', f'v_cmp_gt_u32 vcc, 16, v1', f'v_cndmask_b32 v{T+11}, v{T+11}, 0, vcc', f'v_cmp_lt_u32 vcc, 7, v2', f'v_cndmask_b32 v{T+11}, v{T+11}, 0, vcc',
                   f'v_or3_b32 v{T+8}, v{T+8}, v{T+9}, v{T+10}', f'v_or_b32 v{T+8}, v{T+8}, v{T+11}', f'v_cmp_ne_u32 vcc, 0, v{T+8}'])
        k(f'v_mov_b32 v{T+3}, 0'); k(f's_mov_b32 s53, {WS_FLG}'); k('s_mov_b64 exec, 1')
        k(f'v_mov_b32 v{T+2}, s14'); k(f'buffer_store_dword v{T+2}, v{T+3}, s[16:19], s53 offen sc1'); k('s_mov_b64 exec, -1')
        k(f'{L2}:')
        self.end(L)
        if self.who: self.end(None)
        self.stamp(-27)
        if c.nob2p:
            self.w_wait(c.tr_b3, self.misc); k.wait(tw2); k('s_barrier')
            if self.who: self.wn()
            L=k.label('w1'); k('s_cmp_lg_u32 s3, 1'); k(f's_cbranch_scc1 {L}'); modl(); self.end(L)
            if self.who: self.end(None)
        elif c.iss_b3: k('s_barrier')
        self.stamp(-28)
        self.z_touch('b3')
        if c.shst=='b3': self.sh_store()
        k(f'v_lshlrev_b32 v246, 2, v2')
        self.pf('b3'); self.w_issue(c.iss_b3)
        for u in range(20): k(f'v_mov_b32 v{XV+u}, 0')
        k(f'v_lshlrev_b32 v{T+4}, 1, v2'); k(f'v_lshl_add_u32 v250, v3, 8, v{T+4}'); k(f'v_lshl_add_u32 v251, v3, 6, v{T+4}')
        k('v_add_u32 v250, s72, v250'); k('v_add_u32 v251, s72, v251')
        for ab in range(2):
            for jj in range(8): k(f'ds_read_u16_d16_hi v{XV+10*ab+jj}, v250 offset:{1280*ab+32*jj}')
            for j in range(2): tw=k(f'ds_read_u16_d16_hi v{XV+10*ab+8+j}, v251 offset:{1280*ab+1024+32*j}')
        tw=self.w_tr(c.tr_b3) or tw
        k(f'v_lshrrev_b32 v{T+4}, 2, v2'); k(f'v_lshl_add_u32 v{T+4}, v3, 3, v{T+4}'); k(f'v_mul_u32_u24 v{T+4}, 80, v{T+4}')
        k(f'v_and_b32 v{T+5}, 3, v2'); k(f'v_lshl_add_u32 v248, v{T+5}, 3, v{T+4}')
        k('s_mul_i32 s52, s3, 2560'); k(f'v_mul_u32_u24 v249, 320, v3'); k('v_lshl_add_u32 v249, v2, 2, v249'); k('v_add_u32 v249, s52, v249')
        k(f'v_add_u32 v246, {L_CA}, v246')
        k('s_lshl_b32 s62, s12, 4'); k('s_add_u32 s62, s62, s13'); k('s_mul_i32 s62, s62, 10240'); k(f's_add_u32 s62, s62, {WS_Z}')
        GO=240
        L=self.w0()
        k(f's_mov_b32 s54, {(2**32+39)//40}')
        if self.zo():
            k('s_bfe_u32 s55, s13, 0x10001'); k('s_mul_i32 s55, s55, 7')
            for m in range(5):
                k(f'v_add_u32 v{T}, {64*m}, v1'); k(f'v_mul_hi_u32 v{T+1}, v{T}, s54'); k(f'v_mul_u32_u24 v{T+2}, 40, v{T+1}'); k(f'v_sub_u32 v{T}, v{T}, v{T+2}')
                k(f'v_xor_b32 v{T+1}, s55, v{T+1}'); k(f'v_mul_u32_u24 v{T+1}, 10240, v{T+1}'); k(f'v_add_lshl_u32 v{GO+m}, v{T}, v{T+1}, 4')
            k('s_lshr_b32 s52, s13, 2'); k('s_lshl_b32 s52, s52, 5'); k('s_add_u32 s64, s52, s12')
            k('s_add_u32 s65, s64, 1024'); k('s_add_u32 s52, s52, 16'); k('s_cmp_eq_u32 s12, 0'); k('s_cselect_b32 s65, s52, s65')
            k('s_sub_u32 s52, 1152, s64'); k('s_sub_u32 s53, 1152, s65'); k('s_cmp_lg_u32 s55, 0')
            k('s_cselect_b32 s53, s53, s65'); k('s_cselect_b32 s65, 163840, 0'); k('s_cselect_b32 s52, s52, s64')
            k('s_cselect_b32 s55, s64, 1'); k('s_cmp_eq_u32 s55, 0'); k('s_cselect_b32 s55, 40, 0')
            k(f'v_add_u32 v{T+7}, s65, v{GO}'); k(f'v_lshlrev_b32 v{T}, 4, v1'); k('v_cmp_gt_u32 vcc, s55, v1'); k(f'v_cndmask_b32 v{T+7}, v{T+7}, v{T}, vcc')
            k('s_and_b32 s55, s13, 1'); k('s_mul_i32 s55, s55, 640')
            k('s_mul_i32 s64, s52, 1280'); k('s_add_u32 s64, s64, s55'); k('s_sub_u32 s63, s64, s65'); k('s_mul_i32 s65, s53, 1280'); k('s_add_u32 s65, s65, s55')
            k('v_lshlrev_b32 v245, 2, v1')
        else:
          for m in range(5):
            k(f'v_add_u32 v{T}, {64*m}, v1'); k(f'v_mul_hi_u32 v{T+1}, v{T}, s54'); k(f'v_mul_u32_u24 v{T+1}, {10240-640}, v{T+1}'); k(f'v_lshl_add_u32 v{GO+m}, v{T}, 4, v{T+1}')
        k.wait(*ut); self.end(L)
        k.wait(tw); self.w_wait(c.tr_b4)
        self.stamp(-29)
        k('s_barrier')
        self.stamp(7)
        def rds(ks): return [f'ds_read_b64_tr_b16 v[{BF+12*ks+4*nt+2*hh}:{BF+12*ks+4*nt+2*hh+1}], v248 offset:{L_US+2560*ks+320*hh+2*D2B[nt]}' for nt in range(3) for hh in range(2)]
        for x in rds(0)+rds(1): k(x)
        if c.shst=='b4': self.sh_store()
        fill=rds(2)
        for nt in range(3):
            fill.append(f'ds_read2_b32 v[{CAV+2*nt}:{CAV+2*nt+1}], v246 offset0:{D2B[nt]} offset1:{40+D2B[nt]}')
            fill.append(f'ds_read2_b32 v[{CAV+6+2*nt}:{CAV+7+2*nt}], v246 offset0:{80+D2B[nt]} offset1:{120+D2B[nt]}')
        fill+=rds(3)
        cav=[]
        for nt in range(3): cav+=[f'v_add_f32 v{CAV+2*nt}, v{CAV+2*nt}, v{CAV+2*nt+1}', f'v_add_f32 v{CAV+6+2*nt}, v{CAV+6+2*nt}, v{CAV+7+2*nt}']
        for nt in range(3): cav.append(f'v_cvt_pk_bf16_f32 v{CAV+2*nt}, v{CAV+2*nt}, v{CAV+6+2*nt}')
        for nt in range(3): cav.append(f'v_and_b32 v{CAV+6+2*nt}, 0xffff0000, v{CAV+2*nt}')
        for nt in range(3): cav.append(f'v_add_f32 v{CAV+6+2*nt}, 1.0, v{CAV+6+2*nt}')
        for nt in range(3): cav.append(f'v_cvt_pk_bf16_f32 v{CAV+6+2*nt}, v{CAV+6+2*nt}, v{CAV+6+2*nt}')
        for nt in range(3): cav.append(f'v_and_b32 v{CAV+6+2*nt}, 0xffff0000, v{CAV+6+2*nt}')
        fill+=cav
        order=[(mt,nt) for nt in range(3) for mt in range(2)]
        def post(mt,nt):
            a=ACC+12*mt+4*nt; o=[f'v_mul_f32 v{a+j}, v{a+j}, v{CAV+6+2*nt}' for j in range(4)]
            if c.pk2: o=[f'v_pk_mul_f32 v[{a+2*j}:{a+2*j+1}], v[{a+2*j}:{a+2*j+1}], v[{CAV+6+2*nt}:{CAV+7+2*nt}] op_sel_hi:[1,0]' for j in range(2)]
            if mt==0: o.append(f'v_fmac_f32 v{a}, v{T+6}, v{CAV+2*nt}')
            for rr in range(2):
                o.append(f'v_cvt_pk_bf16_f32 v{a+2*rr}, v{a+2*rr}, v{a+2*rr+1}'); o.append(f'ds_write_b32 v249, v{a+2*rr} offset:{L_ZS+1280*mt+160*rr+4*D2B[nt]}')
            return o
        k('s_cmp_eq_u32 s73, 0'); k('s_cselect_b32 s52, 16, 0'); k(f'v_cmp_gt_u32 s[54:55], s52, v1'); k(f'v_mov_b32 v{T+6}, 0x45000000')
        for ks in range(4):
            for mt,nt in order:
                d=f'v[{ACC+12*mt+4*nt}:{ACC+12*mt+4*nt+3}]'
                k(f'v_mfma_f32_16x16x32_bf16 {d}, v[{A2+16*mt+4*ks}:{A2+16*mt+4*ks+3}], v[{BF+12*ks+4*nt}:{BF+12*ks+4*nt+3}], {d if ks else 0}')
                for _ in range(2):
                    if fill: k(fill.pop(0))
        for x in fill: k(x)
        for nt in range(3): k(f'v_lshlrev_b32 v{CAV+2*nt}, 16, v{CAV+2*nt}'); k(f'v_cndmask_b32 v{CAV+2*nt}, 0, v{CAV+2*nt}, s[54:55]')
        for mt,nt in order:
            for x in post(mt,nt): t=k(x)
        self.pf('b4'); self.w_issue(c.iss_b4); self.w_tr(c.tr_b4); self.pf('mid4'); self.w_issue(c.iss_mid4)
        self.stamp(30)
        self.w_wait(c.tr_b5, self.modt); k.wait(t)
        k('s_barrier')
        self.stamp(8)
        R=BF
        k(f'v_mov_b32 v{T+1}, {L_CA+640}'); k(f'ds_read_b32 v247, v{T+1}')
        L=self.w0(); zt=[]
        if self.zo():
            for u in range(8): k(f'ds_read_b128 v[{R+4*u}:{R+4*u+3}], v18 offset:{L_ZS+1280*u}'); k(f'ds_read_b32 v{R+32+u}, v245 offset:{L_ZS+1280*u+1024}')
            for u in range(8):
                zt.append(k(f'buffer_store_dwordx4 v[{R+4*u}:{R+4*u+3}], v18, s[24:27], s{4+u} offen {c.zfl}')); zt.append(k(f'buffer_store_dword v{R+32+u}, v245, s[24:27], s{4+u} offen offset:1024 {c.zfl}'))
        for u in range(0 if self.zo() else 10): k(f'ds_read_b128 v[{R+4*u}:{R+4*u+3}], v18 offset:{L_ZS+1024*u}')
        for u in range(0 if self.zo() else 10):
            if u%4==0 and u: k('s_add_u32 s62, s62, 4096')
            zt.append(k(f'buffer_store_dwordx4 v[{R+4*u}:{R+4*u+3}], v18, s[16:19], s62 offen offset:{1024*(u%4)} {c.zfl}'))
        self.end(L)
        self.pf('b5'); self.w_issue(c.iss_b5)
        GA,SB,CB=self.GA,self.SB,self.CB; M0=60; M1=200
        def modreads():
            k(f'v_lshlrev_b32 v{T+2}, 2, v2'); k(f'v_lshl_add_u32 v{T+3}, v3, 7, v{T+2}'); k(f'v_lshl_add_u32 v{T+2}, v3, 9, v{T+2}')
            for p,base in ((0,M0),(1,M1)):
                for v in range(3):
                    o=L_MOD+8192*p+2560*v
                    k(f'v_add_u32 v{T+4}, {o}, v{T+2}'); k(f'v_add_u32 v{T+5}, {o+2048}, v{T+3}')
                    for u in range(4): k(f'ds_read2_b32 v[{base+10*v+2*u}:{base+10*v+2*u+1}], v{T+4} offset0:{32*u} offset1:{32*u+16}')
                    k(f'ds_read2_b32 v[{base+10*v+8}:{base+10*v+9}], v{T+5} offset0:0 offset1:16')
        if c.zsh: modreads()
        k('v_readfirstlane_b32 s15, v247')
        L=self.w0(); k.wait(*zt); self.stamp(9); self.gpost(0)
        k(f's_add_u32 s87, s68, 0'); k('v_lshlrev_b32 v253, 2, v2'); k('buffer_load_dword v247, v253, s[16:19], s87 offen sc1')
        self.end(L)
        if not c.zsh: modreads()
        GO=240
        src=lambda v,u: 10*v+u
        for v in range(3):
            for u in range(10): k(f'v_add_f32 v{M0+src(v,u)}, v{M0+src(v,u)}, v{M1+src(v,u)}')
        L=self.w0(); gt=[]; Lo=k.label('ok'); Le=k.label('e')
        k('v_cmp_ne_u32 vcc, s14, v247'); k(f's_cbranch_vccz {Lo}')
        self.poll('buffer_load_dword v247, v253, s[16:19], s87 offen sc1', ['v_cmp_ne_u32 vcc, s14, v247'])
        k(f'{Lo}:')
        k('s_cmp_lg_u32 s15, 0'); k(f's_cbranch_scc1 {Le}'); k('buffer_inv sc1'); k('s_waitcnt vmcnt(0)'); k(f'{Le}:')
        self.stamp(10)
        k('s_mul_i32 s53, s12, 163840'); k('s_mul_i32 s54, s13, 640'); k('s_add_u32 s53, s53, s54'); k(f's_add_u32 s53, s53, {WS_Z}')
        k(f's_mov_b32 m0, {L_US}')
        for u in range(10):
            if self.zo(): gt.append(k(f'buffer_load_dwordx4 v{GO+u%5 if u else T+7}, s[24:27], s{63 if u==0 else 64+u//5} offen sc1 lds'))
            else: gt.append(k(f'buffer_load_dwordx4 v{GO+u%5}, s[16:19], s53 offen sc1 lds'))
            k('s_add_u32 m0, m0, 1024')
            if u==4: k(f's_add_u32 s53, s53, {8*10240}')
        self.end(L)
        if c.iss_g or c.tr_g:
            self.w_wait(c.tr_g); k.wait(self.trtok)
            k('s_barrier'); self.w_issue(c.iss_g); self.w_tr(c.tr_g)
        self.w_tr(c.tr_b5)
        for v,dst in enumerate((GA,SB,CB)):
            for u in range(5): k(f'v_cvt_pk_bf16_f32 v{T+u}, v{M0+src(v,2*u)}, v{M0+src(v,2*u+1)}')
            for u in range(5): k(f'v_lshlrev_b32 v{dst+2*u}, 16, v{T+u}'); k(f'v_and_b32 v{dst+2*u+1}, 0xffff0000, v{T+u}')
        for u in range(10): k(f'v_add_f32 v{CB+u}, 1.0, v{CB+u}')
        for u in range(5): k(f'v_cvt_pk_bf16_f32 v{T+u}, v{CB+2*u}, v{CB+2*u+1}')
        for u in range(5): k(f'v_lshlrev_b32 v{CB+2*u}, 16, v{T+u}'); k(f'v_and_b32 v{CB+2*u+1}, 0xffff0000, v{T+u}')
        k('s_mul_i32 s52, s3, 160'); k(f's_add_u32 s52, s52, {L_US}'); k(f'v_mul_u32_u24 v248, 2560, v3'); k('v_lshl_add_u32 v248, v2, 2, v248'); k('v_add_u32 v248, s52, v248')
        k('v_add_u32 v249, 1280, v248')
        k('s_lshl_b32 s74, s3, 1')
        k(f'v_and_b32 v{T+8}, 7, v1'); k(f'v_xor_b32 v{T+8}, s74, v{T+8}'); k(f'v_lshlrev_b32 v{T+8}, 4, v{T+8}'); k(f'v_lshl_add_u32 v{T+8}, v1, 7, v{T+8}')
        k(f'v_xor_b32 v{T+9}, 16, v{T+8}')
        k(f'v_bfe_u32 v{T+10}, v1, 2, 3'); k(f'v_xor_b32 v{T+10}, s74, v{T+10}'); k(f'v_lshlrev_b32 v{T+10}, 4, v{T+10}')
        k(f'v_lshrrev_b32 v{T+11}, 2, v1'); k(f'v_lshl_add_u32 v{T+10}, v{T+11}, 7, v{T+10}'); k(f'v_and_b32 v{T+11}, 3, v1'); k(f'v_lshl_add_u32 v{T+10}, v{T+11}, 2, v{T+10}')
        k(f'v_xor_b32 v{T+11}, 16, v{T+10}')
        k('s_lshr_b32 s62, s13, 1'); k('s_lshl_b32 s54, s12, 3'); k('s_add_u32 s62, s62, s54'); k('s_mul_i32 s62, s62, 20480')
        k('s_and_b32 s54, s13, 1'); k('s_lshl_b32 s54, s54, 7'); k('s_add_u32 s62, s62, s54'); k(f's_add_u32 s62, s62, {self.H2}')
        k(f'v_lshrrev_b32 v{T}, 3, v1'); k(f'v_xor_b32 v245, v{T}, v1'); k(f'v_and_b32 v245, 7, v245'); k(f'v_lshlrev_b32 v245, 4, v245'); k(f'v_lshl_add_u32 v245, v{T}, 8, v245')
        self.p3_setup(part=0)
        self.w_issue(c.iss_b5b)
        L=self.w0(); k.wait(*gt); self.end(L)
        self.w_wait([], self.sht)
        k.wait(self.trtok)
        k('s_barrier')
        self.stamp(11)
    def z_touch(self, at):
        k=self.k; c=self.c; T=self.T
        if c.ztouch!=at: return
        L=self.wn(); k('s_sub_u32 s52, s3, 1')
        if self.zo():
            L3=k.label('zt'); k('s_cmp_lg_u32 s3, 3'); k(f's_cbranch_scc1 {L3}')
        if c.pretouch:
            k('s_lshl_b32 s53, s12, 4'); k('s_add_u32 s53, s53, s13'); k('s_mul_i32 s53, s53, 10240'); k('s_mul_i32 s54, s52, 5120'); k('s_add_u32 s53, s53, s54')
            k(f's_add_u32 s53, s53, {WS_Z}'); k('s_cmp_eq_u32 s3, 3'); k('s_cselect_b32 s53, s68, s53')
            k(f'v_min_u32 v{T}, 39, v1'); k(f'v_lshlrev_b32 v{T}, 7, v{T}'); k(f'v_and_b32 v{T+1}, 15, v1'); k(f'v_lshlrev_b32 v{T+1}, 11, v{T+1}')
            k(f'v_bfe_u32 v{T+2}, v1, 0, 1'); k(f'v_mul_u32_u24 v{T+2}, {2048-128}, v{T+2}'); k(f'v_sub_u32 v{T+1}, v{T+1}, v{T+2}')
            k('s_cselect_b64 vcc, -1, 0'); k(f'v_cndmask_b32 v{T}, v{T}, v{T+1}, vcc')
            k(f'buffer_load_dword a246, v{T}, s[16:19], s53 offen')
        if self.zo(): k(f'{L3}:')
        self.end(L)
    def out_touch(self):
        k=self.k; c=self.c; T=self.T
        L=self.wn()
        if c.pretouch and c.alias2:
            k('s_sub_u32 s52, s3, 1')
            k('s_mul_i32 s53, s52, 27'); k(f'v_min_u32 v{T}, 26, v1'); k(f'v_add_u32 v{T}, s53, v{T}'); k(f'v_min_u32 v{T}, 79, v{T}')
            k(f's_mov_b32 s53, {(2**32+9)//10}'); k(f'v_mul_hi_u32 v{T+1}, v{T}, s53'); k(f'v_mul_u32_u24 v{T+2}, 10, v{T+1}'); k(f'v_sub_u32 v{T}, v{T}, v{T+2}')
            k(f'v_lshrrev_b32 v{T+2}, 1, v{T+1}'); k(f'v_lshl_add_u32 v{T+2}, v{T+2}, 5, s69'); k(f'v_sub_u32 v{T+3}, 2048, v{T+2}')
            k(f'v_cmp_eq_u32 vcc, 0, v{T+2}'); k(f'v_mov_b32 v{T+4}, 1024'); k(f'v_cndmask_b32 v{T+3}, v{T+3}, v{T+4}, vcc')
            k(f'v_and_b32 v{T+1}, 1, v{T+1}'); k(f'v_cmp_eq_u32 vcc, 1, v{T+1}'); k(f'v_cndmask_b32 v{T+2}, v{T+2}, v{T+3}, vcc')
            k(f'v_mul_u32_u24 v{T+2}, 1280, v{T+2}'); k(f'v_lshl_add_u32 v{T}, v{T}, 7, v{T+2}')
            srd(k,24,46,S*D*2)
            k(f'buffer_load_dword a247, v{T}, s[24:27], 0 offen')
        self.end(L)
    def sh_store(self):
        k=self.k; c=self.c
        L=self.wn()
        if c.defer_sh:
            L4=k.label('sh'); k('s_cmp_lt_u32 s2, 128'); k(f's_cbranch_scc1 {L4}'); self.sht=self.shuf_store(); k(f'{L4}:')
        self.end(L)
    def p2b(self):
        k=self.k; c=self.c; T=self.T; FA=self.FA; TW=self.TW; G4=self.G4; XV=self.XV; GA,SB,CB=self.GA,self.SB,self.CB
        ZF=20; VV=32; PB=80; YY=[ZF,32]
        for mt in range(3):
            for h in range(2): k(f'ds_read2_b32 v[{ZF+4*mt+2*h}:{ZF+4*mt+2*h+1}], v{248+h} offset0:{D2B[mt]} offset1:{160+D2B[mt]}')
        if c.otouch=='b6': self.out_touch()
        if c.shst=='b6': self.sh_store()
        self.pf('b6'); self.w_issue(c.iss_b6)
        def mA(ab,mt,o):
            d=VV+24*ab+8*mt+4*o
            return f'v_mfma_f32_16x16x32_bf16 v[{d}:{d+3}], v[{ZF+4*mt}:{ZF+4*mt+3}], v[{FA+8*ab+4*o}:{FA+8*ab+4*o+3}], 0'
        def mB(ab,mt,et):
            d=f'v[{YY[ab]+4*et}:{YY[ab]+4*et+3}]'
            return f'v_mfma_f32_16x16x32_bf16 {d}, v[{G4+12*et+4*mt}:{G4+12*et+4*mt+3}], v[{PB+12*ab+4*mt}:{PB+12*ab+4*mt+3}], {d if mt else 0}'
        def tw(ab,mt):
            re=VV+24*ab+8*mt; im=re+4; cc=TW+8*mt; s=cc+4; o=[]
            if c.pk2:
                P=lambda r,j: f'v[{r+2*j}:{r+2*j+1}]'
                for j in range(2): o+=[f'v_pk_mul_f32 {P(T,j)}, {P(re,j)}, {P(cc,j)}', f'v_pk_mul_f32 {P(T+4,j)}, {P(im,j)}, {P(cc,j)}']
                for j in range(2): o+=[f'v_pk_fma_f32 {P(T,j)}, {P(im,j)}, {P(s,j)}, {P(T,j)}', f'v_pk_fma_f32 {P(T+4,j)}, {P(re,j)}, {P(s,j)}, {P(T+4,j)} neg_lo:[1,0,0] neg_hi:[1,0,0]']
                for j in range(4): o.append(f'v_cvt_pk_bf16_f32 v{PB+12*ab+4*mt+j}, v{T+j}, v{T+4+j}')
                return o
            for j in range(4): o+=[f'v_mul_f32 v{T+j}, v{re+j}, v{cc+j}', f'v_mul_f32 v{T+4+j}, v{im+j}, v{cc+j}']
            for j in range(4): o+=[f'v_fmac_f32 v{T+j}, v{im+j}, v{s+j}', f'v_fma_f32 v{T+4+j}, -v{re+j}, v{s+j}, v{T+4+j}']
            for j in range(4): o.append(f'v_cvt_pk_bf16_f32 v{PB+12*ab+4*mt+j}, v{T+j}, v{T+4+j}')
            return o
        def mix(valu, mf, first=2, every=4):
            if c.pk2: every=max(1,(every*3+4)//5)
            for n,x in enumerate(valu):
                k(x)
                if mf and n>=first and (n-first)%every==0: k(mf.pop(0))
            for x in mf: k(x)
        for mt in range(3):
            for o in range(2): k(mA(0,mt,o))
        if c.defer_sh:
            L=self.w0()
            sh=c.rec.bit_length()-1
            k(f'v_lshrrev_b32 v253, 2, v1'); k(f'v_lshlrev_b32 v253, {sh+8}, v253'); k(f'v_and_b32 v246, 3, v1'); k(f'v_lshl_add_u32 v253, v246, 4, v253')
            L5=k.label('g2'); k('s_cmp_lt_u32 s2, 128'); k(f's_cbranch_scc1 {L5}')
            k(f's_lshl_b32 s52, s2, {sh}'); k(f's_add_u32 s52, s52, {WS_FLG+FL_GF2}'); self.rpost('s52',96); k(f'{L5}:')
            self.end(L)
        mix(tw(0,0),[mA(1,mt,o) for mt in range(3) for o in range(2)],first=0,every=3)
        mix(tw(0,1),[mB(0,0,et) for et in range(3)])
        mix(tw(0,2),[mB(0,1,et) for et in range(3)])
        mix(tw(1,0),[mB(0,2,et) for et in range(3)])
        mix(tw(1,1),[mB(1,0,et) for et in range(3)])
        mix(tw(1,2),[mB(1,1,et) for et in range(3)])
        SS=[230,231,254,255]
        def st1(ab):
            o=[f'v_fmac_f32 v{XV+10*ab+u}, v{GA+u}, v{YY[ab]+u}' for u in range(10)]
            if c.pk2:
                Q=lambda r,u: f'v[{r+2*u}:{r+2*u+1}]'; X=XV+10*ab; A=T if ab==0 else T+4
                o=[f'v_pk_fma_f32 {Q(X,u)}, {Q(GA,u)}, {Q(YY[ab],u)}, {Q(X,u)}' for u in range(5)]
                o+=[f'v_pk_add_f32 {Q(A,0)}, {Q(X,0)}, {Q(X,1)}', f'v_pk_mul_f32 {Q(A,1)}, {Q(X,0)}, {Q(X,0)}', f'v_pk_fma_f32 {Q(A,1)}, {Q(X,1)}, {Q(X,1)}, {Q(A,1)}']
                for u in range(2,5): o+=[f'v_pk_add_f32 {Q(A,0)}, {Q(A,0)}, {Q(X,u)}', f'v_pk_fma_f32 {Q(A,1)}, {Q(X,u)}, {Q(X,u)}, {Q(A,1)}']
                o+=[f'v_add_f32 v{SS[2*ab]}, v{A}, v{A+1}', f'v_add_f32 v{SS[2*ab+1]}, v{A+2}, v{A+3}']
                return o
            o+=[f'v_add_f32 v{SS[2*ab]}, v{XV+10*ab}, v{XV+10*ab+1}', f'v_mul_f32 v{SS[2*ab+1]}, v{XV+10*ab}, v{XV+10*ab}', f'v_fmac_f32 v{SS[2*ab+1]}, v{XV+10*ab+1}, v{XV+10*ab+1}']
            for u in range(2,10): o+=[f'v_add_f32 v{SS[2*ab]}, v{SS[2*ab]}, v{XV+10*ab+u}', f'v_fmac_f32 v{SS[2*ab+1]}, v{XV+10*ab+u}, v{XV+10*ab+u}']
            return o
        mix(st1(0),[mB(1,2,et) for et in range(3)],first=1,every=2)
        self.stamp(12)
        self.w_issue(c.iss_stb)
        for x in st1(1): k(x)
        k(f'v_permlane16_swap_b32 v{SS[0]}, v{SS[1]}'); k(f'v_permlane16_swap_b32 v{SS[2]}, v{SS[3]}')
        k(f'v_add_f32 v{T}, v{SS[0]}, v{SS[1]}'); k(f'v_add_f32 v{T+2}, v{SS[2]}, v{SS[3]}')
        k(f'v_permlane32_swap_b32 v{T}, v{T+2}'); k(f'v_add_f32 v{T}, v{T}, v{T+2}')
        for sh in (8,4,2,1): k(f'v_add_f32_dpp v{T}, v{T}, v{T} row_ror:{sh} row_mask:0xf bank_mask:0xf')
        k(f'v_mul_f32 v{T}, 0x3acccccd, v{T}')
        for u in range(4): k(f'v_readlane_b32 s{52+u}, v{T}, {16*u}')
        for ab in range(2): k(f'v_mov_b32 v{T+2+ab}, s{53+2*ab}'); k(f'v_mov_b32 v{T+4+ab}, s{52+2*ab}')
        for ab in range(2): k(f'v_fma_f32 v{T+2+ab}, -v{T+4+ab}, v{T+4+ab}, v{T+2+ab}')
        for ab in range(2): k(f'v_max_f32 v{T+2+ab}, 0, v{T+2+ab}')
        for ab in range(2): k(f'v_add_f32 v{T+2+ab}, 0x3727c5ac, v{T+2+ab}')
        for ab in range(2): k(f'v_rsq_f32 v{T+2+ab}, v{T+2+ab}')
        H=48
        for ab in range(2): k(f'v_mul_f32 v{T+4+ab}, -v{T+4+ab}, v{T+2+ab}')
        for ab in range(2):
            if c.pk2:
                Q=lambda r,u: f'v[{r+2*u}:{r+2*u+1}]'
                for u in range(5): k(f'v_pk_fma_f32 {Q(H+12*ab,u)}, {Q(XV+10*ab,u)}, v[{T+2}:{T+3}], v[{T+4}:{T+5}] op_sel:[0,{ab},{ab}] op_sel_hi:[1,{ab},{ab}]')
                for u in range(5): k(f'v_pk_fma_f32 {Q(H+12*ab,u)}, {Q(H+12*ab,u)}, {Q(CB,u)}, {Q(SB,u)}')
            else:
              for u in range(10): k(f'v_fma_f32 v{H+12*ab+u}, v{XV+10*ab+u}, v{T+2+ab}, v{T+4+ab}')
              for u in range(10): k(f'v_fma_f32 v{H+12*ab+u}, v{H+12*ab+u}, v{CB+u}, v{SB+u}')
            for u in range(5): k(f'v_cvt_pk_bf16_f32 v{PB+8*ab+u}, v{H+12*ab+2*u}, v{H+12*ab+2*u+1}')
            k(f'ds_write_b128 v{T+8+ab}, v[{PB+8*ab}:{PB+8*ab+3}] offset:{L_ZS}')
            t=k(f'ds_write_b32 v{T+10+ab}, v{PB+8*ab+4} offset:{L_ZS+8192}')
        self.w_wait(c.tr_b7); k.wait(t)
        k('s_barrier')
        self.stamp(13)
        L=self.w0(); ht=[]
        R=136
        for u in range(10): k(f'ds_read_b128 v[{R+4*u}:{R+4*u+3}], v18 offset:{L_ZS+1024*u}')
        for u in range(10):
            if u%2==0 and u: k('s_add_u32 s62, s62, 4096')
            ht.append(k(f'buffer_store_dwordx4 v[{R+4*u}:{R+4*u+3}], v245, s[16:19], s62 offen offset:{2048*(u%2)} {c.hfl}'))
        self.end(L)
        self.w_issue(c.iss_b7)
        k(f'v_add_u32 v250, {L_X1-L_XR}, v250'); k(f'v_add_u32 v251, {L_X1-L_XR}, v251'); k(f's_add_u32 s72, s72, {L_X1-L_XR}')
        for ab in range(2):
            for u in range(5): k(f'v_cvt_pk_bf16_f32 v{20+8*ab+u}, v{XV+10*ab+2*u}, v{XV+10*ab+2*u+1}')
            for u in range(10):
                op='ds_write_b16_d16_hi' if u&1 else 'ds_write_b16'
                if u<8: t=k(f'{op} v250, v{20+8*ab+(u>>1)} offset:{1280*ab+32*u}')
                else: t=k(f'{op} v251, v{20+8*ab+(u>>1)} offset:{1280*ab+1024+32*(u-8)}')
        k(f'v_add_u32 v{T+2}, s72, v18'); k(f'v_lshlrev_b32 v107, 2, v1'); k(f'v_add_u32 v{T+3}, s72, v107')
        L=self.w0(); k.wait(*ht); self.stamp(14); self.gpost(1)
        k(f's_add_u32 s63, s68, 4096'); k('v_lshlrev_b32 v253, 2, v2'); k('buffer_load_dword v247, v253, s[16:19], s63 offen sc1')
        self.end(L)
        self.gf2_issue()
        k.wait(t)
        X1R=96
        for ab in range(2):
            k(f'ds_read_b128 v[{X1R+4*ab}:{X1R+4*ab+3}], v{T+2} offset:{1280*ab}'); tx=k(f'ds_read_b32 v{X1R+8+ab}, v{T+3} offset:{1280*ab+1024}')
        tw=self.w_tr(c.tr_b7)
        if c.w4: self.w4_setup()
        L=self.w0(); Lo=k.label('ok'); Le=k.label('e')
        k('v_cmp_ne_u32 vcc, s14, v247'); k(f's_cbranch_vccz {Lo}')
        self.poll('buffer_load_dword v247, v253, s[16:19], s63 offen sc1', ['v_cmp_ne_u32 vcc, s14, v247'])
        k(f'{Lo}:')
        k('s_cmp_lg_u32 s15, 0'); k(f's_cbranch_scc1 {Le}'); k('buffer_inv sc1'); k('s_waitcnt vmcnt(0)'); k(f'{Le}:')
        self.end(L)
        self.gf2_check()
        k.wait(tx)
        if tw: k.wait(tw)
        k('s_barrier')
        self.stamp(15)
    def gf2_issue(self):
        k=self.k; c=self.c; sh=c.rec.bit_length()-1
        if not c.defer_sh: return
        self.G2L='buffer_load_dword v244, v246, s[16:19], s87 offen sc1\nbuffer_load_dword v245, v246, s[16:19], s86 offen sc1'
        L=self.w0(); k(f's_lshl_b32 s87, s12, {sh+8}'); k(f's_add_u32 s87, s87, {WS_FLG+FL_GF2+128*c.rec}'); k(f's_add_u32 s86, s87, {64*c.rec}'); k(f'v_lshlrev_b32 v246, {sh}, v1')
        k(self.G2L); self.end(L)
    def gf2_check(self):
        k=self.k
        if not self.c.defer_sh: return
        L=self.w0(); Lo=k.label('ok'); chk=['v_xor_b32 v244, s14, v244', 'v_xor_b32 v245, s14, v245', 'v_or_b32 v244, v244, v245', 'v_cmp_ne_u32 vcc, 0, v244']
        for x in chk: k(x)
        k(f's_cbranch_vccz {Lo}'); self.poll(self.G2L, chk); k(f'{Lo}:'); self.end(L)

def make(path, **kw):
    c=Cfg()
    for a,b in kw.items():
        assert hasattr(c,a), a
        setattr(c,a,b)
    g=Gen2(c); k=g.build()
    t,d=k.finish(table_text(NAME+'_tab'))
    hdr=open('header.txt').read()
    open(path,'w').write(hdr+'; @launch grid=(256,1,1) block=(256,1,1) lds=163840\n.amdgcn_target "amdgcn-amd-amdhsa--gfx950"\n'+t+d)
    print(path,k.stats)
NOW=dict(iss_early=[],iss_role=[],iss_ld=[],iss_b2=[],iss_b2b=[],iss_b3=[],iss_b4=[],iss_b5=[],iss_g=[],iss_b5b=[],iss_b6=[],iss_stb=[],iss_b7=[],tr_b2=[],tr_b3=[],tr_b4=[],tr_b5=[],tr_b7=[],tr_c0=[],sweep=False)
if __name__=='__main__':
    make('f_dbg.s',prof=True,noalias=True); make('f.s'); make('v_a.s',prof=True); make('v_b.s',prof=True,**NOW)
```

```python
S=2048; D=640; F=1536
WS_U=0
WS_Z=0x300000
WS_MOD=0x600000
WS_WDS=0x700000
WS_G=0x900000
WS_FLG=0x1000000
WS_DBG=0x1180000
WS_SIZE=0x1200000
WS_H2=WS_U; WS_X1=WS_Z
MODP=16384
KA=dict(x=0,wg=48,wu=56,wd=64,c=72,wmod=80,out=88,dbg=96,ws=104)
from layout import token_of, h2_col, p4_col
def mod_dst(v, d):
    return {0:0,1:640,5:1280,2:2048,3:2688,4:3328}[v]+d
```

```python
from gen_g import *
import random, sys, json
ST={0,6,7,8,9,11,13,15,16,17,20,21,26,31}
PTS=['early','ld','role','b2','b2b','b2c','b3','b4','b5','g','b5b','b6','stb','b7','b9']
IP=dict(early=0,ld=0,role=0,b2=1,b2b=1,b2c=2,b3=2,b4=3,mid4=3,b5=4,g=5,b5b=5,b6=6,stb=6,b7=7,b9=8)
TP=dict(b2=(1,2),b3=(2,3),b4=(3,5),b5=(4,6),g=(5,6),b7=(7,8),c0=(9,99),c0b=(10,99))
def mk(pts, **kw):
    if isinstance(pts,str):
        q=[]
        for w in pts.split():
            p,_,n=w.partition(':'); q+=[p]*int(n or 2)
        pts=q
    assert len(pts)==20, len(pts)
    d={('iss_'+p):[] for p in PTS+['mid4']}; d.update({('tr_'+p):[] for p in TP})
    for st,p in enumerate(pts): d['iss_'+p].append(st)
    for st,p in enumerate(pts):
        cands=[t for t,(a,b) in TP.items() if a>IP[p]]
        if st<10: cands=[t for t in cands if TP[t][1]<=IP[pts[st+10]]]
        elif st<14: cands=[t for t in cands if TP[t][0]<=7]
        else:
            cands=[t for t in cands if t in ('b7','c0','c0b')]
            cands=['c0b'] if IP[p]>=8 else ([c for c in cands if c!='c0b'])
            if IP[p]<=5 and not kw.get('lazy'): cands=['b7']
        if not cands: return None
        d['tr_'+cands[-1]].append(st)
    kw.pop('lazy',None); d.update(kw)
    if d.pop('ride',False): d['w4']=d['iss_b9']; d['iss_b9']=[]
    return d
if __name__=='__main__':
    L=json.load(open(sys.argv[1]))
    names=[]
    for i,(pts,kw) in enumerate(L):
        d=mk(pts,**kw)
        assert d, pts
        make(f's_{i}.s',prof=True,stamps=ST,**d); names.append(f's_{i}.s')
    print(' '.join(names))
```

```python
from asmgen import *
from lay2 import *
from gen_p2 import table_text, f32, D2B
from gen_p34 import Side, K1c, K2c
import sys

NAME='adaLN_cond__spectral_fnet__geglu_ffn__prompt_kernel'
L_RING=40960; WST=24576
L_TAB=20480; L_MOD=20480; L_X1=20480; L_XR=10240; L_ZS=10240; L_US=0; L_CA=37888
L_H=[0,40960]
FL_GRP=32768; FL_GF=0x80000; FL_GF2=0x100000; FL_XC=0

class EV(dict):
    def __setitem__(self,a,b):
        assert a not in self, ('event collision',a)
        dict.__setitem__(self,a,b)
class Cfg:
    prof=False; noalias=False; force_slow=False
    iss_early=[0]; iss_ld=[]; iss_role=[1]; iss_b2=[2,3]; iss_b2b=[4]; iss_b2c=[]; iss_b3=[5]; iss_b4=[6]; iss_mid4=[]; iss_b5=[]; iss_g=[7,8]; iss_b5b=[]; iss_b6=[]; iss_stb=[9]; iss_b7=[]; iss_b9=[]
    tr_b2=[0]; tr_b3=[1,2,3]; tr_b4=[4]; tr_b5=[5,6]; tr_b7=[7,8]; tr_c0=[9]; tr_c0b=[]; tr_g=[]; c0bar=70
    pf={}
    slot={i:i%10 for i in range(20)}
    nwd1=5; poll1=100; post0=40; chk0=40; post1=72; post2n=40; post3=30; chk2=40; chk3=34; xbar={1:18,2:18,3:18}; gbwait=20; outfl='nt'; stamps=None; wsp=3; hold1=6; hold2=6; post2=10; hops=True; x1fl=''; x1sep=False; gfl=['sc1','sc1','sc1','']
    defer_sh=True; usplit=True; c0split=True; alias2=True; per=[16,16,15]; nob2p=False; a2u=[1]; rdp=[1,3,5,8]; p4pair=True; tailopt=True; shdma='role'; post2s=0; pd2=30; pd3=24; pk2=True; zout=True; galias=True; wdlate=False; zsh=False; cont=True; pk3=True; prio=0; rate=0; split=True; tlb=0; shlate=True; nl1=47; gap3=3; gap4=5; ep_sp=30; pk=False; pkcost=2; zfl=''; hfl=''; gnt=''; alias3=True; w4=[]; sweep_at='sw_early'; pfd=2; xloc=True; burst_early=True; gap012=4; zpar=False; c0n=4; wbwho=3; wb4=None; hopstep=4096; hoptg=False; rec=32; shst='b4'; ztouch='b2'; otouch='none'; gtouch=''; utouch=''; a2pre=[0]; a2post=[1]; gpfl='sc1'; gasync=False; gsleep=0; gsleep2=0; wb_at=[]; sweep=True; pretouch=True; codetouch=True; pace=0; pacewb=False; probe=None

def srd(k, r, lo, size):
    k(f's_mov_b32 s{r}, s{lo}'); k(f's_and_b32 s{r+1}, s{lo+1}, 0xffff'); k(f's_mov_b32 s{r+2}, {size}'); k(f's_mov_b32 s{r+3}, 0x20000')

class Gen:
    def __init__(self, cfg):
        self.c=cfg; self.k=Kernel(NAME); self.wt={}; self.nst=0
        self.H2=0x1180000-0x300000*0 if False else WS_H2; self.X1=WS_X1
        if cfg.noalias: self.H2=0x1200000; self.X1=0x1500000
        if cfg.x1sep: self.X1=0x1500000
        self.wssize=0x1800000 if cfg.noalias or cfg.x1sep else WS_SIZE
    def stamp(self, slot):
        if self.c.probe==slot:
            self.k('s_memrealtime s[98:99]'); self.k('s_waitcnt lgkmcnt(0)'); self.k('s_sub_u32 s95, s98, s96'); self.k('s_lshl_b32 s95, s95, 2')
        if not self.c.prof or slot<0 or (self.c.stamps and slot not in self.c.stamps): return
        k=self.k
        k('s_memrealtime s[90:91]'); k('s_memtime s[100:101]'); k('s_waitcnt lgkmcnt(0)')
        k(f'v_writelane_b32 v19, s90, {slot}'); k(f'v_writelane_b32 v19, s100, {32+slot}')
    def stamp_flush(self):
        if not self.c.prof: return
        k=self.k; L=k.label('sf')
        k('s_mov_b64 exec, -1')
        k('s_lshl_b32 s94, s2, 8'); k('s_lshl_b32 s93, s3, 16'); k('s_add_u32 s94, s94, s93'); k(f's_add_u32 s94, s94, {WS_DBG}')
        k('v_lshlrev_b32 v1, 2, v1'); k('buffer_store_dword v19, v1, s[16:19], s94 offen')
        k(f'{L}:')
    def w0(self):
        if self.who: self.k.mute=(self.who!='w0'); self.nop=True; return None
        assert self.k.curcls is None
        L=self.k.label('w0'); self.k('s_cmp_lg_u32 s3, 0'); self.k(f's_cbranch_scc1 {L}'); self.k.curcls='w0'; self.open=L; return L
    def wn(self):
        if self.who: self.k.mute=(self.who!='wn'); self.nop=True; return None
        assert self.k.curcls is None
        L=self.k.label('wn'); self.k('s_cmp_eq_u32 s3, 0'); self.k(f's_cbranch_scc1 {L}'); self.k.curcls='wn'; self.open=L; return L
    open=None
    who=None; nop=False; q=None
    def end(self,L):
        if L is None: self.k.mute=False; self.nop=False; return
        c=None
        if L==self.open: c=self.k.curcls; self.k.curcls=None; self.open=None
        self.k(f'{L}:'); self.k.ins[-1].join=c
    def w_setup(self):
        k=self.k; T=240
        k('s_cmp_le_u32 s3, 2'); k('s_cselect_b32 s28, s36, s38'); k('s_cselect_b32 s29, s37, s39'); k('s_and_b32 s29, s29, 0xffff')
        k(f's_mov_b32 s30, {D*F*2}'); k('s_mov_b32 s31, 0x20000')
        k('s_cmp_le_u32 s3, 1'); k('s_cselect_b32 s32, s36, s38'); k('s_cselect_b32 s33, s37, s39'); k('s_and_b32 s33, s33, 0xffff')
        k(f's_mov_b32 s34, {D*F*2}'); k('s_mov_b32 s35, 0x20000')
        k('s_sub_u32 s52, s3, 1'); k('s_lshl_b32 s56, s52, 12'); k(f's_add_u32 s56, s56, {L_RING}')
        k('s_mul_i32 s57, s13, 192')
        k(f's_mov_b32 s53, {(2**32+11)//12}')
        k('s_lshl_b32 s52, s52, 2')
        for m in range(4):
            k(f's_add_u32 s54, s52, {m}'); k('s_cmp_ge_u32 s54, 6'); k('s_cselect_b32 s55, 6, 0'); k('s_sub_u32 s54, s54, s55'); k('s_lshl_b32 s54, s54, 6')
            k(f'v_add_u32 v{T}, s54, v1'); k(f'v_mul_hi_u32 v{T+1}, v{T}, s53')
            k(f'v_mul_u32_u24 v{T+2}, 12, v{T+1}'); k(f'v_sub_u32 v{T+2}, v{T}, v{T+2}'); k(f'v_lshlrev_b32 v{T+2}, 4, v{T+2}')
            k(f'v_lshrrev_b32 v{T+3}, 3, v{T+1}'); k(f'v_and_b32 v{T+4}, 7, v{T+1}')
            k(f'v_lshl_add_u32 v{T+5}, v{T+4}, 4, v{T+3}'); k(f'v_mul_u32_u24 v{T+5}, 3072, v{T+5}'); k(f'v_add_u32 v{4+m}, v{T+5}, v{T+2}')
            k(f'v_lshrrev_b32 v{T+5}, 1, v{T+4}'); k(f'v_lshl_add_u32 v{T+5}, v{T+3}, 2, v{T+5}'); k(f'v_and_b32 v{T+4}, 1, v{T+4}')
            k(f'v_lshl_add_u32 v{T+5}, v{T+4}, 4, v{T+5}'); k(f'v_mul_u32_u24 v{T+5}, 3072, v{T+5}'); k(f'v_add_u32 v{8+m}, v{T+5}, v{T+2}')
    def w_setup_tr(self):
        k=self.k; T=240
        k(f'v_lshrrev_b32 v{T}, 2, v2'); k(f'v_lshl_add_u32 v{T}, v3, 3, v{T}'); k(f'v_mul_u32_u24 v{T}, 192, v{T}')
        k('s_mul_i32 s52, s3, 48'); k(f's_add_u32 s52, s52, {L_RING}'); k(f'v_add_u32 v{T}, s52, v{T}')
        k(f'v_and_b32 v{T+1}, 3, v2'); k(f'v_lshl_add_u32 v12, v{T+1}, 3, v{T}')
        k(f'v_and_b32 v{T+1}, 1, v2'); k(f'v_lshl_add_u32 v13, v{T+1}, 3, v{T}'); k(f'v_bfe_u32 v{T+1}, v2, 1, 1')
        k(f'v_mul_u32_u24 v{T+1}, 6144, v{T+1}'); k(f'v_add3_u32 v13, v13, v{T+1}, 32')
        for p in (1,2):
            k(f'v_add_u32 v{12+2*p}, {2*p*WST}, v12'); k(f'v_add_u32 v{13+2*p}, {2*p*WST}, v13')
    def w_issue(self, stages, then=None, masked=False, burst=False):
        k=self.k
        if not stages:
            if then: k.wait(*then)
            return
        if self.who and self.c.rate and not burst:
            if self.who=='wn':
                for ks in stages:
                    reg=4 if ks<16 else 8
                    row=(4*(ks&3)+128*(ks>>2)) if ks<16 else 512+32*(ks-16)
                    for m in range(4):
                        self.q.append((ks, ([f's_add_u32 s58, s57, {row*3072}'] if m==0 else [])+[f's_add_u32 m0, s56, {self.c.slot[ks]*12288+1024*m}'], f'buffer_load_dwordx4 v{reg+m}, s[{28 if m<2 else 32}:{31 if m<2 else 35}], s58 offen lds'))
            return
        if masked: k('s_cmp_eq_u32 s3, 0'); k('s_cselect_b64 exec, 0, -1')
        else: L=self.wn()
        for st in stages:
            for ks in (st,):
                reg=4 if ks<16 else 8
                row=(4*(ks&3)+128*(ks>>2)) if ks<16 else 512+32*(ks-16)
                k(f's_add_u32 s58, s57, {row*3072}'); k(f's_add_u32 m0, s56, {self.c.slot[st]*12288}')
                for m in range(4):
                    t=k(f'buffer_load_dwordx4 v{reg+m}, s[{28 if m<2 else 32}:{31 if m<2 else 35}], s58 offen lds')
                    self.wt.setdefault(st,[]).append(t)
                    if m<3: k('s_add_u32 m0, m0, 1024')
        if masked: k('s_mov_b64 exec, -1')
        elif then:
            k.wait(*then); self.end(L); L=self.w0(); k.wait(*then); self.end(L); k.forget(*then)
        else: self.end(L)
    def pf_setup(self):
        k=self.k; T=240
        k('s_lshr_b32 s52, s2, 3'); k('s_and_b32 s53, s52, 15'); k('s_lshl_b32 s53, s53, 1'); k('s_lshr_b32 s52, s52, 4')
        k(f's_mul_i32 s92, s52, {4*3072}'); k(f's_mul_i32 s93, s52, {32*3072}')
        k(f'v_min_u32 v{T}, 47, v1'); k(f'v_cmp_le_u32 vcc, 24, v{T}'); k(f'v_cndmask_b32 v{T+1}, 0, 1, vcc')
        k(f'v_mul_u32_u24 v{T+2}, 24, v{T+1}'); k(f'v_sub_u32 v{T+2}, v{T}, v{T+2}'); k(f'v_lshlrev_b32 v{T+2}, 7, v{T+2}')
        k(f'v_add_u32 v{T+1}, s53, v{T+1}')
        k(f'v_lshrrev_b32 v{T+3}, 3, v{T+1}'); k(f'v_and_b32 v{T+4}, 7, v{T+1}')
        k(f'v_lshl_add_u32 v{T+5}, v{T+4}, 4, v{T+3}'); k(f'v_mul_u32_u24 v{T+5}, 3072, v{T+5}'); k(f'v_add_u32 v{T+5}, v{T+5}, v{T+2}'); k(f'v_accvgpr_write_b32 a244, v{T+5}')
        k(f'v_lshrrev_b32 v{T+5}, 1, v{T+4}'); k(f'v_lshl_add_u32 v{T+5}, v{T+3}, 2, v{T+5}'); k(f'v_and_b32 v{T+4}, 1, v{T+4}')
        k(f'v_lshl_add_u32 v{T+5}, v{T+4}, 4, v{T+5}'); k(f'v_mul_u32_u24 v{T+5}, 3072, v{T+5}'); k(f'v_add_u32 v{T+5}, v{T+5}, v{T+2}'); k(f'v_accvgpr_write_b32 a245, v{T+5}')
    def pf(self, point):
        sts=self.c.pf.get(point,[])
        if not sts: return
        k=self.k; L=k.label('pf'); k('s_cmp_lg_u32 s3, 2'); k(f's_cbranch_scc1 {L}')
        for st in sts:
            ks=2*st; row=(4*(ks&3)+128*(ks>>2)) if ks<16 else 512+32*(ks-16)
            k(f'v_accvgpr_read_b32 v252, a{244 if ks<16 else 245}')
            k(f's_add_u32 s58, s{92 if ks<16 else 93}, {row*3072}')
            k('buffer_load_dword a246, v252, s[28:31], s58 offen'); k('buffer_load_dword a247, v252, s[32:35], s58 offen')
            if point=='chain' and st!=sts[-1]: k(f's_waitcnt vmcnt({2*self.c.pfd-2})')
        self.end(L)
    def q_pop(self):
        k=self.k; h=k.hook; k.hook=None
        ks,pre,op=self.q.pop(0)
        for x in pre: k(x)
        self.wt.setdefault(ks,[]).append(k(op)); k.hook=h; self.acc=0
    def q_flush(self, stages=None):
        while self.q and (stages is None or any(e[0] in stages for e in self.q)): self.q_pop()
    def pace(self, i):
        if i.kind in ('label','dir'): return
        self.acc+=4 if i.kind=='mfma' else (2 if i.op.startswith(('v_exp','v_rcp','v_cos','v_rsq')) else 1)
        if ('exec',0) in i.dst or ('exec',1) in i.dst: self.ezf=i.text.replace(' ','') not in ('s_mov_b64exec,-1','s_mov_b32exec_hi,-1')
        if self.q and self.acc>=self.c.rate and not self.nop and not self.ezf and i.kind in ('valu','ds','mfma') and not self.sccl: self.q_pop()
    acc=0; ezf=False; sccl=False
    def w_wait(self, stages, extra=()):
        if self.who=='wn': self.q_flush(stages)
        if self.who=='w0': return
        toks=[t for st in stages for t in self.wt[st]]+list(extra)
        if not toks: return
        if self.k.curcls=='wn': self.k.wait(*toks)
        else:
            L=self.wn(); self.k.wait(*toks); self.end(L)
    def w_tr_list(self, stages):
        out=[]
        for st in stages:
            sl=self.c.slot[st]
            for ks in (st,):
                base=(sl&3)*12288; r0=12+2*(sl>>2)
                for T in range(3):
                    for hh in range(2):
                        a=(ks*3+T)*4+2*hh
                        out.append(f'ds_read_b64_tr_b16 a[{a}:{a+1}], v{r0+1 if T==2 else r0} offset:{base+768*hh+(6144 if T==1 else 0)}')
        return out
    def w_tr(self, stages):
        t=None
        for s in self.w_tr_list(stages): t=self.k(s); self.trtok=t
        return t
    trtok=None
    def check_sched(self):
        c=self.c
        ip=dict(early=0,ld=0,role=0,b2=1,b2b=1,b2c=2,b3=2,b4=3,mid4=3,b5=4,g=5,b5b=5,b6=6,stb=6,b7=7,b9=8)
        tp=dict(b2=(1,2),b3=(2,3),b4=(3,5),b5=(4,6),g=(5,6),b7=(7,8),c0=(9,99),c0b=(10,99))
        I={}; Tr={}
        if c.nob2p: ip['b2c']=1
        for n,p in ip.items():
            for st in getattr(c,'iss_'+n)+(c.w4 if n=='b9' else []): assert st not in I; I[st]=p
        for n,p in tp.items():
            for st in getattr(c,'tr_'+n): assert st not in Tr; Tr[st]=p
        if not I: return
        assert sorted(I)==sorted(Tr)==list(range(20)), (I,Tr)
        for st in I:
            assert I[st]<Tr[st][0], ('tr before issue',st)
            if Tr[st][0]>=9: assert c.slot[st]>=4
            if st>=18: assert Tr[st][0]>=7
            if c.shlate and c.slot[st]>=8: assert I[st]>=2
            for o in I:
                if o!=st and c.slot[o]==c.slot[st] and (I[o],o)<(I[st],st): assert Tr[o][1]<=I[st], ('slot reuse',o,st)
    def early(self):
        k=self.k; c=self.c
        k(f's_add_u32 s60, s50, {WS_FLG}'); k('s_addc_u32 s61, s51, 0'); k('s_load_dword s14, s[60:61], 0')
        srd(k,16,50,self.wssize)
        self.w_setup()
        if c.sweep:
            L=self.w0()
            k('v_lshlrev_b32 v240, 7, v1'); k('s_mul_i32 s52, s2, 7680')
            k('s_mov_b32 s32, s38'); k('s_and_b32 s33, s39, 0xffff')
            k('buffer_load_dword a246, v240, s[28:31], s52 offen'); k('buffer_load_dword a246, v240, s[32:35], s52 offen')
            self.end(L)
        if c.pf: self.pf_setup(); self.pf('early')
        self.w_setup_tr()
        k('v_lshlrev_b32 v18, 4, v1')
        Lp=k.label('pc'); k('s_getpc_b64 s[52:53]'); k(f'{Lp}:'); k(f's_add_u32 s52, s52, {NAME}_tab-{Lp}'); k('s_addc_u32 s53, s53, 0'); srd(k,24,52,17408)
        k('s_lshl_b32 s53, s3, 12'); k(f's_add_u32 m0, s53, {L_TAB}'); self.tabt=[]
        for u in range(4): self.tabt.append(k(f'buffer_load_dwordx4 v18, s[24:27], s53 offen offset:{1024*u} lds'))
        k(f's_mov_b32 m0, {L_TAB+16384}'); k('s_mov_b32 s53, 16384')
        self.tabt.append(k(f'buffer_load_dwordx4 v18, s[24:27], s53 offen lds'))
    def role_ln_a(self):
        k=self.k
        X=20; X2=52
        k('s_mul_i32 s52, s3, 320')
        k(f's_mov_b32 s53, 655360'); k('v_mul_u32_u24 v24, s53, v3'); k('v_add_u32 v24, s52, v24')
        k('v_lshl_add_u32 v250, v2, 4, v24'); k('v_lshl_add_u32 v251, v2, 2, v24')
        if self.c.xloc:
            k('s_and_b32 s66, s2, 7'); k('s_lshl_b32 s66, s66, 1'); k('s_and_b32 s54, s13, 1'); k('s_add_u32 s66, s66, s54')
            k('s_sub_u32 s54, 32, s66'); k('s_cmp_eq_u32 s66, 0'); k('s_cselect_b32 s54, 16, s54')
            k('s_bitcmp1_b32 s13, 2'); k('s_cselect_b32 s66, s54, s66'); k('s_bitcmp1_b32 s13, 1'); k('s_cselect_b32 s54, 32, 0'); k('s_add_u32 s66, s66, s54')
        else: k('s_and_b32 s66, s2, 7'); k('s_lshl_b32 s54, s13, 3'); k('s_add_u32 s66, s66, s54')
        k('s_mul_i32 s54, s66, 1280')
        srd(k,20,4,S*D*2)
        for r in range(8):
            k(f'buffer_load_dwordx4 v[{X+4*r}:{X+4*r+3}], v250, s[20:23], s54 offen')
            k(f'buffer_load_dword v{X2+r}, v251, s[20:23], s54 offen offset:256')
            if r<7: k('s_add_u32 s54, s54, 81920')
    def role_ln(self):
        k=self.k
        X=20; X2=52; B=60; Fm=100; V=116; Fp=132; MU=140; BI=144; DD=152; T=232
        k('s_mov_b32 s62, 0x05040100'); k('s_mov_b32 s63, 0x07060302')
        k(f'v_lshlrev_b32 v{T+2}, 3, v3'); k(f'v_cvt_f32_u32 v{T+2}, v{T+2}')
        k('s_bfe_u32 s67, s2, 0x10003')
        k('s_lshl_b32 s52, s67, 3'); k(f'v_lshrrev_b32 v{T}, 1, v2'); k(f'v_add_u32 v{T}, s52, v{T}'); k(f'v_and_b32 v{T+1}, 1, v2')
        k('s_cmp_eq_u32 s67, 0'); k('s_cselect_b32 s52, 1, 99'); k('v_cmp_eq_u32 vcc, s52, v2'); k(f'v_cndmask_b32 v{T}, v{T}, 16, vcc'); k(f'v_cndmask_b32 v{T+1}, v{T+1}, 0, vcc')
        k(f'v_cvt_f32_u32 v{T}, v{T}'); k(f'v_cvt_f32_u32 v{T+1}, v{T+1}')
        k(f'v_mul_f32 v{T}, 0x3d000000, v{T}'); k(f'v_mul_f32 v{T+1}, 0x3e800000, v{T+1}')
        k(f'v_fma_f32 v{T+1}, v{T}, v{T+2}, v{T+1}')
        for jj in range(8): k(f'v_fmamk_f32 v{Fm+jj}, v{T}, {float(jj)}, v{T+1}')
        for jj in range(8): k(f'v_cos_f32 v{Fm+jj}, v{Fm+jj}')
        k('s_mul_i32 s52, s3, 320'); k(f's_mov_b32 s53, {2*163840}'); k(f'v_mul_u32_u24 v{T}, s53, v3'); k(f'v_add_u32 v{T}, s52, v{T}')
        k(f'v_lshl_add_u32 v250, v2, 4, v{T}'); k(f'v_lshl_add_u32 v251, v2, 2, v{T}')
        k('s_mul_i32 s64, s66, 2560'); k(f's_mul_i32 s52, s67, {8*163840}'); k('s_add_u32 s64, s64, s52')
        if WS_U: k(f's_add_u32 s64, s64, {WS_U}')
        k(f's_add_u32 s65, s64, 163840')
        k(f'v_mov_b32 v{T+3}, 0x3f803f80')
        for i in range(16): k(f'v_mov_b32 v{V+i}, 0')
        k('s_lshl_b32 s52, s3, 8')
        k(f'v_lshrrev_b32 v{T+4}, 3, v2'); k(f'v_lshlrev_b32 v{T+4}, 7, v{T+4}'); k(f'v_bfe_u32 v{T+5}, v2, 2, 1'); k(f'v_lshl_add_u32 v{T+4}, v{T+5}, 4, v{T+4}')
        k(f'v_lshl_add_u32 v{T+4}, v3, 5, v{T+4}'); k(f'v_add_u32 v{T+4}, s52, v{T+4}')
        k(f'v_and_b32 v{T+5}, 7, v2'); k(f'v_lshlrev_b32 v{T+5}, 2, v{T+5}'); k(f'v_lshl_add_u32 v{T+5}, v3, 5, v{T+5}')
        self.w_issue(self.c.iss_early, masked=True)
        self.stamp(1)
        for r in range(8):
            for d in range(5):
                x=X+4*r+d if d<4 else X2+r
                k(f'v_dot2c_f32_bf16 v{V+r}, v{x}, v{T+3}'); k(f'v_dot2c_f32_bf16 v{V+8+r}, v{x}, v{x}')
        self.stamp(2)
        self.pf('ld'); self.w_issue(self.c.iss_ld)
        for i in range(8): k(f'v_add_f32_dpp v{V+i}, v{V+i}, v{V+i} row_ror:8 row_mask:0xf bank_mask:0x3')
        for i in range(8): k(f'v_add_f32_dpp v{V+i}, v{V+8+i}, v{V+8+i} row_ror:8 row_mask:0xf bank_mask:0xc')
        for i in range(4): k(f'v_add_f32_dpp v{V+i}, v{V+i}, v{V+i} row_shl:4 row_mask:0xf bank_mask:0x5')
        for i in range(4): k(f'v_add_f32_dpp v{V+i}, v{V+4+i}, v{V+4+i} row_shr:4 row_mask:0xf bank_mask:0xa')
        for i in range(4): k(f'v_add_f32_dpp v{V+i}, v{V+i}, v{V+i} quad_perm:[1,0,3,2] row_mask:0xf bank_mask:0xf')
        for i in range(4): k(f'v_add_f32_dpp v{V+i}, v{V+i}, v{V+i} quad_perm:[2,3,0,1] row_mask:0xf bank_mask:0xf')
        t=k(f'ds_write_b128 v{T+4}, v[{V}:{V+3}]')
        def perms(js):
            for j in js:
                for i in range(4):
                    if j<8: a,b=X+8*i+4+(j>>1), X+8*i+(j>>1)
                    else: a,b=X2+2*i+1, X2+2*i
                    k(f'v_perm_b32 v{B+4*j+i}, v{a}, v{b}, s{62+(j&1)}')
        perms(range(0,3))
        k.wait(t); k('s_barrier')
        for w in range(4): k(f'ds_read2_b32 v[{V+4+2*w}:{V+5+2*w}], v{T+5} offset0:{64*w} offset1:{64*w+32}')
        perms(range(3,10))
        k(f'v_add_f32 v{V}, v{V+4}, v{V+6}'); k(f'v_add_f32 v{V+1}, v{V+5}, v{V+7}')
        k(f'v_add_f32 v{V+2}, v{V+8}, v{V+10}'); k(f'v_add_f32 v{V+3}, v{V+9}, v{V+11}')
        k(f'v_add_f32 v{V}, v{V}, v{V+2}'); k(f'v_add_f32 v{V+1}, v{V+1}, v{V+3}')
        k(f'v_mul_f32 v{V}, 0xbacccccd, v{V}'); k(f'v_mul_f32 v{V+1}, 0x3acccccd, v{V+1}')
        k(f'v_fma_f32 v{V+1}, -v{V}, v{V}, v{V+1}'); k(f'v_max_f32 v{V+1}, 0, v{V+1}'); k(f'v_add_f32 v{V+1}, 0x3727c5ac, v{V+1}')
        k(f'v_rsq_f32 v{V+1}, v{V+1}')
        for jj in range(8): k(f'v_mov_b32_dpp v{V+4+jj}, v{V} row_newbcast:{jj} row_mask:0xf bank_mask:0xf')
        for jj in range(8): k(f'v_mul_f32_dpp v{Fm+jj}, v{V+1}, v{Fm+jj} row_newbcast:{jj} row_mask:0xf bank_mask:0xf')
        for i in range(4): k(f'v_cvt_pk_bf16_f32 v{MU+i}, v{V+4+2*i}, v{V+5+2*i}')
        for i in range(4): k(f'v_cvt_pk_bf16_f32 v{Fp+i}, v{Fm+2*i}, v{Fm+2*i+1}')
        k(f'v_mfma_f32_16x16x32_bf16 v[{BI}:{BI+3}], v[{Fp}:{Fp+3}], v[{MU}:{MU+3}], 0')
        for j in range(10):
            d=DD+4*j
            k(f'v_mfma_f32_16x16x32_bf16 v[{d}:{d+3}], v[{Fp}:{Fp+3}], v[{B+4*j}:{B+4*j+3}], v[{BI}:{BI+3}]')
        for i in range(4):
            o=X+4*i; o2=X2+i
            for jp in range(4): k(f'v_cvt_pk_bf16_f32 v{o+jp}, v{DD+8*jp+i}, v{DD+8*jp+4+i}')
            k(f'v_cvt_pk_bf16_f32 v{o2}, v{DD+32+i}, v{DD+36+i}')
            self.drain.append(k(f'buffer_store_dwordx4 v[{o}:{o+3}], v250, s[16:19], s{64+(i>>1)} offen offset:{1280*(i&1)} sc1'))
            self.drain.append(k(f'buffer_store_dword v{o2}, v251, s[16:19], s{64+(i>>1)} offen offset:{1280*(i&1)+256} sc1'))
    def role_mod_a(self):
        k=self.k
        Wr=20; C=60; Sf=68; SP=80; A=88; P=96; Q=108; Rr=120; T=232
        k('s_sub_u32 s64, s2, 128'); k('s_and_b32 s65, s64, 1'); k('s_lshr_b32 s64, s64, 1')
        k('v_and_b32 v250, 7, v0'); k('v_lshrrev_b32 v251, 3, v0')
        k(f's_mov_b32 s52, {10*7680}'); k(f'v_lshlrev_b32 v{T}, 4, v250'); k(f'v_mad_u32_u24 v{T}, v251, s52, v{T}')
        k(f'v_mul_u32_u24 v{T+1}, 20, v251')
        k(f's_mul_i32 s53, s65, {320*7680}'); k('s_lshl_b32 s54, s64, 7'); k('s_add_u32 s53, s53, s54'); k('s_mul_i32 s54, s65, 640')
        srd(k,20,44,640*3840*2); srd(k,24,42,1280)
        k(f'buffer_load_dwordx4 v[{C}:{C+3}], v{T+1}, s[24:27], s54 offen'); k(f'buffer_load_dword v{C+4}, v{T+1}, s[24:27], s54 offen offset:16')
        for i in range(10):
            k(f'buffer_load_dwordx4 v[{Wr+4*i}:{Wr+4*i+3}], v{T}, s[20:23], s53 offen')
            if i<9: k('s_add_u32 s53, s53, 7680')
    def role_mod(self):
        k=self.k
        Wr=20; C=60; Sf=68; SP=80; A=88; P=96; Q=108; Rr=120; T=232
        k('s_mov_b32 s62, 0x05040100'); k('s_mov_b32 s63, 0x07060302')
        n=10
        for i in range(n):
            if i&1: k(f'v_and_b32 v{Sf+i}, 0xffff0000, v{C+(i>>1)}')
            else: k(f'v_lshlrev_b32 v{Sf+i}, 16, v{C+(i>>1)}')
        for i in range(n): k(f'v_mul_f32 v{P+i}, 0xbfb8aa3b, v{Sf+i}')
        for i in range(n): k(f'v_exp_f32 v{P+i}, v{P+i}')
        for i in range(n): k(f'v_add_f32 v{P+i}, 1.0, v{P+i}')
        for i in range(n): k(f'v_rcp_f32 v{Rr+i}, v{P+i}')
        for i in range(n): k(f'v_mul_f32 v{Q+i}, v{Sf+i}, v{Rr+i}')
        for i in range(n): k(f'v_fma_f32 v{P+i}, -v{Q+i}, v{P+i}, v{Sf+i}')
        for i in range(n): k(f'v_fma_f32 v{P+i}, v{P+i}, v{Rr+i}, v{Q+i}')
        for i in range(n):
            k(f'v_cmp_o_f32 vcc, v{P+i}, v{P+i}'); k(f'v_cndmask_b32 v{Sf+i}, v{Q+i}, v{P+i}, vcc')
        for i in range(5): k(f'v_cvt_pk_bf16_f32 v{SP+i}, v{Sf+2*i}, v{Sf+2*i+1}')
        for j in range(8): k(f'v_mov_b32 v{A+j}, 0')
        k('s_mul_i32 s66, s64, 26'); k('s_lshr_b32 s66, s66, 8')
        k('s_mul_i32 s52, s66, 10'); k('s_sub_u32 s52, s64, s52'); k('s_lshl_b32 s52, s52, 6')
        U=140
        k(f'v_add_u32 v{U}, s52, v1')
        k('s_mul_i32 s53, s66, 640'); k('s_add_u32 s54, s53, 768'); k('s_cmp_lt_u32 s66, 2'); k('s_cselect_b32 s53, s53, s54'); k('s_cmp_eq_u32 s66, 5'); k('s_cselect_b32 s53, 1280, s53')
        k(f'v_add_lshl_u32 v{U+3}, v{U}, s53, 2')
        k(f's_mul_i32 s67, s65, {MODP}'); k(f's_add_u32 s67, s67, {WS_MOD}')
        k(f'v_lshrrev_b32 v{U+1}, 4, v0'); k(f'v_lshlrev_b32 v{U+1}, 8, v{U+1}'); k(f'v_lshl_add_u32 v{U+1}, v250, 5, v{U+1}')
        k(f'v_lshlrev_b32 v{U+2}, 2, v1')
        self.w_issue(self.c.iss_early, masked=True)
        self.stamp(1)
        for i2 in range(5):
            for j in range(8): k(f'v_perm_b32 v{P+j}, v{Wr+8*i2+4+(j>>1)}, v{Wr+8*i2+(j>>1)}, s{62+(j&1)}')
            for j in range(8): k(f'v_dot2c_f32_bf16 v{A+j}, v{P+j}, v{SP+i2}')
        self.stamp(2)
        self.pf('ld'); self.w_issue(self.c.iss_ld)
        for j in range(8): k(f'v_add_f32_dpp v{A+j}, v{A+j}, v{A+j} row_ror:8 row_mask:0xf bank_mask:0xf')
        k(f'ds_write_b128 v{U+1}, v[{A}:{A+3}]'); t=k(f'ds_write_b128 v{U+1}, v[{A+4}:{A+7}] offset:16')
        k.wait(t); k('s_barrier')
        L=self.w0()
        for i in range(8): k(f'ds_read2st64_b32 v[{Wr+2*i}:{Wr+2*i+1}], v{U+2} offset0:{2*i} offset1:{2*i+1}')
        for i in range(8): k(f'v_add_f32 v{Wr+2*i}, v{Wr+2*i}, v{Wr+2*i+1}')
        for a,b in [(0,2),(4,6),(8,10),(12,14),(0,4),(8,12),(0,8)]: k(f'v_add_f32 v{Wr+a}, v{Wr+a}, v{Wr+b}')
        self.drain.append(k(f'buffer_store_dword v{Wr}, v{U+3}, s[16:19], s67 offen sc1'))
        self.end(L)
    def role_shuf_a(self):
        k=self.k; T=232
        L=self.wn()
        k('s_sub_u32 s74, s2, 128'); k('s_mul_i32 s74, s74, 3'); k('s_add_u32 s74, s74, s3'); k('s_sub_u32 s74, s74, 1')
        k('s_lshr_b32 s52, s74, 3'); k('s_mul_i32 s52, s52, 40960'); k('s_and_b32 s53, s74, 7'); k('s_mul_i32 s53, s53, 160'); k('s_add_u32 s52, s52, s53')
        k('s_mul_i32 s75, s3, 5120')
        if self.c.shlate: k(f's_add_u32 s75, s75, {L_RING+4*WST}')
        k('s_mov_b32 m0, s75')
        k(f's_mov_b32 s54, {(2**32+9)//10}')
        srd(k,24,40,F*D*2)
        toks=self.shtoks=[]
        for i in range(5):
            k(f'v_add_u32 v{T+2}, {64*i}, v1'); k(f'v_mul_hi_u32 v{T+3}, v{T+2}, s54'); k(f'v_mul_u32_u24 v{T+3}, {1280-160}, v{T+3}'); k(f'v_lshl_add_u32 v{T+3}, v{T+2}, 4, v{T+3}')
            toks.append(k(f'buffer_load_dwordx4 v{T+3}, s[24:27], s52 offen lds'))
            if i<4: k('s_add_u32 m0, m0, 1024')
        self.end(L)
    def role_shuf(self):
        k=self.k; toks=self.shtoks; T=232; O=216
        L=self.wn()
        k(f'v_lshrrev_b32 v{T}, 2, v2'); k(f'v_lshl_add_u32 v{T}, v3, 3, v{T}'); k(f'v_mul_u32_u24 v{T}, 160, v{T}'); k(f'v_add_u32 v{T}, s75, v{T}')
        k(f'v_and_b32 v{T+1}, 3, v2'); k(f'v_lshl_add_u32 v{T+2}, v{T+1}, 3, v{T}'); k(f'v_lshl_add_u32 v{T+1}, v{T+1}, 4, v{T}')
        k('s_and_b32 s52, s74, 7'); k('s_mul_i32 s52, s52, 48'); k('s_lshr_b32 s53, s74, 3'); k('s_add_u32 s52, s52, s53'); k('s_mul_i32 s52, s52, 5120'); k(f's_add_u32 s84, s52, {WS_WDS}')
        k('s_add_u32 s85, s84, 4096')
        k.wait(*toks)
        for mt in range(5):
            for hh in range(2):
                if mt<4: k(f'ds_read_b64_tr_b16 a[{O+4*mt+2*hh}:{O+4*mt+2*hh+1}], v{T+1} offset:{640*hh+64*(mt>>1)+8*(mt&1)}')
                else: t=k(f'ds_read_b64_tr_b16 a[{O+4*mt+2*hh}:{O+4*mt+2*hh+1}], v{T+2} offset:{640*hh+128}')
        if self.c.defer_sh: k.wait(t)
        else: self.drain+=self.shuf_store()
        self.end(L)
    def shuf_store(self):
        k=self.k; O=216
        return [k(f'buffer_store_dwordx4 a[{O+4*mt}:{O+4*mt+3}], v18, s[16:19], s{84+(mt>>2)} offen offset:{1024*(mt&3)} sc1') for mt in range(5)]
    def poll(self, ld, chk, sleep=0):
        k=self.k; Lp=k.label('p'); Lx=k.label('x')
        k('s_mov_b32 s52, 0'); k(f'{Lp}:')
        if sleep: k(f's_sleep {sleep}')
        k(ld); k('s_waitcnt vmcnt(0)')
        k('s_add_u32 s52, s52, 1'); k('s_cmp_gt_u32 s52, 0x40000'); k(f's_cbranch_scc1 {Lx}')
        for s in chk: k(s)
        k(f's_cbranch_vccnz {Lp}'); k(f'{Lx}:')
    def gpost(self, kind, pre=None):
        k=self.k; Ls=k.label('s'); Le=k.label('e')
        if pre: k(f's_mov_b32 s52, {pre}')
        else:
            k(f's_add_u32 s53, s68, {kind*4096}'); k('s_lshl_b32 s52, s13, 2'); k('s_add_u32 s52, s52, s53')
            k('v_mov_b32 v252, s14'); k('v_mov_b32 v253, 0')
        k('s_mov_b64 exec, 1')
        k('s_cmp_eq_u32 s15, 0'); k(f's_cbranch_scc1 {Ls}')
        k('buffer_store_dword v252, v253, s[16:19], s52 offen'); k(f's_branch {Le}')
        k(f'{Ls}:'); k('buffer_wbl2 sc1'); k('s_waitcnt vmcnt(0)'); k('buffer_store_dword v252, v253, s[16:19], s52 offen sc1')
        k(f'{Le}:'); k('s_mov_b64 exec, -1')
    def gpoll(self, kind):
        k=self.k; Le=k.label('e')
        k(f's_add_u32 s53, s68, {kind*4096}'); k('v_lshlrev_b32 v253, 2, v2')
        self.poll('buffer_load_dword v252, v253, s[16:19], s53 offen sc1', ['v_cmp_ne_u32 vcc, s14, v252'])
        k('s_cmp_lg_u32 s15, 0'); k(f's_cbranch_scc1 {Le}')
        k('buffer_inv sc1'); k('s_waitcnt vmcnt(0)')
        k(f'{Le}:')
    def wpost(self, kind, wb):
        k=self.k; Ls=k.label('s'); Le=k.label('e')
        k(f's_add_u32 s52, s86, {kind*4096}'); k('s_mov_b64 exec, 1')
        k('s_cmp_eq_u32 s15, 0'); k(f's_cbranch_scc1 {Ls}')
        k('buffer_store_dword v252, v253, s[16:19], s52 offen'); k(f's_branch {Le}')
        k(f'{Ls}:')
        if wb: k('buffer_wbl2 sc1'); k('s_waitcnt vmcnt(0)')
        k('buffer_store_dword v252, v253, s[16:19], s52 offen sc1')
        k(f'{Le}:'); k('s_mov_b64 exec, -1')
    def apoll(self, kind):
        k=self.k; k(f's_add_u32 s87, s68, {kind*4096}'); k('buffer_load_dword v251, v14, s[16:19], s87 offen sc1')
    def acheck(self):
        k=self.k; Lo=k.label('ok')
        k('v_cmp_ne_u32 vcc, s14, v251'); k(f's_cbranch_vccz {Lo}')
        self.poll('buffer_load_dword v251, v14, s[16:19], s87 offen sc1', ['v_cmp_ne_u32 vcc, s14, v251'])
        k(f'{Lo}:')
    def build(self):
        k=self.k; c=self.c
        END=k.label('end'); LM=k.label('mod'); LS=k.label('shuf'); LN_=k.label('none'); LJ=k.label('join')
        self.drain=[]; self.check_sched()
        k('s_cmp_ge_u32 s2, 256'); k(f's_cbranch_scc1 {END}')
        k(f's_load_dwordx2 s[4:5], s[0:1], {KA["x"]}'); k(f's_load_dwordx16 s[36:51], s[0:1], {KA["wg"]}')
        if c.prof: k('v_mov_b32 v19, -1')
        if c.pace: k('s_memrealtime s[96:97]'); k('s_mov_b32 s95, 0')
        self.stamp(0)
        k('v_lshrrev_b32 v1, 6, v0'); k('v_readfirstlane_b32 s3, v1')
        k('v_and_b32 v1, 63, v0'); k('v_and_b32 v2, 15, v0'); k('v_lshrrev_b32 v3, 4, v1')
        k('s_and_b32 s12, s2, 7'); k('s_lshl_b32 s12, s12, 1'); k('s_bfe_u32 s13, s2, 0x10003'); k('s_add_u32 s12, s12, s13'); k('s_lshr_b32 s13, s2, 4')
        if c.codetouch:
            L=self.w0(); Lp=k.label('pc')
            k('s_getpc_b64 s[52:53]'); k(f'{Lp}:'); k(f's_sub_u32 s52, s52, {Lp}-{NAME}'); k('s_subb_u32 s53, s53, 0'); srd(k,24,52,f'{NAME}_tab-{NAME}+17408')
            k('s_bfe_u32 s54, s2, 0x30003'); k('s_lshl_b32 s54, s54, 13'); k('v_lshlrev_b32 v240, 7, v1')
            k('buffer_load_dword a246, v240, s[24:27], s54 offen')
            self.end(L)
        LA=k.label('a'); LB=k.label('b'); LE=k.label('e')
        k('s_cmp_ge_u32 s2, 128'); k(f's_cbranch_scc1 {LA}')
        self.role_ln_a(); k(f's_branch {LE}')
        k(f'{LA}:'); k('s_cmp_ge_u32 s2, 248'); k(f's_cbranch_scc1 {LB}')
        self.role_mod_a()
        k(f'{LB}:')
        self.role_shuf_a()
        k(f'{LE}:')
        self.early()
        if c.hops:
            back=k.label('back'); main=k.label('main')
            k('s_mov_b64 exec, 0')
            for w in range(4):
                k(f's_cmp_eq_u32 s3, {w}'); y=Ins('s_nop 0'); y.meta=('hopstart',w); k.ins.append(y)
            k(f'{back}:'); k('s_mov_b64 exec, -1')
            k(f's_branch {main}'); k('.p2align 12'); k(f'{main}:')
            k.hops=(main,back,4)
        k('s_cmp_ge_u32 s2, 128'); k(f's_cbranch_scc1 {LM}')
        self.role_ln(); k(f's_branch {LJ}')
        k(f'{LN_}:'); self.w_issue(c.iss_early); self.pf('ld'); self.w_issue(c.iss_ld); k(f's_branch {LS}')
        k(f'{LM}:'); k('s_cmp_ge_u32 s2, 248'); k(f's_cbranch_scc1 {LN_}')
        self.role_mod()
        k(f'{LS}:')
        self.role_shuf()
        k(f'{LJ}:')
        self.stamp(3)
        self.pf('role')
        k('s_mul_i32 s14, s14, 0x9E3779B1'); k('s_add_u32 s14, s14, 0x7F4A7C15')
        k('s_getreg_b32 s52, hwreg(HW_REG_XCC_ID, 0, 4)'); k('s_add_u32 s52, s52, 1'); k('s_xor_b32 s59, s14, s52')
        L=self.w0()
        k('s_lshl_b32 s52, s12, 7'); k('s_lshl_b32 s53, s13, 2'); k('s_add_u32 s52, s52, s53'); k(f's_add_u32 s52, s52, {WS_FLG+FL_XC}')
        k('v_mov_b32 v240, s59'); k('v_mov_b32 v241, 0'); k('s_mov_b64 exec, 1')
        self.drain.append(k('buffer_store_dword v240, v241, s[16:19], s52 offen sc1'))
        k('s_mov_b64 exec, -1')
        self.end(L)
        self.w_issue(c.iss_role, self.drain+self.tabt+[t for st in c.tr_b2 for t in self.wt[st]])
        k('s_barrier')
        L=self.w0()
        k('v_lshlrev_b32 v241, 10, v2'); k('v_mov_b32 v240, s14'); k('s_lshl_b32 s52, s2, 2'); k(f's_add_u32 s52, s52, {WS_FLG+FL_GF}')
        k('s_mov_b64 exec, 0xffff'); k('buffer_store_dword v240, v241, s[16:19], s52 offen sc1'); k('s_mov_b64 exec, -1')
        self.end(L)
        self.stamp(4)
        self.pf('b2')
        self.p2_pre()
        self.p2a()
        self.p2b()
        self.p3()
        self.p4()
        if c.pacewb: k('s_waitcnt vmcnt(0)'); k('buffer_wbl2 sc1'); k('s_waitcnt vmcnt(0)')
        if c.pace:
            Lq=k.label('pace'); k(f'{Lq}:'); k('s_memrealtime s[98:99]'); k('s_waitcnt lgkmcnt(0)'); k('s_sub_u32 s98, s98, s96'); k('s_sub_u32 s98, s98, s95'); k(f's_cmp_lt_i32 s98, {c.pace}'); k(f's_cbranch_scc1 {Lq}')
        if c.prof: k('s_waitcnt vmcnt(0)')
        self.stamp(31); self.stamp_flush()
        k(f'{END}:'); k('s_endpgm')
        return k
    A2=20; BF=52; ACC=100; CAV=124; FA=136; TW=152; G4=176; XV=212; T=232
    def p2_pre(self):
        k=self.k; c=self.c; T=self.T; A2=self.A2
        srd(k,20,4,S*D*2)
        k('s_lshl_b32 s68, s12, 8'); k(f's_add_u32 s68, s68, {WS_FLG+FL_GRP}')
        k('s_lshl_b32 s69, s13, 7'); k('s_add_u32 s52, s69, s12'); k('s_sub_u32 s53, s69, 1008'); k('s_cmp_lt_u32 s13, 8'); k('s_cselect_b32 s53, s69, s53')
        k('s_cmp_eq_u32 s12, 0'); k('s_cselect_b32 s69, s53, s52')
        k('s_lshl_b32 s70, s3, 5'); k('s_add_u32 s70, s70, s69'); k('s_sub_u32 s71, 2048, s70'); k('s_cmp_eq_u32 s70, 0'); k('s_cselect_b32 s71, 1024, s71')
        k('s_mul_i32 s72, s3, 2560'); k(f's_add_u32 s72, s72, {L_XR}')
        self.misc=[]; self.sht=[]
        L=self.wn()
        k('s_sub_u32 s52, s3, 1')
        k(f'v_lshlrev_b32 v{T}, 2, v1')
        for u in range(3):
            L3=k.label('xr')
            k('s_mul_i32 s53, s52, 3'); k(f's_add_u32 s53, s53, {u}')
            if u==2: k('s_cmp_eq_u32 s53, 8'); k(f's_cbranch_scc1 {L3}')
            k('s_lshr_b32 s54, s53, 1'); k('s_lshl_b32 s54, s54, 5'); k('s_add_u32 s54, s54, s69')
            k('s_sub_u32 s55, 2048, s54'); k('s_cmp_eq_u32 s54, 0'); k('s_cselect_b32 s55, 1024, s55')
            k('s_bitcmp1_b32 s53, 0'); k('s_cselect_b32 s54, s55, s54'); k('s_mul_i32 s54, s54, 1280')
            k('s_mul_i32 s53, s53, 1280'); k(f's_add_u32 m0, s53, {L_XR}'); k('s_nop 0')
            self.misc.append(k(f'buffer_load_dwordx4 v18, s[20:23], s54 offen lds'))
            self.misc.append(k(f'buffer_load_dword v{T}, s[20:23], s54 offen offset:1024 lds'))
            k(f'{L3}:')
        if c.pretouch:
            k('s_lshl_b32 s53, s12, 4'); k('s_add_u32 s53, s53, s13'); k('s_mul_i32 s53, s53, 10240'); k('s_mul_i32 s54, s52, 5120'); k('s_add_u32 s53, s53, s54')
            k(f's_add_u32 s53, s53, {WS_Z}'); k('s_cmp_eq_u32 s3, 3'); k('s_cselect_b32 s53, s68, s53')
            k(f'v_min_u32 v{T}, 39, v1'); k(f'v_lshlrev_b32 v{T}, 7, v{T}'); k(f'v_and_b32 v{T+1}, 15, v1'); k(f'v_lshlrev_b32 v{T+1}, 11, v{T+1}'); k(f'v_bfe_u32 v{T+2}, v1, 0, 1'); k(f'v_mul_u32_u24 v{T+2}, {2048-128}, v{T+2}'); k(f'v_sub_u32 v{T+1}, v{T+1}, v{T+2}')
            k('s_cselect_b64 vcc, -1, 0'); k(f'v_cndmask_b32 v{T}, v{T}, v{T+1}, vcc')
            k(f'buffer_load_dword a246, v{T}, s[16:19], s53 offen')
            if c.alias2:
                k('s_mul_i32 s53, s52, 27'); k(f'v_min_u32 v{T}, 26, v1'); k(f'v_add_u32 v{T}, s53, v{T}'); k(f'v_min_u32 v{T}, 79, v{T}')
                k(f's_mov_b32 s53, {(2**32+9)//10}'); k(f'v_mul_hi_u32 v{T+1}, v{T}, s53'); k(f'v_mul_u32_u24 v{T+2}, 10, v{T+1}'); k(f'v_sub_u32 v{T}, v{T}, v{T+2}')
                k(f'v_lshrrev_b32 v{T+2}, 1, v{T+1}'); k(f'v_lshl_add_u32 v{T+2}, v{T+2}, 5, s69'); k(f'v_sub_u32 v{T+3}, 2048, v{T+2}')
                k(f'v_cmp_eq_u32 vcc, 0, v{T+2}'); k(f'v_mov_b32 v{T+4}, 1024'); k(f'v_cndmask_b32 v{T+3}, v{T+3}, v{T+4}, vcc')
                k(f'v_and_b32 v{T+1}, 1, v{T+1}'); k(f'v_cmp_eq_u32 vcc, 1, v{T+1}'); k(f'v_cndmask_b32 v{T+2}, v{T+2}, v{T+3}, vcc')
                k(f'v_mul_u32_u24 v{T+2}, 1280, v{T+2}'); k(f'v_lshl_add_u32 v{T}, v{T}, 7, v{T+2}')
                srd(k,24,46,S*D*2)
                k(f'buffer_load_dword a247, v{T}, s[24:27], 0 offen')
        self.end(L)
        self.w_issue(c.iss_b2)
        self.tw2=self.w_tr(c.tr_b2)
        FA=self.FA; TW=self.TW; G4=self.G4
        for u in range(2): k(f'ds_read_b128 v[{FA+4*u}:{FA+4*u+3}], v18 offset:{L_TAB+1024*u}')
        for u in range(6): k(f'ds_read_b128 v[{TW+4*u}:{TW+4*u+3}], v18 offset:{L_TAB+2048+1024*u}')
        for u in range(9): self.tw2=k(f'ds_read_b128 v[{G4+4*u}:{G4+4*u+3}], v18 offset:{L_TAB+8192+1024*u}')
        k('s_cmp_ge_u32 s3, 2'); k('s_cselect_b32 s52, -1008, 0'); k('s_cmp_eq_u32 s12, 0'); k('s_cselect_b32 s52, s52, s12')
        k('s_lshl_b32 s53, s3, 9'); k('s_add_u32 s73, s52, s53')
        k('s_cmp_eq_u32 s12, 0'); k('s_cselect_b32 s54, 1, 0'); k('s_lshr_b32 s55, s3, 1')
        k('s_and_b32 s52, s54, s55'); k('s_andn2_b32 s53, s54, s55')
        k(f'v_and_b32 v{T+1}, 1, v2'); k(f'v_cvt_f32_u32 v{T+1}, v{T+1}'); k(f'v_mul_f32 v{T+1}, 0x3e800000, v{T+1}')
        k('s_cmp_eq_u32 s12, 0'); k('s_cselect_b32 s54, 0, 0xbe800000'); k(f'v_add_f32 v{T+3}, s54, v{T+1}')
        k(f'v_mov_b32 v{T+6}, 0x3e800000')
        k(f'v_lshlrev_b32 v{T+4}, 2, v3'); k(f'v_cvt_f32_u32 v{T+4}, v{T+4}')
        k('s_cmp_lg_u32 s52, 0'); k('s_cselect_b64 s[62:63], -1, 0'); k('s_cmp_lg_u32 s53, 0'); k('s_cselect_b64 s[64:65], -1, 0')
        k(f'v_cndmask_b32 v{T+1}, v{T+1}, v{T+6}, s[62:63]'); k(f'v_cndmask_b32 v{T+3}, v{T+3}, v{T+6}, s[64:65]')
        for mt in range(2):
            k(f'v_lshrrev_b32 v{T}, 1, v2'); k(f'v_lshl_add_u32 v{T}, v{T}, 5, s73')
            if mt: k(f'v_add_u32 v{T}, 256, v{T}')
            k(f'v_cvt_f32_u32 v{T}, v{T}'); k(f'v_mul_f32 v{T}, 0x3a000000, v{T}')
            k(f'v_cndmask_b32 v{T+2}, v{T}, 0, s[64:65]'); k(f'v_cndmask_b32 v{T}, v{T}, 0, s[62:63]')
            k(f'v_mov_b32 v{T+5}, v{T+1}')
            if mt==0:
                k('s_cmp_eq_u32 s73, 0'); k('s_cselect_b32 s54, 1, 99'); k('v_cmp_eq_u32 vcc, s54, v2')
                k(f'v_cndmask_b32 v{T}, v{T}, 0.5, vcc'); k(f'v_cndmask_b32 v{T+5}, v{T+5}, 0, vcc')
            k(f'v_fma_f32 v{T+5}, v{T}, v{T+4}, v{T+5}'); k(f'v_fma_f32 v{T+7}, v{T+2}, v{T+4}, v{T+3}')
            for ks in range(4):
                for u in range(4):
                    cc=16*ks+u
                    k(f'v_fmamk_f32 v{T+8+2*u}, v{T}, {float(cc)}, v{T+5}'); k(f'v_fmamk_f32 v{T+9+2*u}, v{T+2}, {float(cc)}, v{T+7}')
                for u in range(8): k(f'v_cos_f32 v{T+8+u}, v{T+8+u}')
                for u in range(4): k(f'v_cvt_pk_bf16_f32 v{A2+16*mt+4*ks+u}, v{T+8+2*u}, v{T+9+2*u}')
        k('s_cmp_eq_u32 s70, 0'); k('s_cselect_b64 vcc, -1, 0'); k('s_cselect_b32 s52, 0xffff, -1')
        for u in range(8):
            k(f'v_xor_b32 v{FA+8+u}, 0x80000000, v{FA+u}'); k(f'v_lshlrev_b32 v{T+4}, 16, v{FA+u}')
            k(f'v_cndmask_b32 v{FA+8+u}, v{FA+8+u}, v{T+4}, vcc'); k(f'v_and_b32 v{FA+u}, s52, v{FA+u}')
        k(f's_mov_b32 s54, {(2**32+4)//5}')
        for m in range(5):
            k(f'v_add_u32 v{T}, {64*m}, v1'); k(f'v_mul_hi_u32 v{T+1}, v{T}, s54'); k(f'v_mul_u32_u24 v{T+2}, 5, v{T+1}'); k(f'v_sub_u32 v{T+2}, v{T}, v{T+2}')
            k(f'v_mul_u32_u24 v{T+1}, 1280, v{T+1}'); k(f'v_lshl_add_u32 v{self.ACC+m}, v{T+2}, 4, v{T+1}')
        k(f's_mov_b32 s54, {(2**32+9)//10}')
        k(f'v_mul_hi_u32 v{T+1}, v1, s54'); k(f'v_mul_u32_u24 v{T+2}, 10, v{T+1}'); k(f'v_sub_u32 v{T+2}, v1, v{T+2}')
        k(f'v_lshrrev_b32 v{T+3}, 1, v{T+1}'); k(f'v_and_b32 v{T+1}, 1, v{T+1}'); k(f'v_mul_u32_u24 v{T+3}, 2560, v{T+3}')
        k(f'v_lshl_add_u32 v{T+3}, v{T+1}, 14, v{T+3}'); k(f'v_lshl_add_u32 v{self.ACC+5}, v{T+2}, 4, v{T+3}')
        for u in range(20): k(f'v_mov_b32 v{self.XV+u}, 0')
        self.w_issue(c.iss_b2b); self.pf('pre')
    def p2a(self):
        k=self.k; c=self.c; T=self.T; A2=self.A2; BF=self.BF; ACC=self.ACC; CAV=self.CAV; FA=self.FA; TW=self.TW; G4=self.G4; XV=self.XV
        self.stamp(5)
        L=self.w0()
        k('s_lshl_b32 s53, s12, 10'); k(f's_add_u32 s53, s53, {WS_FLG+FL_GF}')
        self.poll(f'buffer_load_dwordx4 v[{T}:{T+3}], v18, s[16:19], s53 offen sc1',
                  [f'v_xor_b32 v{T}, s14, v{T}', f'v_xor_b32 v{T+1}, s14, v{T+1}', f'v_xor_b32 v{T+2}, s14, v{T+2}', f'v_xor_b32 v{T+3}, s14, v{T+3}',
                   f'v_or3_b32 v{T}, v{T}, v{T+1}, v{T+2}', f'v_or_b32 v{T}, v{T}, v{T+3}', f'v_cmp_ne_u32 vcc, 0, v{T}'])
        self.stamp(6)
        ut=[]
        k('s_mul_i32 s53, s12, 163840'); k('s_mul_i32 s54, s13, 80'); k('s_add_u32 s53, s53, s54')
        if WS_U: k(f's_add_u32 s53, s53, {WS_U}')
        k(f's_mov_b32 m0, {L_US}')
        for u in range(0 if c.usplit else 10):
            ut.append(k(f'buffer_load_dwordx4 v{ACC+u%5}, s[16:19], s53 offen sc1 lds'))
            k('s_add_u32 m0, m0, 1024')
            if u==4: k(f's_add_u32 s53, s53, {64*1280}')
        k(f's_mov_b32 m0, {L_CA}'); k('s_mul_i32 s53, s13, 160'); k(f's_add_u32 s53, s53, {WS_MOD}')
        k('s_mov_b32 exec_hi, 0xff')
        ut.append(k(f'buffer_load_dwordx4 v{ACC+5}, s[16:19], s53 offen sc1 lds'))
        k('s_mov_b32 exec_hi, -1')
        L2=k.label('n'); k('s_cmp_lg_u32 s2, 0'); k(f's_cbranch_scc1 {L2}')
        k(f'v_mov_b32 v{T+2}, s14'); k(f'v_mov_b32 v{T+3}, 0'); k(f's_mov_b32 s53, {WS_FLG}'); k('s_mov_b64 exec, 1')
        k(f'buffer_store_dword v{T+2}, v{T+3}, s[16:19], s53 offen sc1'); k('s_mov_b64 exec, -1')
        k(f'{L2}:')
        self.end(L)
        self.w_wait(c.tr_b3); k.wait(*self.misc); k.wait(self.tw2)
        self.stamp(27)
        k('s_barrier')
        self.stamp(28)
        if c.usplit:
            k('s_mul_i32 s53, s12, 163840'); k('s_mul_i32 s54, s13, 80'); k('s_add_u32 s53, s53, s54'); k(f's_mul_i32 s54, s3, {32*1280}'); k('s_add_u32 s53, s53, s54')
            if WS_U: k(f's_add_u32 s53, s53, {WS_U}')
            k('s_mul_i32 s54, s3, 2560'); k(f's_add_u32 m0, s54, {L_US}')
            for u in range(3):
                if u==2: k('s_mov_b32 exec_hi, 0')
                ut.append(k(f'buffer_load_dwordx4 v{ACC+u}, s[16:19], s53 offen sc1 lds'))
                if u<2: k('s_add_u32 m0, m0, 1024')
            k('s_mov_b32 exec_hi, -1')
        k('s_lshl_b32 s53, s12, 7'); k(f's_add_u32 s53, s53, {WS_FLG+FL_XC}'); k(f'v_lshlrev_b32 v{T}, 2, v2')
        k(f'buffer_load_dword v253, v{T}, s[16:19], s53 offen sc1')
        L=self.wn(); self.modt=[]
        if c.defer_sh:
            L4=k.label('sh'); k('s_cmp_lt_u32 s2, 128'); k(f's_cbranch_scc1 {L4}'); self.sht=self.shuf_store(); k(f'{L4}:')
        k('s_sub_u32 s52, s3, 1'); k('s_mul_i32 s52, s52, 5')
        for u in range(6):
            L3=k.label('m')
            if u==5: k('s_cmp_lg_u32 s3, 3'); k(f's_cbranch_scc1 {L3}')
            k(f's_add_u32 s53, s52, {u}'); k('s_lshl_b32 s54, s53, 10'); k(f's_add_u32 m0, s54, {L_MOD}')
            k('s_lshr_b32 s55, s53, 3'); k('s_lshl_b32 s55, s55, 13'); k('s_add_u32 s54, s54, s55'); k(f's_add_u32 s54, s54, {WS_MOD+8192}')
            self.modt.append(k('buffer_load_dwordx4 v18, s[16:19], s54 offen sc1 lds'))
            k(f'{L3}:')
        self.end(L)
        self.pf('b3'); self.w_issue(c.iss_b3)
        tw=self.w_tr(c.tr_b3)
        k(f'v_lshlrev_b32 v{T+4}, 1, v2'); k(f'v_lshl_add_u32 v250, v3, 8, v{T+4}'); k(f'v_lshl_add_u32 v251, v3, 6, v{T+4}')
        k('v_add_u32 v250, s72, v250'); k('v_add_u32 v251, s72, v251')
        for ab in range(2):
            for jj in range(8): k(f'ds_read_u16_d16_hi v{XV+10*ab+jj}, v250 offset:{1280*ab+32*jj}')
            for j in range(2): tw=k(f'ds_read_u16_d16_hi v{XV+10*ab+8+j}, v251 offset:{1280*ab+1024+32*j}')
        k(f'v_lshrrev_b32 v{T+4}, 2, v2'); k(f'v_lshl_add_u32 v{T+4}, v3, 3, v{T+4}'); k(f'v_mul_u32_u24 v{T+4}, 80, v{T+4}')
        k(f'v_and_b32 v{T+5}, 3, v2'); k(f'v_lshl_add_u32 v248, v{T+5}, 3, v{T+4}')
        k('s_mul_i32 s52, s3, 2560'); k(f'v_mul_u32_u24 v249, 320, v3'); k('v_lshl_add_u32 v249, v2, 2, v249'); k('v_add_u32 v249, s52, v249')
        k('v_lshlrev_b32 v246, 2, v2'); k(f'v_add_u32 v246, {L_CA}, v246')
        if c.usplit: k.wait(*ut)
        else: L=self.w0(); k.wait(*ut); self.end(L)
        k.wait(tw); self.w_wait(c.tr_b4)
        self.stamp(29)
        k('s_barrier')
        self.stamp(7)
        for ks in range(4):
            for nt in range(3):
                for hh in range(2):
                    o=BF+12*ks+4*nt+2*hh
                    k(f'ds_read_b64_tr_b16 v[{o}:{o+1}], v248 offset:{L_US+2560*ks+320*hh+2*D2B[nt]}')
            if ks==0:
                for nt in range(3):
                    k(f'ds_read2_b32 v[{CAV+2*nt}:{CAV+2*nt+1}], v246 offset0:{D2B[nt]} offset1:{40+D2B[nt]}')
                    k(f'ds_read2_b32 v[{CAV+6+2*nt}:{CAV+7+2*nt}], v246 offset0:{80+D2B[nt]} offset1:{120+D2B[nt]}')
        for ks in range(4):
            for mt in range(2):
                for nt in range(3):
                    d=f'v[{ACC+12*mt+4*nt}:{ACC+12*mt+4*nt+3}]'
                    k(f'v_mfma_f32_16x16x32_bf16 {d}, v[{A2+16*mt+4*ks}:{A2+16*mt+4*ks+3}], v[{BF+12*ks+4*nt}:{BF+12*ks+4*nt+3}], {d if ks else 0}')
            if ks==0:
                for nt in range(3):
                    k(f'v_add_f32 v{CAV+2*nt}, v{CAV+2*nt}, v{CAV+2*nt+1}'); k(f'v_add_f32 v{CAV+6+2*nt}, v{CAV+6+2*nt}, v{CAV+7+2*nt}')
                for nt in range(3): k(f'v_cvt_pk_bf16_f32 v{CAV+2*nt}, v{CAV+2*nt}, v{CAV+6+2*nt}')
            if ks==1:
                for nt in range(3):
                    k(f'v_and_b32 v{CAV+6+2*nt}, 0xffff0000, v{CAV+2*nt}'); k(f'v_lshlrev_b32 v{CAV+2*nt}, 16, v{CAV+2*nt}')
                for nt in range(3): k(f'v_add_f32 v{CAV+6+2*nt}, 1.0, v{CAV+6+2*nt}'); k(f'v_mul_f32 v{CAV+2*nt}, 0x45000000, v{CAV+2*nt}')
            if ks==2:
                for nt in range(3): k(f'v_cvt_pk_bf16_f32 v{CAV+6+2*nt}, v{CAV+6+2*nt}, v{CAV+6+2*nt}')
                for nt in range(3): k(f'v_and_b32 v{CAV+6+2*nt}, 0xffff0000, v{CAV+6+2*nt}')
                self.pf('b4'); self.w_issue(c.iss_b4)
            if ks==3: self.w_tr(c.tr_b4)
        for mt in range(2):
            for nt in range(3):
                for j in range(4): k(f'v_mul_f32 v{ACC+12*mt+4*nt+j}, v{ACC+12*mt+4*nt+j}, v{CAV+6+2*nt}')
        Ld=k.label('d')
        k('s_cmp_lg_u32 s73, 0'); k(f's_cbranch_scc1 {Ld}'); k('s_mov_b64 exec, 0xffff')
        for nt in range(3): k(f'v_add_f32 v{ACC+4*nt}, v{ACC+4*nt}, v{CAV+2*nt}')
        k('s_mov_b64 exec, -1'); k(f'{Ld}:')
        for mt in range(2):
            for nt in range(3):
                for rr in range(2):
                    a=ACC+12*mt+4*nt+2*rr
                    k(f'v_cvt_pk_bf16_f32 v{a}, v{a}, v{a+1}')
                    t=k(f'ds_write_b32 v249, v{a} offset:{L_ZS+1280*mt+160*rr+4*D2B[nt]}')
        self.pf('mid4'); self.w_issue(c.iss_mid4)
        k(f'v_cmp_ne_u32 vcc, s59, v253'); k('s_cmp_eq_u64 vcc, 0'); k(f's_cselect_b32 s15, {0 if c.force_slow else 1}, 0')
        self.stamp(30)
        k.wait(t); self.w_wait(c.tr_b5); k.wait(*self.sht)
        k('s_barrier')
        self.stamp(8)
        L=self.w0(); zt=[]
        for u in range(10): k(f'ds_read_b128 v[{BF+4*u}:{BF+4*u+3}], v18 offset:{L_ZS+1024*u}')
        k('s_lshl_b32 s53, s12, 4'); k('s_add_u32 s53, s53, s13'); k('s_mul_i32 s53, s53, 10240'); k(f's_add_u32 s53, s53, {WS_Z}')
        for u in range(10):
            if u%4==0 and u: k('s_add_u32 s53, s53, 4096')
            zt.append(k(f'buffer_store_dwordx4 v[{BF+4*u}:{BF+4*u+3}], v18, s[16:19], s53 offen offset:{1024*(u%4)}'))
        self.end(L)
        self.pf('b5'); self.w_issue(c.iss_b5)
        self.tw5=self.w_tr(c.tr_b5)
        k(f's_mov_b32 s54, {(2**32+39)//40}')
        for m in range(5):
            k(f'v_add_u32 v{T}, {64*m}, v1'); k(f'v_mul_hi_u32 v{T+1}, v{T}, s54'); k(f'v_mul_u32_u24 v{T+2}, 40, v{T+1}'); k(f'v_sub_u32 v{T+2}, v{T}, v{T+2}')
            k(f'v_mul_u32_u24 v{T+1}, 10240, v{T+1}'); k(f'v_lshl_add_u32 v{ACC+m}, v{T+2}, 4, v{T+1}')
        L=self.w0(); gt=[]
        k.wait(*zt)
        self.stamp(9)
        self.gpost(0); self.gpoll(0)
        self.stamp(10)
        k('s_mul_i32 s53, s12, 163840'); k('s_mul_i32 s54, s13, 640'); k('s_add_u32 s53, s53, s54'); k(f's_add_u32 s53, s53, {WS_Z}')
        k(f's_mov_b32 m0, {L_US}')
        for u in range(10):
            gt.append(k(f'buffer_load_dwordx4 v{ACC+u%5}, s[16:19], s53 offen sc1 lds'))
            k('s_add_u32 m0, m0, 1024')
            if u==4: k(f's_add_u32 s53, s53, {8*10240}')
        if c.defer_sh:
            k('v_lshlrev_b32 v253, 10, v2'); k('v_mov_b32 v252, s14'); k('s_lshl_b32 s52, s2, 2'); k(f's_add_u32 s52, s52, {WS_FLG+FL_GF2}')
            k('s_mov_b64 exec, 0xffff'); k('buffer_store_dword v252, v253, s[16:19], s52 offen sc1'); k('s_mov_b64 exec, -1')
        self.end(L)
        k.wait(self.trtok)
        k.wait(*self.modt); self.w_wait(c.tr_g)
        k('s_barrier'); self.w_issue(c.iss_g)
        self.tw5=self.w_tr(c.tr_g)
        GA,SB,CB=self.GA,self.SB,self.CB; M0=20; M1=52
        for p,base in ((0,M0),(1,M1)):
            for u in range(8): k(f'ds_read_b128 v[{base+4*u}:{base+4*u+3}], v18 offset:{L_MOD+8192*p+1024*u}')
        src=lambda v,u: (8*v+u) if u<8 else (24+4*(v>>1)+2*(v&1)+u-8)
        for v in range(3):
            for u in range(10): k(f'v_add_f32 v{M0+src(v,u)}, v{M0+src(v,u)}, v{M1+src(v,u)}')
        for v,dst in enumerate((GA,SB,CB)):
            for u in range(5): k(f'v_cvt_pk_bf16_f32 v{M1+5*v+u}, v{M0+src(v,2*u)}, v{M0+src(v,2*u+1)}')
            for u in range(5): k(f'v_lshlrev_b32 v{dst+2*u}, 16, v{M1+5*v+u}'); k(f'v_and_b32 v{dst+2*u+1}, 0xffff0000, v{M1+5*v+u}')
        for u in range(10): k(f'v_add_f32 v{CB+u}, 1.0, v{CB+u}')
        for u in range(5): k(f'v_cvt_pk_bf16_f32 v{M1+u}, v{CB+2*u}, v{CB+2*u+1}')
        for u in range(5): k(f'v_lshlrev_b32 v{CB+2*u}, 16, v{M1+u}'); k(f'v_and_b32 v{CB+2*u+1}, 0xffff0000, v{M1+u}')
        k('s_mul_i32 s52, s3, 160'); k(f's_add_u32 s52, s52, {L_US}'); k(f'v_mul_u32_u24 v248, 2560, v3'); k('v_lshl_add_u32 v248, v2, 2, v248'); k('v_add_u32 v248, s52, v248')
        k('v_add_u32 v249, 1280, v248')
        self.w_issue(c.iss_b5b)
        L=self.w0(); k.wait(*gt); self.end(L)
        if self.tw5: k.wait(self.tw5)
        k('s_barrier')
        self.stamp(11)
    GA=106; SB=116; CB=126
    def p2b(self):
        k=self.k; c=self.c; T=self.T; FA=self.FA; TW=self.TW; G4=self.G4; XV=self.XV; GA,SB,CB=self.GA,self.SB,self.CB
        ZF=20; VV=32; PB=80; Y=32
        for mt in range(3):
            for h in range(2): k(f'ds_read2_b32 v[{ZF+4*mt+2*h}:{ZF+4*mt+2*h+1}], v{248+h} offset0:{D2B[mt]} offset1:{160+D2B[mt]}')
        self.w_issue(c.iss_b6)
        for ab in range(2):
            for mt in range(3):
                for o in range(2):
                    d=VV+24*ab+8*mt+4*o
                    k(f'v_mfma_f32_16x16x32_bf16 v[{d}:{d+3}], v[{ZF+4*mt}:{ZF+4*mt+3}], v[{FA+8*ab+4*o}:{FA+8*ab+4*o+3}], 0')
        YY=[ZF, 32]
        for ab in range(2):
            for mt in range(3):
                re=VV+24*ab+8*mt; im=re+4; cc=TW+8*mt; s=cc+4
                for j in range(4): k(f'v_mul_f32 v{T+j}, v{re+j}, v{cc+j}'); k(f'v_mul_f32 v{T+4+j}, v{im+j}, v{cc+j}')
                for j in range(4): k(f'v_fmac_f32 v{T+j}, v{im+j}, v{s+j}'); k(f'v_fma_f32 v{T+4+j}, -v{re+j}, v{s+j}, v{T+4+j}')
                for j in range(4): k(f'v_cvt_pk_bf16_f32 v{PB+12*ab+4*mt+j}, v{T+j}, v{T+4+j}')
            for mt in range(3):
                for et in range(3):
                    d=f'v[{YY[ab]+4*et}:{YY[ab]+4*et+3}]'
                    k(f'v_mfma_f32_16x16x32_bf16 {d}, v[{G4+12*et+4*mt}:{G4+12*et+4*mt+3}], v[{PB+12*ab+4*mt}:{PB+12*ab+4*mt+3}], {d if mt else 0}')
        self.stamp(12)
        if c.defer_sh:
            L=self.w0(); k('s_lshl_b32 s87, s12, 10'); k(f's_add_u32 s87, s87, {WS_FLG+FL_GF2+512}'); k('v_lshlrev_b32 v253, 3, v1')
            k('buffer_load_dwordx2 v[246:247], v253, s[16:19], s87 offen sc1'); self.end(L)
        self.w_issue(c.iss_stb)
        k('s_lshl_b32 s74, s3, 1')
        k(f'v_and_b32 v{T+8}, 7, v1'); k(f'v_xor_b32 v{T+8}, s74, v{T+8}'); k(f'v_lshlrev_b32 v{T+8}, 4, v{T+8}'); k(f'v_lshl_add_u32 v{T+8}, v1, 7, v{T+8}')
        k(f'v_xor_b32 v{T+9}, 16, v{T+8}')
        k(f'v_bfe_u32 v{T+10}, v1, 2, 3'); k(f'v_xor_b32 v{T+10}, s74, v{T+10}'); k(f'v_lshlrev_b32 v{T+10}, 4, v{T+10}')
        k(f'v_lshrrev_b32 v{T+11}, 2, v1'); k(f'v_lshl_add_u32 v{T+10}, v{T+11}, 7, v{T+10}'); k(f'v_and_b32 v{T+11}, 3, v1'); k(f'v_lshl_add_u32 v{T+10}, v{T+11}, 2, v{T+10}')
        k(f'v_xor_b32 v{T+11}, 16, v{T+10}')
        for ab in range(2):
            for u in range(10): k(f'v_fmac_f32 v{XV+10*ab+u}, v{GA+u}, v{YY[ab]+u}')
        for ab in range(2):
            k(f'v_add_f32 v{T+2*ab}, v{XV+10*ab}, v{XV+10*ab+1}'); k(f'v_mul_f32 v{T+2*ab+1}, v{XV+10*ab}, v{XV+10*ab}')
        for ab in range(2): k(f'v_fmac_f32 v{T+2*ab+1}, v{XV+10*ab+1}, v{XV+10*ab+1}')
        for u in range(2,10):
            for ab in range(2):
                k(f'v_add_f32 v{T+2*ab}, v{T+2*ab}, v{XV+10*ab+u}'); k(f'v_fmac_f32 v{T+2*ab+1}, v{XV+10*ab+u}, v{XV+10*ab+u}')
        k(f'v_permlane16_swap_b32 v{T}, v{T+1}'); k(f'v_permlane16_swap_b32 v{T+2}, v{T+3}')
        k(f'v_add_f32 v{T}, v{T}, v{T+1}'); k(f'v_add_f32 v{T+2}, v{T+2}, v{T+3}')
        k(f'v_permlane32_swap_b32 v{T}, v{T+2}'); k(f'v_add_f32 v{T}, v{T}, v{T+2}')
        for sh in (8,4,2,1): k(f'v_add_f32_dpp v{T}, v{T}, v{T} row_ror:{sh} row_mask:0xf bank_mask:0xf')
        k(f'v_mul_f32 v{T}, 0x3acccccd, v{T}')
        for u in range(4): k(f'v_readlane_b32 s{52+u}, v{T}, {16*u}')
        for ab in range(2): k(f'v_mov_b32 v{T+2+ab}, s{53+2*ab}'); k(f'v_mov_b32 v{T+4+ab}, s{52+2*ab}')
        for ab in range(2): k(f'v_fma_f32 v{T+2+ab}, -v{T+4+ab}, v{T+4+ab}, v{T+2+ab}')
        for ab in range(2): k(f'v_max_f32 v{T+2+ab}, 0, v{T+2+ab}')
        for ab in range(2): k(f'v_add_f32 v{T+2+ab}, 0x3727c5ac, v{T+2+ab}')
        for ab in range(2): k(f'v_rsq_f32 v{T+2+ab}, v{T+2+ab}')
        for ab in range(2): k(f'v_mul_f32 v{T+4+ab}, -v{T+4+ab}, v{T+2+ab}')
        H=48
        for ab in range(2):
            for u in range(10): k(f'v_fma_f32 v{H+12*ab+u}, v{XV+10*ab+u}, v{T+2+ab}, v{T+4+ab}')
            for u in range(10): k(f'v_fma_f32 v{H+12*ab+u}, v{H+12*ab+u}, v{CB+u}, v{SB+u}')
            for u in range(5): k(f'v_cvt_pk_bf16_f32 v{PB+8*ab+u}, v{H+12*ab+2*u}, v{H+12*ab+2*u+1}')
            k(f'ds_write_b128 v{T+8+ab}, v[{PB+8*ab}:{PB+8*ab+3}] offset:{L_ZS}')
            t=k(f'ds_write_b32 v{T+10+ab}, v{PB+8*ab+4} offset:{L_ZS+8192}')
        k('s_lshr_b32 s53, s13, 1'); k('s_lshl_b32 s54, s12, 3'); k('s_add_u32 s53, s53, s54'); k('s_mul_i32 s53, s53, 20480')
        k('s_and_b32 s54, s13, 1'); k('s_lshl_b32 s54, s54, 7'); k('s_add_u32 s53, s53, s54'); k(f's_add_u32 s53, s53, {self.H2}')
        k(f'v_lshrrev_b32 v{T}, 3, v1'); k(f'v_xor_b32 v{T+1}, v{T}, v1'); k(f'v_and_b32 v{T+1}, 7, v{T+1}'); k(f'v_lshlrev_b32 v{T+1}, 4, v{T+1}')
        k(f'v_lshl_add_u32 v{T+1}, v{T}, 8, v{T+1}')
        k.wait(t); self.w_wait(c.tr_b7)
        k('s_barrier')
        self.stamp(13)
        L=self.w0(); ht=[]
        R=136
        for u in range(10): k(f'ds_read_b128 v[{R+4*u}:{R+4*u+3}], v18 offset:{L_ZS+1024*u}')
        for u in range(10):
            if u%2==0 and u: k('s_add_u32 s53, s53, 4096')
            ht.append(k(f'buffer_store_dwordx4 v[{R+4*u}:{R+4*u+3}], v{T+1}, s[16:19], s53 offen offset:{2048*(u%2)}'))
        self.end(L)
        self.w_issue(c.iss_b7)
        k(f'v_add_u32 v250, {L_X1-L_XR}, v250'); k(f'v_add_u32 v251, {L_X1-L_XR}, v251'); k(f's_add_u32 s72, s72, {L_X1-L_XR}')
        for ab in range(2):
            for u in range(5): k(f'v_cvt_pk_bf16_f32 v{20+8*ab+u}, v{XV+10*ab+2*u}, v{XV+10*ab+2*u+1}')
            for u in range(10):
                op='ds_write_b16_d16_hi' if u&1 else 'ds_write_b16'
                if u<8: t=k(f'{op} v250, v{20+8*ab+(u>>1)} offset:{1280*ab+32*u}')
                else: t=k(f'{op} v251, v{20+8*ab+(u>>1)} offset:{1280*ab+1024+32*(u-8)}')
        k(f'v_add_u32 v{T+2}, s72, v18'); k(f'v_lshlrev_b32 v107, 2, v1'); k(f'v_add_u32 v{T+3}, s72, v107')
        k.wait(t)
        X1R=96
        for ab in range(2):
            k(f'ds_read_b128 v[{X1R+4*ab}:{X1R+4*ab+3}], v{T+2} offset:{1280*ab}'); tx=k(f'ds_read_b32 v{X1R+8+ab}, v{T+3} offset:{1280*ab+1024}')
        L=self.w0(); k.wait(*ht); self.stamp(14); self.gpost(1); self.end(L)
        tw=self.w_tr(c.tr_b7)
        self.p3_setup()
        L=self.w0()
        if c.defer_sh:
            Lo=k.label('ok'); chk=['v_xor_b32 v246, s14, v246', 'v_xor_b32 v247, s14, v247', 'v_or_b32 v246, v246, v247', 'v_cmp_ne_u32 vcc, 0, v246']
            for x in chk: k(x)
            k(f's_cbranch_vccz {Lo}'); k('v_lshlrev_b32 v253, 3, v1')
            self.poll('buffer_load_dwordx2 v[246:247], v253, s[16:19], s87 offen sc1', chk)
            k(f'{Lo}:')
        self.gpoll(1); self.end(L)
        k.wait(tx)
        if tw: k.wait(tw)
        k('s_barrier')
        self.stamp(15)
    HB=24; AC=56; EP=104; WDV=116
    def p3_setup(self, part=None):
        k=self.k; T=20
        if part!=0:
            k(f'v_and_b32 v{T}, 1, v3'); k(f'v_lshrrev_b32 v{T+1}, 1, v3')
            k(f'v_mul_u32_u24 v248, 49152, v{T}'); k(f'v_lshl_add_u32 v248, v{T+1}, 8, v248'); k('v_lshl_add_u32 v248, v2, 4, v248')
            k(f'v_mul_u32_u24 v249, 49152, v{T+1}'); k(f'v_lshl_add_u32 v249, v{T}, 3, v249'); k('v_lshl_add_u32 v249, v2, 4, v249')
            k(f'v_mov_b32 v250, 0x{f32(K1c):08x}'); k(f'v_mov_b32 v254, 0x{f32(K2c):08x}'); k(f'v_add_u32 v255, {L_H[1]}, v18')
        if part!=1:
            k('s_mul_i32 s75, s13, 3072'); k('s_mul_i32 s52, s3, 768'); k('s_add_u32 s75, s75, s52')
            k(f's_mul_i32 s66, s12, {8*49152}'); k('s_mul_i32 s67, s12, 163840')
            srd(k,20,46,S*D*2)
            k('s_mul_i32 s76, s12, 163840'); k('s_mul_i32 s77, s3, 10240'); k('s_add_u32 s76, s76, s77'); k(f's_add_u32 s76, s76, {self.H2}')
            k('s_lshl_b32 s78, s12, 7'); k('s_lshl_b32 s52, s13, 3'); k('s_add_u32 s78, s78, s52'); k('s_add_u32 s78, s78, s74'); k('s_mul_i32 s78, s78, 1280'); k(f's_add_u32 s78, s78, {self.X1}')
            k('s_and_b32 s79, s13, 7'); k('s_mul_i32 s80, s79, 48'); k('s_mul_i32 s52, s3, 12'); k('s_add_u32 s80, s80, s52'); k('s_mul_i32 s80, s80, 5120'); k(f's_add_u32 s88, s80, {WS_WDS}')
    def gfl(self,c): return '' if (c==0 and self.a3()) else self.c.gfl[c]
    def zo(self): return self.c.zout and not self.c.noalias
    def a3(self): return not self.c.zout and self.c.galias and self.c.alias3 and self.c.alias2 and not self.c.noalias
    def w4_setup(self):
        k=self.k; T=232
        k('s_cmp_lt_u32 s3, 2'); k('s_cselect_b32 s28, s36, s38'); k('s_cselect_b32 s29, s37, s39'); k('s_and_b32 s29, s29, 0xffff')
        k(f's_mov_b32 s53, {(2**32+11)//12}'); k('s_and_b32 s52, s3, 1'); k('s_mul_i32 s52, s52, 192'); k('s_mul_i32 s56, s3, 3072'); k(f's_add_u32 s56, s56, {L_RING}')
        for m in range(3):
            k(f'v_add_u32 v{T}, s52, v1')
            if m: k(f'v_add_u32 v{T}, {64*m}, v{T}')
            k(f'v_mul_hi_u32 v{T+1}, v{T}, s53'); k(f'v_mul_u32_u24 v{T+2}, 12, v{T+1}'); k(f'v_sub_u32 v{T+2}, v{T}, v{T+2}')
            k(f'v_lshrrev_b32 v{T+3}, 3, v{T+1}'); k(f'v_bfe_u32 v{T+4}, v{T+1}, 1, 2'); k(f'v_lshl_add_u32 v{T+3}, v{T+3}, 2, v{T+4}'); k(f'v_and_b32 v{T+4}, 1, v{T+1}')
            k(f'v_lshl_add_u32 v{T+3}, v{T+4}, 4, v{T+3}'); k(f'v_mul_u32_u24 v{T+3}, 3072, v{T+3}'); k(f'v_lshl_add_u32 v{4+m}, v{T+2}, 4, v{T+3}')
    def w4_items(self):
        k=self.k; out=[]
        for st in self.c.w4:
            for ks in (st,):
                assert ks>=16
                for m in range(3):
                    pre=[f's_add_u32 m0, s56, {self.c.slot[st]*12288+1024*m}']
                    if m==0: pre.insert(0,f's_add_u32 s58, s57, {(512+32*(ks-16))*3072}')
                    out.append((pre, lambda m=m,st=st: self.wt.setdefault(st,[]).append(k(f'buffer_load_dwordx4 v{4+m}, s[28:31], s58 offen lds'))))
        return out
    def gf2_check(self): pass
    def gf2_issue(self): pass
    def gbase(self, cidx):
        if not self.c.galias: return ('s66', WS_G+2*cidx*49152)
        if self.zo(): return ('s67', self.H2+(0 if self.c.gfl[2] else 98304*(cidx-2))) if self.c.gfl[cidx]=='' else ('s66', WS_G+2*cidx*49152)
        if self.c.alias2 and not self.c.noalias and self.c.alias3 and cidx!=1: return ('s67', {0:WS_Z,2:self.H2,3:self.H2+98304}[cidx])
        if self.c.alias2 and not self.c.noalias and cidx>=2: return ('s67', self.H2 if cidx==2 else WS_Z)
        return ('s66', WS_G+2*cidx*49152)
    def h2_dma(self, cidx, toks):
        k=self.k; out=[]
        def first(): k(f's_add_u32 s81, s76, {cidx*40960}'); k(f's_add_u32 m0, s77, {L_H[cidx&1]}')
        out.append(first)
        for u in range(10):
            if u%4==0 and u: out.append(lambda: (k('s_add_u32 s81, s81, 4096'), k('s_add_u32 m0, m0, 4096')))
            out.append(lambda u=u: toks.append(k(f'buffer_load_dwordx4 v18, s[16:19], s81 offen offset:{1024*(u%4)} sc1 lds')))
        return out
    def wd_dst(self,u):
        return f'v[{self.WDV+4*u}:{self.WDV+4*u+3}]' if u<self.NL0 else f'a[{4*(u-self.NL0)}:{4*(u-self.NL0)+3}]'
    NL0=33; L_WD=81920
    @property
    def NL1(self): return self.c.nl1
    def wd_loads(self, us):
        k=self.k; out=[]; prev=None
        for u in us:
            pre=[]
            if u//4!=prev: pre.append(f's_add_u32 s80, s88, {4096*(u//4)}')
            if self.NL0<=u<self.NL1:
                pre.insert(0,f's_add_u32 m0, s85, {(u-self.NL0-(u%4))*1024}')
                out.append((pre, lambda u=u: self.wdl.append(k(f'buffer_load_dwordx4 v18, s[16:19], s80 offen offset:{1024*(u%4)} sc1 lds'))))
            else: out.append((pre, f'buffer_load_dwordx4 {self.wd_dst(u)}, v18, s[16:19], s80 offen offset:{1024*(u%4)} sc1'))
            prev=u//4
        return out
    def h2_dma2(self, cidx, toks):
        k=self.k; out=[]
        for u in range(10):
            pre=[]
            if u%4==0: pre=[f's_add_u32 m0, s77, {L_H[cidx&1]+4096*(u//4)}', f's_add_u32 s81, s76, {cidx*40960+4096*(u//4)}']
            out.append((pre, lambda u=u: toks.append(k(f'buffer_load_dwordx4 v18, s[16:19], s81 offen offset:{1024*(u%4)} sc1 lds'))))
        return out
    def epi(self, cidx):
        A=self.AC+24*(cidx&1); EP=self.EP; L=[]; k=self.k; fl=self.gfl(cidx) or self.c.gnt
        acc=lambda nt,T,j: A+12*nt+4*T+j
        for j in range(4): L.append(f'v_permlane32_swap_b32 v{acc(0,2,j)}, v{acc(1,2,j)}')
        groups=[[(acc(0,0,j),acc(0,1,j)) for j in range(4)],[(acc(1,0,j),acc(1,1,j)) for j in range(4)],[(acc(0,2,j),acc(1,2,j)) for j in range(4)]]
        for gi,gr in enumerate(groups):
            t=EP
            if self.c.pk or (self.c.pk3 and cidx==3):
                g0,u0=gr[0]; P=lambda r,j: f'v[{r+2*j}:{r+2*j+1}]'
                for j in range(2): L.append(f'v_pk_mul_f32 {P(t,j)}, {P(g0,j)}, {P(g0,j)}')
                for j in range(2): L.append(f'v_pk_fma_f32 {P(t,j)}, {P(t,j)}, v[254:255], v[250:251] op_sel_hi:[1,0,0]')
                for j in range(2): L.append(f'v_pk_mul_f32 {P(t,j)}, {P(t,j)}, {P(g0,j)}')
                for j in range(4): L.append(f'v_exp_f32 v{t+j}, v{t+j}')
                for j in range(2): L.append(f'v_pk_mul_f32 {P(g0,j)}, {P(g0,j)}, {P(u0,j)}')
                for j in range(2): L.append(f'v_pk_add_f32 {P(t,j)}, {P(t,j)}, 1.0 op_sel_hi:[1,0]')
                for j in range(4): L.append(f'v_rcp_f32 v{t+j}, v{t+j}')
                for j in range(2): L.append(f'v_pk_mul_f32 {P(g0,j)}, {P(g0,j)}, {P(t,j)}')
            else:
                for j,(g,u) in enumerate(gr): L.append(f'v_mul_f32 v{t+j}, v{g}, v{g}')
                for j,(g,u) in enumerate(gr): L.append(f'v_fma_f32 v{t+j}, v{t+j}, v254, v250')
                for j,(g,u) in enumerate(gr): L.append(f'v_mul_f32 v{t+j}, v{t+j}, v{g}')
                for j,(g,u) in enumerate(gr): L.append(f'v_exp_f32 v{t+j}, v{t+j}')
                for j,(g,u) in enumerate(gr): L.append(f'v_mul_f32 v{g}, v{g}, v{u}')
                for j,(g,u) in enumerate(gr): L.append(f'v_add_f32 v{t+j}, 1.0, v{t+j}')
                for j,(g,u) in enumerate(gr): L.append(f'v_rcp_f32 v{t+j}, v{t+j}')
                for j,(g,u) in enumerate(gr): L.append(f'v_mul_f32 v{g}, v{g}, v{t+j}')
            o=EP+4+2*gi
            L.append(f'v_cvt_pk_bf16_f32 v{o}, v{gr[0][0]}, v{gr[1][0]}'); L.append(f'v_cvt_pk_bf16_f32 v{o+1}, v{gr[2][0]}, v{gr[3][0]}')
            if gi==1:
                L.append(f's_add_u32 s82, s75, {self.gbase(cidx)[0]}'); L.append(f's_add_u32 s82, s82, {self.gbase(cidx)[1]}')
                L.append(f'v_permlane16_swap_b32 v{EP+4}, v{EP+6}'); L.append(f'v_permlane16_swap_b32 v{EP+5}, v{EP+7}')
                L.append(lambda: self.gst[cidx].append(k(f'buffer_store_dwordx4 v[{EP+4}:{EP+7}], v248, s[16:19], s82 offen {fl}')))
        L.append(lambda: self.gst[cidx].append(k(f'buffer_store_dwordx2 v[{EP+8}:{EP+9}], v249, s[16:19], s82 offen offset:512 {fl}')))
        return L
    def cost(self,x): return 2 if isinstance(x,str) and x.startswith(('v_exp','v_rcp','ds_read_b128')) else (self.c.pkcost if isinstance(x,str) and x.startswith('v_pk') else 1)
    def do(self,x): return None if isinstance(x,int) else (x() if callable(x) else self.k(x))
    def fill(self, side, slots, now=0):
        while side and slots>=self.cost(side[0]) and now>=self.until:
            x=side.pop(0)
            if isinstance(x,int): self.until=now+x; continue
            slots-=self.cost(x); self.do(x)
        return slots
    until=0
    def vm_step(self, vm, slots, now, gap):
        if not vm or slots<=0: return slots
        e=vm[0]
        if len(e)>2 and now<e[2]-len(e[0]): return slots
        if e[0]:
            self.do(e[0].pop(0)); return slots-1
        if now-self.lastvm<gap or (len(e)>2 and now<e[2]): return slots
        self.do(e[1]); vm.pop(0); self.lastvm=now
        return slots-1
    GFa=108
    def gdst(self,s,kl):
        o=self.GFa+((s%3)*12+kl)*4; return f'a[{o}:{o+3}]'
    def g_loads(self,s):
        out=[]
        for kl in range(12):
            pre=[f's_add_u32 s{60+s}, s{60+s}, 4096'] if kl%4==0 and kl else []
            out.append((pre, f'buffer_load_dwordx4 {self.gdst(s,kl)}, v18, s[16:19], s{60+s} offen offset:{1024*(kl%4)} sc1'))
        return out
    def p3(self):
        k=self.k; c=self.c; self.gst={i:[] for i in range(4)}; self.wdl=[]
        ht={i:[] for i in range(4)}
        if c.c0split:
            n1=c.c0n; hta=[]
            k('s_lshr_b32 s52, s3, 1'); k('s_mul_i32 s52, s52, 20480'); k('s_and_b32 s53, s3, 1'); k('s_sub_u32 s54, s76, s77'); k('s_add_u32 s54, s54, s52')
            for h,(n,base) in enumerate(((n1,0),(10-n1,2*n1))):
                k(f's_mul_i32 s55, s53, {1024*n}'); k(f's_add_u32 s55, s55, {1024*base}'); k('s_add_u32 s81, s54, s55'); k('s_add_u32 m0, s52, s55')
                for u in range(n):
                    if u%4==0 and u: k('s_add_u32 s81, s81, 4096'); k('s_add_u32 m0, m0, 4096')
                    t=k(f'buffer_load_dwordx4 v18, s[16:19], s81 offen offset:{1024*(u%4)} sc1 lds'); (ht[0] if h==0 else hta).append(t)
        else:
          for pre,op in self.h2_dma2(0,ht[0]):
            for x in pre: k(x)
            op()
        X1R=96
        for ab in range(2):
            if c.alias2:
                k(f's_mul_i32 s52, s{70+ab}, 1280')
                self.gst[0].append(k(f'buffer_store_dwordx4 v[{X1R+4*ab}:{X1R+4*ab+3}], v18, s[20:23], s52 offen {c.x1fl}'))
                self.gst[0].append(k(f'buffer_store_dword v{X1R+8+ab}, v107, s[20:23], s52 offen offset:1024 {c.x1fl}'))
            if c.noalias or not c.alias2:
                self.gst[0].append(k(f'buffer_store_dwordx4 v[{X1R+4*ab}:{X1R+4*ab+3}], v18, s[16:19], s78 offen offset:{1280*ab} {c.x1fl}'))
                self.gst[0].append(k(f'buffer_store_dword v{X1R+8+ab}, v107, s[16:19], s78 offen offset:{1280*ab+1024} {c.x1fl}'))
        if c.pretouch and not (c.alias2 and c.galias):
            c0=min(i for i in range(4) if c.gfl[i]=='' ); nl=12*(4-c0)
            k(f's_mov_b32 s52, {(2**32+5)//6}'); k(f'v_min_u32 v20, {nl-1}, v1'); k('v_mul_hi_u32 v21, v20, s52')
            k(f'v_mul_u32_u24 v21, {49152-768}, v21'); k('v_lshl_add_u32 v21, v20, 7, v21'); k('s_add_u32 s52, s75, s66'); k(f's_add_u32 s52, s52, {WS_G+2*c0*49152}')
            k('buffer_load_dword a246, v21, s[16:19], s52 offen')
        self.w_issue(c.iss_b9)
        k('v_lshrrev_b32 v20, 2, v1'); k('v_min_u32 v20, 9, v20'); k('s_mul_i32 s53, s79, 320'); k('v_lshl_add_u32 v20, v20, 5, s53')
        for p in range(2):
            k(f's_mov_b32 s52, {WS_MOD+5120+MODP*p}')
            for h in range(2): k(f'buffer_load_dwordx4 v[{80+8*p+4*h}:{83+8*p+4*h}], v20, s[16:19], s52 offen offset:{16*h} sc1')
        if c.otouch=='c0':
            k('s_mul_i32 s52, s70, 1280'); k('s_mul_i32 s53, s71, 1280'); k('s_sub_u32 s53, s53, 1280')
            k('v_min_u32 v21, 19, v1'); k('v_cmp_gt_u32 vcc, 10, v21'); k('v_mov_b32 v22, s53'); k('v_mov_b32 v23, s52'); k('v_cndmask_b32 v22, v22, v23, vcc')
            k('v_lshl_add_u32 v21, v21, 7, v22'); k('buffer_load_dword a246, v21, s[20:23], 0 offen sc1')
        n0=len(k.ins); self.p3_setup(part=1); self.p4_setup()
        rec=[x.text for x in k.ins[n0:]]; del k.ins[n0:]
        p4s=[]; i=0
        touch=lambda t: any(f'v{r},' in t+',' for r in range(12,18))
        while i<len(rec):
            if rec[i].startswith('s_cmp'): p4s.append(lambda a=rec[i],b=rec[i+1]: (k(a),k(b))); i+=2
            else: p4s.append(rec[i]); i+=1
        cut=min(j for j,x in enumerate(p4s) if isinstance(x,str) and touch(x))
        p4a,p4b=p4s[:cut],p4s[cut:]
        gbc=[f'v_add_f32 v{80+u}, v{80+u}, v{88+u}' for u in range(8)]+[f'v_cvt_pk_bf16_f32 v{80+u}, v{80+2*u}, v{81+2*u}' for u in range(4)]
        gbc+=[f'v_accvgpr_write_b32 a{252+u}, v{80+u}' for u in range(4)]
        if c.wdlate:
            wd=self.wd_loads(list(range(0,c.per[0]))+list(range(self.NL0,self.NL1))+list(range(c.per[0],self.NL0))); self.wdx=self.wd_loads(range(self.NL1,60))
        else: wd=self.wd_loads(range(60)); self.wdx=[]
        per=c.per
        rt={}
        def rd(g,nt):
            cj,ks=divmod(g,20); o=self.HB+8*(g%4)+4*nt
            return k(f'ds_read_b128 v[{o}:{o+3}], v{255 if cj&1 else 18} offset:{20480*nt+1024*ks}')
        for ci in range(4):
            if ci==0 or not c.cont:
                k.wait(*ht[ci])
                if ci==0: self.w_wait(c.tr_c0)
                k('s_barrier')
                rd(20*ci,0); rt[20*ci]=rd(20*ci+1,0); rd(20*ci,1); rt[20*ci+1]=rd(20*ci+1,1)
            self.stamp(16+ci)
            side=[]; vm=[]; ev=EV()
            if ci==0:
                if c.tr_c0b:
                    side+=self.w_tr_list(c.tr_c0)
                    side+=p4a+gbc
                    ev[c.c0bar]=lambda side=side: (k.wait(*[t for st in c.tr_c0b for t in self.wt[st]]), k('s_barrier'), side.__setitem__(slice(0,0),self.w_tr_list(c.tr_c0b)), side.extend(p4b))
                else:
                    side+=self.w_tr_list(c.tr_c0)
                    side+=p4s+gbc
            if ci>0: side+=self.epi(ci-1)
            if ci<3:
                h=self.h2_dma2(ci+1,ht[ci+1]); w=[wd.pop(0) for _ in range(per[ci])]
                vm=h+w; gap=c.gap012
                if ci==0 and c.w4: vm=self.w4_items()+vm; gap=3
            else:
                wl=[]; gl=[]
                for e in wd:
                    if 'a[' not in e[1]: wl.append(e); continue
                    idx=int(e[1].split('a[')[1].split(':')[0]); wl.append((e[0],e[1],12*((idx+3)//24+1)))
                for e in self.g_loads(0):
                    idx=int(e[1].split('a[')[1].split(':')[0]); gl.append((e[0],e[1],max(12*((idx+3)//24+1),c.chk0+1)))
                vm=wl[:c.nwd1]+gl+wl[c.nwd1:]
                gap=c.gap3
                ev[c.chk0-20]=lambda: self.apoll(2)
                ev[c.chk0]=lambda: self.acheck()
                ev[c.post1]=lambda: (k.wait(*self.gst[1]), self.wpost(3,c.gfl[1]==''))
                ev[c.poll1]=lambda: self.apoll(3)
                lds=[f'ds_read_b128 a[{4*u}:{4*u+3}], v15 offset:{1024*u}' for u in range(self.NL1-self.NL0)]
                ev[27]=lambda: k.wait(*self.wdl)
            if ci==0 and c.c0split: ev[12*(c.c0n-1)+1]=lambda: (k.wait(*hta), k('s_barrier'))
            if ci==2: ev[c.post0]=lambda: (k.wait(*self.gst[0]), self.wpost(2,True))
            self.lastvm=-99; self.until=0; nm=0
            A=self.AC+24*(ci&1)
            for kp in range(10):
                for m in range(12):
                    if 1:
                        nt=m//6; T=(m%6)//2; ks=2*kp+(m&1); g=20*ci+ks; g0=20*ci+2*kp
                        if m==0: k.wait(rt[g0] if (kp==0 and g0 in rt) else rt[g0+1])
                        if c.cont and ci<3 and kp==9 and m==1:
                            assert len(ht[ci+1])==10
                            k.wait(*ht[ci+1])
                            if ci==0:
                                assert not any(isinstance(x,str) and x.startswith('ds_read_b64_tr') for x in side)
                                k('s_waitcnt lgkmcnt(0)')
                            k('s_barrier')
                        d=f'v[{A+12*nt+4*T}:{A+12*nt+4*T+3}]'; a=(ks*3+T)*4; o=self.HB+8*(g%4)+4*nt
                        k(f'v_mfma_f32_16x16x32_bf16 {d}, a[{a}:{a+3}], v[{o}:{o+3}], {d if ks else 0}')
                        nm+=1; slots=2
                        if nm in ev: ev.pop(nm)(); slots=0
                        if (kp<9 or (c.cont and ci<3)) and m in c.rdp:
                            j=c.rdp.index(m); rt[g0+3]=rd(g0+2+(j&1), j>>1); slots-=1
                        if m==11 and (kp<9 or (c.cont and ci<3)): slots-=1
                        if ci==3 and nm>=28 and lds and m in (0,2,4,7,9) and int(lds[0].split('a[')[1].split(':')[0])+3<24*(nm//12): k(lds.pop(0)); slots-=1
                        slots=self.vm_step(vm,slots,nm,gap)
                        self.fill(side,slots,nm)
            assert not ev
            for x in side: self.do(x)
            while vm:
                e=vm.pop(0)
                for x in e[0]: self.do(x)
                self.do(e[1])
            if ci==3: assert not lds
        self.stamp(20)
    def p4_setup(self):
        k=self.k
        k('s_lshr_b32 s83, s13, 3')
        k('s_mul_i32 s52, s83, 49152'); k('s_mul_i32 s53, s3, 12288'); k('s_add_u32 s52, s52, s53')
        for s in range(4): k(f's_add_u32 s{60+s}, s52, {self.gbase(s)[0]}'); k(f's_add_u32 s{60+s}, s{60+s}, {self.gbase(s)[1]}')
        if self.a3(): k(f's_mul_i32 s52, s83, {WS_Z-self.H2-49152}'); k('s_add_u32 s63, s63, s52')
        k('s_mul_i32 s85, s3, 20480'); k(f's_add_u32 s85, s85, {self.L_WD}')
        k('s_lshl_b32 s86, s13, 4'); k('s_lshl_b32 s52, s3, 2'); k('s_add_u32 s86, s86, s52'); k('s_add_u32 s86, s86, s68')
        k('v_mov_b32 v252, s14'); k('v_mov_b32 v253, 0')
        k('v_and_b32 v20, 3, v1'); k('v_lshrrev_b32 v21, 2, v1'); k('v_min_u32 v21, 9, v21')
        k('s_lshl_b32 s52, s3, 2'); k('v_add_u32 v20, s52, v20')
        k('v_lshrrev_b32 v22, 2, v21'); k('v_mul_u32_u24 v22, 2560, v22'); k('v_and_b32 v23, 3, v21')
        k('v_cmp_le_u32 vcc, 8, v21'); k('v_lshlrev_b32 v9, 1, v23'); k('v_cndmask_b32 v23, v23, v9, vcc')
        k('v_mul_u32_u24 v23, 320, v23'); k('v_add_u32 v22, v22, v23'); k('v_lshl_add_u32 v9, v20, 4, v22')
        k('v_mov_b32 v22, 1280'); k('v_mov_b32 v23, 320'); k('v_cndmask_b32 v22, v22, v23, vcc'); k('v_add_u32 v10, v9, v22')
        k('s_mul_i32 s53, s79, 160'); k('v_lshl_add_u32 v21, v21, 4, s53')
        k('s_lshl_b32 s52, s83, 4'); k('v_add_u32 v20, s52, v20')
        k('v_mul_u32_u24 v11, 1280, v20'); k('v_add_u32 v11, v11, v21')
        k('v_lshrrev_b32 v22, 1, v20'); k('v_lshl_add_u32 v22, v22, 5, s12')
        k('v_and_b32 v20, 1, v20')
        k('s_cmp_eq_u32 s12, 0'); k('s_cselect_b32 s53, -1008, 0')
        for s in range(4):
            r=[12,13,16,17][s]
            if s: k('v_add_u32 v22, 512, v22')
            if s==2: k('v_add_u32 v22, s53, v22')
            k('v_sub_u32 v23, 2048, v22')
            if s==0: k('v_cmp_eq_u32 vcc, 0, v22'); k(f'v_mov_b32 v{r}, 1024'); k(f'v_cndmask_b32 v23, v23, v{r}, vcc')
            k('v_cmp_eq_u32 vcc, 1, v20'); k(f'v_cndmask_b32 v{r}, v22, v23, vcc')
            k(f'v_mul_u32_u24 v{r}, 1280, v{r}'); k(f'v_add_u32 v{r}, v{r}, v21')
        k('s_mul_i32 s84, s12, 163840'); k(f's_add_u32 s84, s84, {self.X1}')
        k('s_mul_i32 s64, s3, 6400'); k('v_add_u32 v15, s85, v18'); k('v_lshlrev_b32 v14, 2, v1')
    def fin(self, s):
        R=64; X=248; GB=self.GBr; L=[]; buf=25600*(s&1); k=self.k
        if s==3: R=self.WDV
        for w in range(4):
            L.append(f'ds_read_b128 v[{R+8*w}:{R+8*w+3}], v9 offset:{buf+6400*w}'); L.append(f'ds_read_b128 v[{R+8*w+4}:{R+8*w+7}], v10 offset:{buf+6400*w}')
        XU=4 if s&1 else 20
        L.append(self.c.hold1)
        if s==3 and self.c.tailopt:
            P=lambda r,u: f'v[{r+2*u}:{r+2*u+1}]'
            for u in range(4): L.append(f'v_pk_add_f32 {P(R,u)}, {P(R,u)}, {P(R+8,u)}')
            for u in range(4): L.append(f'v_pk_add_f32 {P(R+16,u)}, {P(R+16,u)}, {P(R+24,u)}')
            for u in range(4): L.append(f'v_pk_add_f32 {P(R,u)}, {P(R,u)}, {P(R+16,u)}')
            for u in range(4): L.append(f'v_pk_fma_f32 {P(R,u)}, {P(R,u)}, {P(GB,u)}, {P(64,u)}')
            for u in range(4): L.append(f'v_cvt_pk_bf16_f32 v{R+u}, v{R+2*u}, v{R+2*u+1}')
            L.append(lambda: (k('s_mov_b32 exec_hi, 0xff'), k(f'buffer_store_dwordx4 v[{R}:{R+3}], v17, s[20:23], 0 offen {self.c.outfl}')))
            return L
        for u in range(8): L.append(f'v_add_f32 v{R+u}, v{R+u}, v{R+8+u}')
        for u in range(8): L.append(f'v_add_f32 v{R+16+u}, v{R+16+u}, v{R+24+u}')
        for u in range(4): L.append(f'v_lshlrev_b32 v{R+8+2*u}, 16, v{XU+u}'); L.append(f'v_and_b32 v{R+9+2*u}, 0xffff0000, v{XU+u}')
        for u in range(8): L.append(f'v_add_f32 v{R+u}, v{R+u}, v{R+16+u}')
        for u in range(8): L.append(f'v_fmac_f32 v{R+8+u}, v{R+u}, v{GB+u}')
        for u in range(4): L.append(f'v_cvt_pk_bf16_f32 v{R+u}, v{R+8+2*u}, v{R+9+2*u}')
        r=[12,13,16,17][s]
        L.append(lambda: (k('s_mov_b32 exec_hi, 0xff'), k(f'buffer_store_dwordx4 v[{R}:{R+3}], v{r}, s[20:23], 0 offen {self.c.outfl}'), k('s_mov_b32 exec_hi, -1')))
        return L
    GBr=96
    def p4(self):
        k=self.k; c=self.c
        ACC=24; GB=self.GBr
        x1ld=(lambda s: ([], f'buffer_load_dwordx4 v[{4 if s&1 else 20}:{7 if s&1 else 23}], v{[12,13,16,17][s]}, s[20:23], 0 offen sc1')) if c.alias2 else lambda s: ([f's_add_u32 s65, s84, {32*s*1280}'], f'buffer_load_dwordx4 v[{4 if s&1 else 20}:{7 if s&1 else 23}], v11, s[16:19], s65 offen sc1')
        k('v_lshl_add_u32 v8, v3, 6, v18'); k('v_add_u32 v8, s64, v8')
        if self.a3():
            k(f's_mov_b32 s52, {WS_Z-self.H2-49152}'); k('v_and_b32 v20, 1, v3'); k('v_lshrrev_b32 v21, 1, v3'); k('v_mad_u32_u24 v248, v20, s52, v248'); k('v_mad_u32_u24 v249, v21, s52, v249')
        ep=self.epi(3); self.gtok={}
        def vmk(e,s,kl): return (e[0], lambda: self.gtok.__setitem__((s,kl), k(e[1])))+tuple(e[2:])
        for x in ep[:12]: self.do(x)
        self.stamp(27)
        self.acheck()
        self.stamp(28)
        vm=self.wdx+[vmk(e,1,i) for i,e in enumerate(self.g_loads(1))]+[x1ld(0)]
        for n,x in enumerate(ep[12:]):
            self.do(x)
            if n==c.post2n and not c.post2s: k.wait(*self.gst[2]); self.wpost(4,c.gfl[2]=='')
            if n%c.ep_sp==0 and vm:
                e=vm.pop(0)
                for y in e[0]: self.do(y)
                self.do(e[1])
        assert len(ep)-12>c.post2n
        self.stamp(29)
        carry=vm
        self.stamp(21)
        for s in range(4):
            A=ACC+20*(s&1); side=[]; vm=carry; carry=[]; ev=EV()
            if s==0:
                if c.post2s: ev[c.post2s]=lambda: (k.wait(*self.gst[2]), self.wpost(4,c.gfl[2]==''))
                ev[c.chk2-c.pd2]=lambda: self.apoll(4); ev[c.chk2]=lambda: self.acheck()
                vm+=[vmk(e+(c.chk2+1,),2,i) for i,e in enumerate(self.g_loads(2))]
                ev[c.post3]=lambda: (k.wait(*self.gst[3]), self.wpost(5,c.gfl[3]==''))
                side+=[f'v_accvgpr_read_b32 v{GB+2*u+1}, a{252+u}' for u in range(4)]+[x for u in range(4) for x in (f'v_lshlrev_b32 v{GB+2*u}, 16, v{GB+2*u+1}', f'v_and_b32 v{GB+2*u+1}, 0xffff0000, v{GB+2*u+1}')]
                vm.append(x1ld(1))
            else:
                B=ACC+20*((s-1)&1)
                wr=[f'ds_write_b128 v8, v[{B+4*mt}:{B+4*mt+3}] offset:{25600*((s-1)&1)+1280*mt}' for mt in range(5)]
            if s==1:
                ev[c.chk3-c.pd3]=lambda: self.apoll(5); ev[c.chk3]=lambda: self.acheck()
                vm+=[vmk(e+(c.chk3+1,),3,i) for i,e in enumerate(self.g_loads(3))]
            for wbp in [p for p in (c.wb4 or []) if p[0]==s]:
                def wbf():
                    Lw=k.label('wb'); k('s_and_b32 s52, s12, 1'); k('s_lshl_b32 s52, s52, 4'); k('s_add_u32 s52, s52, s13'); k('s_lshl_b32 s52, s52, 2'); k('s_add_u32 s52, s52, s3'); k(f's_cmp_lg_u32 s52, {c.wbwho}'); k(f's_cbranch_scc1 {Lw}')
                    k('buffer_wbl2 sc1'); k(f'{Lw}:')
                ev[wbp[1]]=wbf
            self.lastvm=-99; self.until=0; nm=0; stage=0
            order=[(kl,mt) for kl in range(12) for mt in range(5)]
            if c.p4pair: order=[(2*kp+j,mt) for kp in range(6) for mt in range(5) for j in range(2)]
            if s==3 and c.tailopt: order=order[:20]+[(kl,mt) for mt in range(5) for kl in range(4,12)]
            for kl,mt in order:
                if 1:
                    if mt==0 and kl%4==0 and (s,kl+3) in self.gtok: k.wait(self.gtok[(s,kl+3)])
                    d=f'v[{A+4*mt}:{A+4*mt+3}]'; u=kl*5+mt
                    k(f'v_mfma_f32_16x16x32_bf16 {d}, {self.wd_dst(u)}, {self.gdst(s,kl)}, {d if kl else 0}')
                    nm+=1; slots=2
                    if nm in (20,40): slots-=1
                    if nm in ev: ev.pop(nm)(); slots=0
                    if s>=1:
                        if wr and nm>=4 and nm%c.wsp==0: tw=k(wr.pop(0)); slots-=1; lastw=nm
                        if stage==0 and not side and not wr and nm>=lastw+c.hold2:
                            stage=1
                            k.wait(tw); k('s_barrier'); slots=0
                            side+=self.fin(s-1)
                            if s<3: side.append(lambda s=s,vm=vm: vm.append(x1ld(s+1)))
                    if s==3 and c.tailopt and nm in (32,40,48,56):
                        m2=(nm-32)//8; k(f'ds_write_b128 v8, v[{A+4*m2}:{A+4*m2+3}] offset:{25600+1280*m2}'); slots-=1
                    slots=self.vm_step(vm,slots,nm,c.gap4)
                    self.fill(side,slots,nm)
            assert s==0 or stage==1
            assert not ev
            for x in side: self.do(x)
            if s<3: carry=[e[:2] for e in vm]; vm=[]
            while vm:
                e=vm.pop(0)
                for x in e[0]: self.do(x)
                self.do(e[1])
            self.stamp(23+s)
        B=ACC+20
        if c.tailopt:
            for u in range(4): k(f'v_lshlrev_b32 v{64+2*u}, 16, v{4+u}'); k(f'v_and_b32 v{65+2*u}, 0xffff0000, v{4+u}')
        for mt in range(4 if c.tailopt else 0,5): tw=k(f'ds_write_b128 v8, v[{B+4*mt}:{B+4*mt+3}] offset:{25600+1280*mt}')
        k.wait(tw); k('s_barrier')
        for x in self.fin(3): self.do(x)

def make(path, **kw):
    c=Cfg()
    for a,b in kw.items(): setattr(c,a,b)
    g=Gen(c); k=g.build()
    t,d=k.finish(table_text(NAME+'_tab'))
    hdr=open('header.txt').read()
    open(path,'w').write(hdr+'; @launch grid=(256,1,1) block=(256,1,1) lds=163840\n.amdgcn_target "amdgcn-amd-amdhsa--gfx950"\n'+t+d)
    print(path,k.stats)
if __name__=='__main__':
    make('f_dbg.s',prof=True,noalias=True); make('f_prof.s',prof=True); make('f.s')
```

```python
from gen_f import *
import gen_f

class Gen2(Gen):
    BF=20; ACC=68; CAV=92; FA=104; TW=120; G4=144; XV=180; UO=192; A2=200; T=232
    GA=200; SB=210; CB=220
    def pre0(self, mts, first=True):
        k=self.k; c=self.c; T=self.T; A2=self.A2; UO=self.UO
        if first: k(f's_add_u32 s60, s50, {WS_FLG}'); k('s_addc_u32 s61, s51, 0'); k('s_load_dword s14, s[60:61], 0')
        if not mts: return
        k('s_cmp_ge_u32 s3, 2'); k('s_cselect_b32 s52, -1008, 0'); k('s_cmp_eq_u32 s12, 0'); k('s_cselect_b32 s52, s52, s12')
        k('s_lshl_b32 s53, s3, 9'); k('s_add_u32 s73, s52, s53')
        k('s_cmp_eq_u32 s12, 0'); k('s_cselect_b32 s54, 1, 0'); k('s_lshr_b32 s55, s3, 1')
        k('s_and_b32 s52, s54, s55'); k('s_andn2_b32 s53, s54, s55')
        k(f'v_and_b32 v{T+1}, 1, v2'); k(f'v_cvt_f32_u32 v{T+1}, v{T+1}'); k(f'v_mul_f32 v{T+1}, 0x3e800000, v{T+1}')
        k('s_cmp_eq_u32 s12, 0'); k('s_cselect_b32 s54, 0, 0xbe800000'); k(f'v_add_f32 v{T+3}, s54, v{T+1}')
        k(f'v_mov_b32 v{T+6}, 0x3e800000')
        k(f'v_lshlrev_b32 v{T+4}, 2, v3'); k(f'v_cvt_f32_u32 v{T+4}, v{T+4}')
        k('s_cmp_lg_u32 s52, 0'); k('s_cselect_b64 s[68:69], -1, 0'); k('s_cmp_lg_u32 s53, 0'); k('s_cselect_b64 s[70:71], -1, 0')
        k(f'v_cndmask_b32 v{T+1}, v{T+1}, v{T+6}, s[68:69]'); k(f'v_cndmask_b32 v{T+3}, v{T+3}, v{T+6}, s[70:71]')
        for mt in mts:
            k(f'v_lshrrev_b32 v{T}, 1, v2'); k(f'v_lshl_add_u32 v{T}, v{T}, 5, s73')
            if mt: k(f'v_add_u32 v{T}, 256, v{T}')
            k(f'v_cvt_f32_u32 v{T}, v{T}'); k(f'v_mul_f32 v{T}, 0x3a000000, v{T}')
            k(f'v_cndmask_b32 v{T+2}, v{T}, 0, s[70:71]'); k(f'v_cndmask_b32 v{T}, v{T}, 0, s[68:69]')
            k(f'v_mov_b32 v{T+5}, v{T+1}')
            if mt==0:
                k('s_cmp_eq_u32 s73, 0'); k('s_cselect_b32 s54, 1, 99'); k('v_cmp_eq_u32 vcc, s54, v2')
                k(f'v_cndmask_b32 v{T}, v{T}, 0.5, vcc'); k(f'v_cndmask_b32 v{T+5}, v{T+5}, 0, vcc')
            k(f'v_fma_f32 v{T+5}, v{T}, v{T+4}, v{T+5}'); k(f'v_fma_f32 v{T+7}, v{T+2}, v{T+4}, v{T+3}')
            for ks in range(4):
                for u in range(4):
                    cc=16*ks+u
                    k(f'v_fmamk_f32 v{T+8+2*u}, v{T}, {float(cc)}, v{T+5}'); k(f'v_fmamk_f32 v{T+9+2*u}, v{T+2}, {float(cc)}, v{T+7}')
                for u in range(8): k(f'v_cos_f32 v{T+8+u}, v{T+8+u}')
                for u in range(4): k(f'v_cvt_pk_bf16_f32 v{A2+16*mt+4*ks+u}, v{T+8+2*u}, v{T+9+2*u}')
    def early(self):
        k=self.k; c=self.c; T=self.T; UO=self.UO
        srd(k,16,50,self.wssize)
        k('v_lshlrev_b32 v18, 4, v1')
        Lp=k.label('pc'); k('s_getpc_b64 s[52:53]'); k(f'{Lp}:'); k(f's_add_u32 s52, s52, {NAME}_tab-{Lp}'); k('s_addc_u32 s53, s53, 0'); srd(k,24,52,17408)
        k('s_lshl_b32 s53, s3, 12'); k(f's_add_u32 m0, s53, {L_TAB}'); self.tabt=[]
        for u in range(4): self.tabt.append(k(f'buffer_load_dwordx4 v18, s[24:27], s53 offen offset:{1024*u} lds'))
        k(f's_mov_b32 m0, {L_TAB+16384}'); k('s_mov_b32 s53, 16384')
        self.tabt.append(k(f'buffer_load_dwordx4 v18, s[24:27], s53 offen lds'))
        if c.tlb:
            L=k.label('tl'); k('s_cmp_lg_u32 s3, 3'); k(f's_cbranch_scc1 {L}')
            k(f'v_lshlrev_b32 v{T}, {c.tlb}, v1'); k(f'v_add_u32 v{T}, 0x3ff80, v{T}')
            k(f'buffer_load_dword a246, v{T}, s[16:19], 0 offen')
            srd(k,28,46,S*D*2); k(f'buffer_load_dword a247, v{T}, s[28:31], 0 offen')
            k(f'{L}:')
        if c.gtouch:
            k(f'v_and_b32 v{T}, 7, v1'); k(f'v_lshlrev_b32 v{T}, 7, v{T}'); k(f'v_bfe_u32 v{T+1}, v1, 3, 1'); k(f'v_mul_u32_u24 v{T+1}, {FL_GF2-FL_GF}, v{T+1}'); k(f'v_add_u32 v{T}, v{T}, v{T+1}')
            k('s_lshl_b32 s53, s12, 10'); k(f's_add_u32 s53, s53, {WS_FLG+FL_GF}')
            L=k.label('gt'); k('s_add_u32 s52, s13, s3'); k('s_cmp_lg_u32 s52, 0'); k(f's_cbranch_scc1 {L}')
            k(f'buffer_load_dword a246, v{T}, s[16:19], s53 offen {c.gtouch}'); k(f'{L}:')
        if c.utouch:
            L=k.label('ut'); k('s_cmp_ge_u32 s2, 128'); k(f's_cbranch_scc1 {L}')
            k(f'v_min_u32 v{T}, 39, v1'); k(f'v_cmp_le_u32 vcc, 20, v{T}'); k(f'v_mov_b32 v{T+1}, {163840-2560}'); k(f'v_cndmask_b32 v{T+1}, 0, v{T+1}, vcc'); k(f'v_lshl_add_u32 v{T}, v{T}, 7, v{T+1}')
            k('s_bfe_u32 s52, s2, 0x10003'); k('s_lshl_b32 s52, s52, 2'); k('s_add_u32 s52, s52, s3'); k(f's_mul_i32 s52, s52, {2*163840}'); k('s_mul_i32 s53, s66, 2560'); k('s_add_u32 s52, s52, s53')
            k(f'buffer_load_dword a246, v{T}, s[16:19], s52 offen {c.utouch}'); k(f'{L}:')
        self.w_setup()
        self.pf('sw_early')
        if c.pf: self.pf_setup(); self.pf('early')
        k('s_mul_i32 s14, s14, 0x9E3779B1'); k('s_add_u32 s14, s14, 0x7F4A7C15')
        k('s_getreg_b32 s52, hwreg(HW_REG_XCC_ID, 0, 4)'); k('s_add_u32 s52, s52, 1'); k('s_xor_b32 s59, s14, s52')
    def pf(self, point):
        k=self.k; c=self.c
        if c.sweep and point==c.sweep_at:
            L=self.w0()
            k('v_lshlrev_b32 v252, 7, v1'); k('s_mul_i32 s52, s2, 7680')
            k('s_mov_b32 s32, s38'); k('s_and_b32 s33, s39, 0xffff')
            k('buffer_load_dword a246, v252, s[28:31], s52 offen'); k('buffer_load_dword a246, v252, s[32:35], s52 offen')
            self.end(L)
        if self.who!='w0':
            o=self.nop; self.nop=True; Gen.pf(self, point); self.nop=o
    def late_setup(self):
        k=self.k; T=self.T; UO=self.UO
        self.w_setup_tr()
        k('s_lshl_b32 s68, s12, 8'); k(f's_add_u32 s68, s68, {WS_FLG+FL_GRP}')
        k('s_lshl_b32 s69, s13, 7'); k('s_add_u32 s52, s69, s12'); k('s_sub_u32 s53, s69, 1008'); k('s_cmp_lt_u32 s13, 8'); k('s_cselect_b32 s53, s69, s53')
        k('s_cmp_eq_u32 s12, 0'); k('s_cselect_b32 s69, s53, s52')
        k('s_lshl_b32 s70, s3, 5'); k('s_add_u32 s70, s70, s69'); k('s_sub_u32 s71, 2048, s70'); k('s_cmp_eq_u32 s70, 0'); k('s_cselect_b32 s71, 1024, s71')
        k('s_mul_i32 s72, s3, 2560'); k(f's_add_u32 s72, s72, {L_XR}')
        srd(k,20,4,S*D*2)
        if self.zo():
            for r in range(0 if self.c.zpar else 4):
                k(f's_add_u32 s52, s69, {32*r}'); k('s_sub_u32 s53, 2048, s52')
                if r==0: k('s_cmp_eq_u32 s52, 0'); k('s_cselect_b32 s53, 1024, s53')
                k(f's_mul_i32 s{4+2*r}, s52, 1280'); k(f's_mul_i32 s{5+2*r}, s53, 1280')
            srd(k,24,46,S*D*2)
        k(f's_mov_b32 s54, {(2**32+4)//5}')
        for m in range(5):
            k(f'v_add_u32 v{T}, {64*m}, v1'); k(f'v_mul_hi_u32 v{T+1}, v{T}, s54'); k(f'v_mul_u32_u24 v{T+1}, {1280-80}, v{T+1}'); k(f'v_lshl_add_u32 v{UO+m}, v{T}, 4, v{T+1}')
        k(f's_mov_b32 s54, {(2**32+9)//10}')
        k(f'v_mul_hi_u32 v{T+1}, v1, s54'); k(f'v_mul_u32_u24 v{T+2}, 10, v{T+1}'); k(f'v_sub_u32 v{T+2}, v1, v{T+2}')
        k(f'v_lshrrev_b32 v{T+3}, 1, v{T+1}'); k(f'v_and_b32 v{T+1}, 1, v{T+1}'); k(f'v_mul_u32_u24 v{T+3}, 2560, v{T+3}')
        k(f'v_lshl_add_u32 v{T+3}, v{T+1}, 14, v{T+3}'); k(f'v_lshl_add_u32 v{UO+5}, v{T+2}, 4, v{T+3}')
        R=self.c.rec; sh=R.bit_length()-1
        k(f'v_lshrrev_b32 v253, 2, v1'); k(f'v_lshlrev_b32 v253, {sh+8}, v253'); k(f'v_and_b32 v{T}, 3, v1'); k(f'v_lshl_add_u32 v253, v{T}, 4, v253')
        k(f's_lshl_b32 s62, s2, {sh}'); k(f's_add_u32 s62, s62, {WS_FLG+FL_GF}')
        k(f's_lshl_b32 s63, s12, {sh+8}'); k(f's_add_u32 s63, s63, {WS_FLG+FL_GF}')
        k('s_lshr_b32 s52, s12, 3'); k('s_lshl_b32 s52, s52, 3'); k(f'v_and_b32 v{T}, 7, v1'); k(f'v_lshrrev_b32 v{T+1}, 3, v1'); k(f'v_lshl_add_u32 v{T}, v{T+1}, 4, v{T}')
        k(f'v_add_lshl_u32 v198, v{T}, s52, {sh}')
        k(f'v_min_u32 v{T}, 39, v1'); k(f'v_add_u32 v{T}, 128, v{T}'); k(f'v_lshlrev_b32 v199, {sh}, v{T}')
        k(f'v_add_u32 v{T}, 168, v1'); k(f'v_lshlrev_b32 v254, {sh}, v{T}')
        k('s_and_b32 s52, s2, 15'); k(f'v_lshl_add_u32 v{T}, v2, 4, s52'); k(f'v_add_u32 v{T+1}, 232, v2'); k('v_cmp_gt_u32 vcc, 16, v1'); k(f'v_cndmask_b32 v{T}, v{T+1}, v{T}, vcc'); k(f'v_lshlrev_b32 v255, {sh}, v{T}')
    def rpost(self, soff, r=240):
        k=self.k; R=self.c.rec
        k(f'v_mov_b32 v{r}, s14'); k(f'v_mov_b32 v{r+1}, s59'); k(f'v_mov_b32 v{r+2}, s14'); k(f'v_mov_b32 v{r+3}, s14')
        if R==32: k('s_mov_b32 exec_lo, 0x33333333'); k('s_mov_b32 exec_hi, 0x33333333')
        k(f'buffer_store_dwordx4 v[{r}:{r+3}], v253, s[16:19], {soff} offen sc1')
        if R==128: k(f'buffer_store_dwordx4 v[{r}:{r+3}], v253, s[16:19], {soff} offen offset:64 sc1')
        if R==32: k('s_mov_b64 exec, -1')
    def build(self):
        k=self.k; c=self.c
        END=k.label('end'); LM=k.label('mod'); LS=k.label('shuf'); LN_=k.label('none'); LJ=k.label('join')
        self.drain=[]; self.check_sched()
        k('s_cmp_ge_u32 s2, 256'); k(f's_cbranch_scc1 {END}')
        k(f's_load_dwordx2 s[4:5], s[0:1], {KA["x"]}'); k(f's_load_dwordx16 s[36:51], s[0:1], {KA["wg"]}')
        if c.prof: k('v_mov_b32 v19, -1')
        if c.pace: k('s_memrealtime s[96:97]'); k('s_mov_b32 s95, 0')
        self.stamp(0)
        k('v_lshrrev_b32 v1, 6, v0'); k('v_readfirstlane_b32 s3, v1')
        k('v_and_b32 v1, 63, v0'); k('v_and_b32 v2, 15, v0'); k('v_lshrrev_b32 v3, 4, v1')
        k('s_and_b32 s12, s2, 7'); k('s_lshl_b32 s12, s12, 1'); k('s_bfe_u32 s13, s2, 0x10003'); k('s_add_u32 s12, s12, s13'); k('s_lshr_b32 s13, s2, 4')
        if c.codetouch:
            L=self.w0(); Lp=k.label('pc')
            k('s_getpc_b64 s[52:53]'); k(f'{Lp}:'); k(f's_sub_u32 s52, s52, {Lp}-{NAME}'); k('s_subb_u32 s53, s53, 0'); srd(k,24,52,f'{NAME}_tab-{NAME}+17408')
            k('s_bfe_u32 s54, s2, 0x30003'); k('s_lshl_b32 s54, s54, 13'); k('v_lshlrev_b32 v240, 7, v1')
            k('buffer_load_dword a246, v240, s[24:27], s54 offen')
            self.end(L)
        LA=k.label('a'); LB=k.label('b'); LE=k.label('e'); n0=len(k.ins)
        k('s_cmp_ge_u32 s2, 128'); k(f's_cbranch_scc1 {LA}')
        self.role_ln_a(); k(f's_branch {LE}')
        k(f'{LA}:'); k('s_cmp_ge_u32 s2, 248'); k(f's_cbranch_scc1 {LB}')
        self.role_mod_a()
        k(f'{LB}:')
        if c.shdma=='early': self.role_shuf_a()
        else: self.shtoks=[]
        k(f'{LE}:')
        roletoks=[x.tag for x in k.ins[n0:] if x.kind=='vmem' and not (c.shlate and x.tag in self.shtoks)]
        self.pre0(c.a2pre)
        if c.hops:
            back=k.label('back'); main=k.label('main')
            k('s_mov_b64 exec, 0')
            for w in range(4):
                k(f's_cmp_eq_u32 s3, {w}'); y=Ins('s_nop 0'); y.meta=('hopstart',w); k.ins.append(y)
            k(f'{back}:'); k('s_mov_b64 exec, -1')
            k(f's_branch {main}'); k('.p2align 12'); k(f'{main}:')
            self.tg=[LM,LJ] if c.hoptg else []; k.hops=(main,back,4,c.hopstep,self.tg)
        self.early()
        k('s_cmp_ge_u32 s2, 128'); k(f's_cbranch_scc1 {LM}')
        self.role_ln(); k(f's_branch {LJ}')
        k(f'{LN_}:'); self.w_issue(c.iss_early); self.pf('ld'); self.w_issue(c.iss_ld); k(f's_branch {LS}')
        k(f'{LM}:'); k('s_cmp_ge_u32 s2, 248'); k(f's_cbranch_scc1 {LN_}')
        self.role_mod()
        k(f'{LS}:')
        if c.shdma=='role': self.role_shuf_a()
        if not c.shlate: self.role_shuf()
        k(f'{LJ}:'); k.forget(*roletoks)
        self.stamp(3)
        self.pf('role')
        self.pre0([m for m in (0,1) if m not in c.a2pre and m not in c.a2post], False)
        self.late_setup()
        self.z_touch('role')
        self.w_issue(c.iss_role, self.drain+self.tabt+[t for st in c.tr_b2 for t in self.wt[st]])
        k('s_barrier')
        if c.split:
            LW=k.label('wn'); LX=k.label('x9'); wt0={a:list(b) for a,b in self.wt.items()}
            if c.hoptg and c.hops: self.tg+=[LW,LX]
            k('s_cmp_lg_u32 s3, 0'); k(f's_cbranch_scc1 {LW}')
            self.who='w0'
            if c.prio: k(f's_setprio {c.prio}')
            self.p2a(); self.p2b()
            if c.prio: k('s_setprio 0')
            k(f's_branch {LX}')
            k(f'{LW}:'); self.who='wn'; self.q=[]; self.wt=wt0; self.trtok=None; k.hook=self.pace; k.curcls='wn'
            self.p2a(); self.p2b(); self.q_flush(); k.hook=None; k.curcls=None; self.who=None
            k(f'{LX}:')
        else:
            self.p2a()
            self.p2b()
        self.p3()
        self.p4()
        if c.pacewb: k('s_waitcnt vmcnt(0)'); k('buffer_wbl2 sc1'); k('s_waitcnt vmcnt(0)')
        if c.pace:
            Lq=k.label('pace'); k(f'{Lq}:'); k('s_memrealtime s[98:99]'); k('s_waitcnt lgkmcnt(0)'); k('s_sub_u32 s98, s98, s96'); k('s_sub_u32 s98, s98, s95'); k(f's_cmp_lt_i32 s98, {c.pace}'); k(f's_cbranch_scc1 {Lq}')
        if c.prof: k('s_waitcnt vmcnt(0)')
        self.stamp(31); self.stamp_flush()
        k(f'{END}:'); k('s_endpgm')
        return k
    def p2a(self):
        k=self.k; c=self.c; T=self.T; A2=self.A2; BF=self.BF; ACC=self.ACC; CAV=self.CAV; FA=self.FA; TW=self.TW; G4=self.G4; XV=self.XV; UO=self.UO
        PL=f'buffer_load_dword v{T+8}, v198, s[16:19], s63 offen {c.gpfl}\nbuffer_load_dword v{T+9}, v199, s[16:19], s63 offen {c.gpfl}'
        CH=[f'v_xor_b32 v{T+8}, s14, v{T+8}', f'v_xor_b32 v{T+9}, s14, v{T+9}', f'v_or_b32 v{T+8}, v{T+8}, v{T+9}', f'v_cmp_ne_u32 vcc, 0, v{T+8}']
        PL2=f'buffer_load_dword v{T+8}, v254, s[16:19], s63 offen sc1\nbuffer_load_dwordx2 v[{T+10}:{T+11}], v255, s[16:19], s63 offen sc1'
        CH2=[f'v_xor_b32 v{T+8}, s14, v{T+8}', f'v_xor_b32 v{T+9}, s14, v{T+10}', f'v_or_b32 v{T+8}, v{T+8}, v{T+9}', f'v_cmp_ne_u32 vcc, 0, v{T+8}']
        L=self.w0(); self.rpost('s62'); self.end(L)
        self.stamp(4)
        self.misc=[]; self.sht=[]
        L=self.wn()
        k('s_sub_u32 s52, s3, 1'); k(f'v_lshlrev_b32 v{T}, 2, v1')
        for u in range(3):
            L3=k.label('xr')
            k('s_mul_i32 s53, s52, 3'); k(f's_add_u32 s53, s53, {u}')
            if u==2: k('s_cmp_eq_u32 s53, 8'); k(f's_cbranch_scc1 {L3}')
            k('s_lshr_b32 s54, s53, 1'); k('s_lshl_b32 s54, s54, 5'); k('s_add_u32 s54, s54, s69')
            k('s_sub_u32 s55, 2048, s54'); k('s_cmp_eq_u32 s54, 0'); k('s_cselect_b32 s55, 1024, s55')
            k('s_bitcmp1_b32 s53, 0'); k('s_cselect_b32 s54, s55, s54'); k('s_mul_i32 s54, s54, 1280')
            k('s_mul_i32 s53, s53, 1280'); k(f's_add_u32 m0, s53, {L_XR}'); k('s_nop 0')
            self.misc.append(k(f'buffer_load_dwordx4 v18, s[20:23], s54 offen lds'))
            self.misc.append(k(f'buffer_load_dword v{T}, s[20:23], s54 offen offset:1024 lds'))
            k(f'{L3}:')
        self.end(L)
        self.z_touch('b2')
        if c.otouch=='b2': self.out_touch()
        self.pf('b2'); self.w_issue(c.iss_b2,burst=c.burst_early)
        if c.gasync: L=self.w0(); k(PL); self.end(L)
        self.w_tr(c.tr_b2)
        for u in range(2): k(f'ds_read_b128 v[{FA+4*u}:{FA+4*u+3}], v18 offset:{L_TAB+1024*u}')
        for u in range(6): k(f'ds_read_b128 v[{TW+4*u}:{TW+4*u+3}], v18 offset:{L_TAB+2048+1024*u}')
        for u in range(9): tw2=k(f'ds_read_b128 v[{G4+4*u}:{G4+4*u+3}], v18 offset:{L_TAB+8192+1024*u}')
        k('s_cmp_eq_u32 s70, 0'); k('s_cselect_b64 vcc, -1, 0'); k('s_cselect_b32 s52, 0xffff, -1')
        for u in range(8):
            k(f'v_xor_b32 v{FA+8+u}, 0x80000000, v{FA+u}'); k(f'v_lshlrev_b32 v{T+4}, 16, v{FA+u}')
            k(f'v_cndmask_b32 v{FA+8+u}, v{FA+8+u}, v{T+4}, vcc'); k(f'v_and_b32 v{FA+u}, s52, v{FA+u}')
        def a2(mts):
            if mts: k('s_mov_b64 s[80:81], s[68:69]'); k('s_mov_b64 s[82:83], s[70:71]'); self.pre0(mts, False); k('s_mov_b64 s[68:69], s[80:81]'); k('s_mov_b64 s[70:71], s[82:83]')
        late=[m for m in c.a2post if m in c.a2u] if (c.nob2p and self.who=='w0') else []
        a2([m for m in c.a2post if m not in late])
        if c.shlate:
            Ls=k.label('sl'); k('s_cmp_lt_u32 s2, 128'); k(f's_cbranch_scc1 {Ls}'); self.role_shuf(); k(f'{Ls}:')
        self.w_issue(c.iss_b2b,burst=c.burst_early); self.pf('pre')
        if not c.nob2p: self.w_wait(c.tr_b3, self.misc); k.wait(tw2); k('s_barrier')
        self.stamp(5)
        self.z_touch('b2c')
        if c.shst=='b2c': self.sh_store()
        self.w_issue(c.iss_b2c,burst=c.burst_early); self.pf('chain')
        L=self.w0(); ut=[]; Lo=k.label('ok')
        if c.gasync:
            for x in CH: k(x)
            k(f's_cbranch_vccz {Lo}')
        self.poll(PL, CH, c.gsleep)
        k(f'{Lo}:')
        self.stamp(6)
        k('s_mul_i32 s53, s12, 163840'); k('s_mul_i32 s52, s13, 80'); k('s_add_u32 s53, s53, s52')
        if WS_U: k(f's_add_u32 s53, s53, {WS_U}')
        k(f's_mov_b32 m0, {L_US}')
        for u in range(10):
            ut.append(k(f'buffer_load_dwordx4 v{UO+u%5}, s[16:19], s53 offen sc1 lds'))
            k('s_add_u32 m0, m0, 1024')
            if u==4: k(f's_add_u32 s53, s53, {64*1280}')
        k(f's_mov_b32 m0, {L_CA}'); k('s_mul_i32 s53, s13, 160'); k(f's_add_u32 s53, s53, {WS_MOD}')
        k('s_mov_b32 exec_hi, 0xff')
        ut.append(k(f'buffer_load_dwordx4 v{UO+5}, s[16:19], s53 offen sc1 lds'))
        k('s_mov_b32 exec_hi, -1')
        self.end(L)
        a2(late)
        if self.who: self.wn()
        L=k.label('w1'); k('s_cmp_lg_u32 s3, 1'); k(f's_cbranch_scc1 {L}')
        self.poll(PL2, CH2, c.gsleep2)
        k(f'v_cmp_ne_u32 vcc, s59, v{T+11}'); k('s_and_b32 s52, vcc_lo, 0xffff'); k('s_cmp_eq_u32 s52, 0'); k(f's_cselect_b32 s15, {0 if c.force_slow else 1}, 0')
        k(f'v_mov_b32 v{T}, s15'); k(f'v_mov_b32 v{T+1}, {L_CA+640}'); tmode=k(f'ds_write_b32 v{T+1}, v{T}'); k.wait(tmode)
        def modl():
            self.modt=[]; oc=k.curcls; k.curcls='wn'
            for u in range(16):
                if u%4==0: k(f's_mov_b32 m0, {L_MOD+1024*u}'); k(f's_mov_b32 s54, {WS_MOD+8192+1024*u+8192*(u>>3)}')
                self.modt.append(k(f'buffer_load_dwordx4 v18, s[16:19], s54 offen offset:{1024*(u%4)} sc1 lds'))
            k.curcls=oc
        if not c.nob2p: modl()
        L2=k.label('n'); k('s_cmp_lg_u32 s2, 0'); k(f's_cbranch_scc1 {L2}')
        self.poll(f'buffer_load_dword v{T+8}, v198, s[16:19], s63 offen sc1\nbuffer_load_dword v{T+9}, v198, s[16:19], s63 offen offset:{8*c.rec} sc1\nbuffer_load_dword v{T+10}, v199, s[16:19], s63 offen sc1\nbuffer_load_dword v{T+11}, v255, s[16:19], s63 offen offset:{16*c.rec} sc1',
                  [f'v_xor_b32 v{T+8+u}, s14, v{T+8+u}' for u in range(3)]+[f'v_xor_b32 v{T+11}, s14, v{T+11}', f'v_cmp_gt_u32 vcc, 16, v1', f'v_cndmask_b32 v{T+11}, v{T+11}, 0, vcc', f'v_cmp_lt_u32 vcc, 7, v2', f'v_cndmask_b32 v{T+11}, v{T+11}, 0, vcc',
                   f'v_or3_b32 v{T+8}, v{T+8}, v{T+9}, v{T+10}', f'v_or_b32 v{T+8}, v{T+8}, v{T+11}', f'v_cmp_ne_u32 vcc, 0, v{T+8}'])
        k(f'v_mov_b32 v{T+3}, 0'); k(f's_mov_b32 s53, {WS_FLG}'); k('s_mov_b64 exec, 1')
        k(f'v_mov_b32 v{T+2}, s14'); k(f'buffer_store_dword v{T+2}, v{T+3}, s[16:19], s53 offen sc1'); k('s_mov_b64 exec, -1')
        k(f'{L2}:')
        self.end(L)
        if self.who: self.end(None)
        self.stamp(-27)
        if c.nob2p:
            self.w_wait(c.tr_b3, self.misc); k.wait(tw2); k('s_barrier')
            if self.who: self.wn()
            L=k.label('w1'); k('s_cmp_lg_u32 s3, 1'); k(f's_cbranch_scc1 {L}'); modl(); self.end(L)
            if self.who: self.end(None)
        elif c.iss_b3: k('s_barrier')
        self.stamp(-28)
        self.z_touch('b3')
        if c.shst=='b3': self.sh_store()
        k(f'v_lshlrev_b32 v246, 2, v2')
        self.pf('b3'); self.w_issue(c.iss_b3)
        for u in range(20): k(f'v_mov_b32 v{XV+u}, 0')
        k(f'v_lshlrev_b32 v{T+4}, 1, v2'); k(f'v_lshl_add_u32 v250, v3, 8, v{T+4}'); k(f'v_lshl_add_u32 v251, v3, 6, v{T+4}')
        k('v_add_u32 v250, s72, v250'); k('v_add_u32 v251, s72, v251')
        for ab in range(2):
            for jj in range(8): k(f'ds_read_u16_d16_hi v{XV+10*ab+jj}, v250 offset:{1280*ab+32*jj}')
            for j in range(2): tw=k(f'ds_read_u16_d16_hi v{XV+10*ab+8+j}, v251 offset:{1280*ab+1024+32*j}')
        tw=self.w_tr(c.tr_b3) or tw
        k(f'v_lshrrev_b32 v{T+4}, 2, v2'); k(f'v_lshl_add_u32 v{T+4}, v3, 3, v{T+4}'); k(f'v_mul_u32_u24 v{T+4}, 80, v{T+4}')
        k(f'v_and_b32 v{T+5}, 3, v2'); k(f'v_lshl_add_u32 v248, v{T+5}, 3, v{T+4}')
        k('s_mul_i32 s52, s3, 2560'); k(f'v_mul_u32_u24 v249, 320, v3'); k('v_lshl_add_u32 v249, v2, 2, v249'); k('v_add_u32 v249, s52, v249')
        k(f'v_add_u32 v246, {L_CA}, v246')
        k('s_lshl_b32 s62, s12, 4'); k('s_add_u32 s62, s62, s13'); k('s_mul_i32 s62, s62, 10240'); k(f's_add_u32 s62, s62, {WS_Z}')
        if c.zpar:
            k('s_mul_i32 s4, s70, 1280'); k('s_mul_i32 s5, s71, 1280'); k('v_lshlrev_b32 v245, 2, v1')
        GO=240
        L=self.w0()
        k(f's_mov_b32 s54, {(2**32+39)//40}')
        if self.zo():
            k('s_bfe_u32 s55, s13, 0x10001'); k('s_mul_i32 s55, s55, 7')
            for m in range(5):
                k(f'v_add_u32 v{T}, {64*m}, v1'); k(f'v_mul_hi_u32 v{T+1}, v{T}, s54'); k(f'v_mul_u32_u24 v{T+2}, 40, v{T+1}'); k(f'v_sub_u32 v{T}, v{T}, v{T+2}')
                k(f'v_xor_b32 v{T+1}, s55, v{T+1}'); k(f'v_mul_u32_u24 v{T+1}, 10240, v{T+1}'); k(f'v_add_lshl_u32 v{GO+m}, v{T}, v{T+1}, 4')
            k('s_lshr_b32 s52, s13, 2'); k('s_lshl_b32 s52, s52, 5'); k('s_add_u32 s64, s52, s12')
            k('s_add_u32 s65, s64, 1024'); k('s_add_u32 s52, s52, 16'); k('s_cmp_eq_u32 s12, 0'); k('s_cselect_b32 s65, s52, s65')
            k('s_sub_u32 s52, 1152, s64'); k('s_sub_u32 s53, 1152, s65'); k('s_cmp_lg_u32 s55, 0')
            k('s_cselect_b32 s53, s53, s65'); k('s_cselect_b32 s65, 163840, 0'); k('s_cselect_b32 s52, s52, s64')
            k('s_cselect_b32 s55, s64, 1'); k('s_cmp_eq_u32 s55, 0'); k('s_cselect_b32 s55, 40, 0')
            k(f'v_add_u32 v{T+7}, s65, v{GO}'); k(f'v_lshlrev_b32 v{T}, 4, v1'); k('v_cmp_gt_u32 vcc, s55, v1'); k(f'v_cndmask_b32 v{T+7}, v{T+7}, v{T}, vcc')
            k('s_and_b32 s55, s13, 1'); k('s_mul_i32 s55, s55, 640')
            k('s_mul_i32 s64, s52, 1280'); k('s_add_u32 s64, s64, s55'); k('s_sub_u32 s63, s64, s65'); k('s_mul_i32 s65, s53, 1280'); k('s_add_u32 s65, s65, s55')
            k('v_lshlrev_b32 v245, 2, v1')
        else:
          for m in range(5):
            k(f'v_add_u32 v{T}, {64*m}, v1'); k(f'v_mul_hi_u32 v{T+1}, v{T}, s54'); k(f'v_mul_u32_u24 v{T+1}, {10240-640}, v{T+1}'); k(f'v_lshl_add_u32 v{GO+m}, v{T}, 4, v{T+1}')
        k.wait(*ut); self.end(L)
        k.wait(tw); self.w_wait(c.tr_b4)
        self.stamp(-29)
        k('s_barrier')
        self.stamp(7)
        def rds(ks): return [f'ds_read_b64_tr_b16 v[{BF+12*ks+4*nt+2*hh}:{BF+12*ks+4*nt+2*hh+1}], v248 offset:{L_US+2560*ks+320*hh+2*D2B[nt]}' for nt in range(3) for hh in range(2)]
        for x in rds(0)+rds(1): k(x)
        if c.zpar:
            k(f'v_mov_b32 v{T+1}, {L_CA+640}'); k(f'ds_read_b32 v247, v{T+1}'); k(f's_sub_u32 s52, s72, {L_XR-L_ZS}'); k(f'v_add_u32 v{T+2}, s52, v18'); k(f'v_add_u32 v{T+3}, s52, v245')
        if c.shst=='b4': self.sh_store()
        fill=rds(2)
        for nt in range(3):
            fill.append(f'ds_read2_b32 v[{CAV+2*nt}:{CAV+2*nt+1}], v246 offset0:{D2B[nt]} offset1:{40+D2B[nt]}')
            fill.append(f'ds_read2_b32 v[{CAV+6+2*nt}:{CAV+7+2*nt}], v246 offset0:{80+D2B[nt]} offset1:{120+D2B[nt]}')
        fill+=rds(3)
        cav=[]
        for nt in range(3): cav+=[f'v_add_f32 v{CAV+2*nt}, v{CAV+2*nt}, v{CAV+2*nt+1}', f'v_add_f32 v{CAV+6+2*nt}, v{CAV+6+2*nt}, v{CAV+7+2*nt}']
        for nt in range(3): cav.append(f'v_cvt_pk_bf16_f32 v{CAV+2*nt}, v{CAV+2*nt}, v{CAV+6+2*nt}')
        for nt in range(3): cav.append(f'v_and_b32 v{CAV+6+2*nt}, 0xffff0000, v{CAV+2*nt}')
        for nt in range(3): cav.append(f'v_add_f32 v{CAV+6+2*nt}, 1.0, v{CAV+6+2*nt}')
        for nt in range(3): cav.append(f'v_cvt_pk_bf16_f32 v{CAV+6+2*nt}, v{CAV+6+2*nt}, v{CAV+6+2*nt}')
        for nt in range(3): cav.append(f'v_and_b32 v{CAV+6+2*nt}, 0xffff0000, v{CAV+6+2*nt}')
        fill+=cav
        order=[(mt,nt) for nt in range(3) for mt in range(2)]
        def post(mt,nt):
            a=ACC+12*mt+4*nt; o=[f'v_mul_f32 v{a+j}, v{a+j}, v{CAV+6+2*nt}' for j in range(4)]
            if c.pk2: o=[f'v_pk_mul_f32 v[{a+2*j}:{a+2*j+1}], v[{a+2*j}:{a+2*j+1}], v[{CAV+6+2*nt}:{CAV+7+2*nt}] op_sel_hi:[1,0]' for j in range(2)]
            if mt==0: o.append(f'v_fmac_f32 v{a}, v{T+6}, v{CAV+2*nt}')
            for rr in range(2):
                o.append(f'v_cvt_pk_bf16_f32 v{a+2*rr}, v{a+2*rr}, v{a+2*rr+1}'); o.append(f'ds_write_b32 v249, v{a+2*rr} offset:{L_ZS+1280*mt+160*rr+4*D2B[nt]}')
            return o
        k('s_cmp_eq_u32 s73, 0'); k('s_cselect_b32 s52, 16, 0'); k(f'v_cmp_gt_u32 s[54:55], s52, v1'); k(f'v_mov_b32 v{T+6}, 0x45000000')
        for ks in range(4):
            for mt,nt in order:
                d=f'v[{ACC+12*mt+4*nt}:{ACC+12*mt+4*nt+3}]'
                k(f'v_mfma_f32_16x16x32_bf16 {d}, v[{A2+16*mt+4*ks}:{A2+16*mt+4*ks+3}], v[{BF+12*ks+4*nt}:{BF+12*ks+4*nt+3}], {d if ks else 0}')
                for _ in range(2):
                    if fill: k(fill.pop(0))
        for x in fill: k(x)
        if c.zpar: k('v_readfirstlane_b32 s15, v247')
        for nt in range(3): k(f'v_lshlrev_b32 v{CAV+2*nt}, 16, v{CAV+2*nt}'); k(f'v_cndmask_b32 v{CAV+2*nt}, 0, v{CAV+2*nt}, s[54:55]')
        for mt,nt in order:
            for x in post(mt,nt): t=k(x)
        R=BF; zt=[]
        if c.zpar:
            k.wait(t)
            for u in range(2): k(f'ds_read_b128 v[{R+4*u}:{R+4*u+3}], v{T+2} offset:{1280*u}'); k(f'ds_read_b32 v{R+8+u}, v{T+3} offset:{1280*u+1024}')
            for u in range(2):
                zt.append(k(f'buffer_store_dwordx4 v[{R+4*u}:{R+4*u+3}], v18, s[24:27], s{4+u} offen {c.zfl}')); zt.append(k(f'buffer_store_dword v{R+8+u}, v245, s[24:27], s{4+u} offen offset:1024 {c.zfl}'))
            if c.shst=='z': self.sh_store()
            self.w_issue(c.iss_b4); self.w_tr(c.tr_b4)
            self.stamp(30)
            k(f's_lshl_b32 s52, s13, 2'); k('s_add_u32 s62, s52, s68'); k('v_mov_b32 v252, s14'); k('v_mov_b32 v253, 0')
            k.wait(*zt); self.w_wait(c.tr_b5, self.modt)
            k('s_barrier')
            self.stamp(8)
        else:
            self.pf('b4'); self.w_issue(c.iss_b4); self.w_tr(c.tr_b4); self.pf('mid4'); self.w_issue(c.iss_mid4)
            self.stamp(30)
            self.w_wait(c.tr_b5, self.modt); k.wait(t)
            k('s_barrier')
            self.stamp(8)
            R=BF
            k(f'v_mov_b32 v{T+1}, {L_CA+640}'); k(f'ds_read_b32 v247, v{T+1}')
            L=self.w0(); zt=[]
            if self.zo():
                for u in range(8): k(f'ds_read_b128 v[{R+4*u}:{R+4*u+3}], v18 offset:{L_ZS+1280*u}'); k(f'ds_read_b32 v{R+32+u}, v245 offset:{L_ZS+1280*u+1024}')
                for u in range(8):
                    zt.append(k(f'buffer_store_dwordx4 v[{R+4*u}:{R+4*u+3}], v18, s[24:27], s{4+u} offen {c.zfl}')); zt.append(k(f'buffer_store_dword v{R+32+u}, v245, s[24:27], s{4+u} offen offset:1024 {c.zfl}'))
            for u in range(0 if self.zo() else 10): k(f'ds_read_b128 v[{R+4*u}:{R+4*u+3}], v18 offset:{L_ZS+1024*u}')
            for u in range(0 if self.zo() else 10):
                if u%4==0 and u: k('s_add_u32 s62, s62, 4096')
                zt.append(k(f'buffer_store_dwordx4 v[{R+4*u}:{R+4*u+3}], v18, s[16:19], s62 offen offset:{1024*(u%4)} {c.zfl}'))
            self.end(L)
        if c.shst=='b5': self.sh_store()
        self.pf('b5'); self.w_issue(c.iss_b5)
        GA,SB,CB=self.GA,self.SB,self.CB; M0=60; M1=200
        def modreads():
            k(f'v_lshlrev_b32 v{T+2}, 2, v2'); k(f'v_lshl_add_u32 v{T+3}, v3, 7, v{T+2}'); k(f'v_lshl_add_u32 v{T+2}, v3, 9, v{T+2}')
            for p,base in ((0,M0),(1,M1)):
                for v in range(3):
                    o=L_MOD+8192*p+2560*v
                    k(f'v_add_u32 v{T+4}, {o}, v{T+2}'); k(f'v_add_u32 v{T+5}, {o+2048}, v{T+3}')
                    for u in range(4): k(f'ds_read2_b32 v[{base+10*v+2*u}:{base+10*v+2*u+1}], v{T+4} offset0:{32*u} offset1:{32*u+16}')
                    k(f'ds_read2_b32 v[{base+10*v+8}:{base+10*v+9}], v{T+5} offset0:0 offset1:16')
        if c.zsh: modreads()
        if not c.zpar: k('v_readfirstlane_b32 s15, v247')
        L=self.w0(); k.wait(*zt); self.stamp(9); self.gpost(0, 's62' if c.zpar else None)
        k(f's_add_u32 s87, s68, 0'); k('v_lshlrev_b32 v253, 2, v2'); k('buffer_load_dword v247, v253, s[16:19], s87 offen sc1')
        self.end(L)
        if not c.zsh: modreads()
        GO=240
        src=lambda v,u: 10*v+u
        for v in range(3):
            for u in range(10): k(f'v_add_f32 v{M0+src(v,u)}, v{M0+src(v,u)}, v{M1+src(v,u)}')
        L=self.w0(); gt=[]; Lo=k.label('ok'); Le=k.label('e')
        k('v_cmp_ne_u32 vcc, s14, v247'); k(f's_cbranch_vccz {Lo}')
        self.poll('buffer_load_dword v247, v253, s[16:19], s87 offen sc1', ['v_cmp_ne_u32 vcc, s14, v247'])
        k(f'{Lo}:')
        k('s_cmp_lg_u32 s15, 0'); k(f's_cbranch_scc1 {Le}'); k('buffer_inv sc1'); k('s_waitcnt vmcnt(0)'); k(f'{Le}:')
        self.stamp(10)
        if not self.zo(): k('s_mul_i32 s53, s12, 163840'); k('s_mul_i32 s54, s13, 640'); k('s_add_u32 s53, s53, s54'); k(f's_add_u32 s53, s53, {WS_Z}')
        k(f's_mov_b32 m0, {L_US}')
        for u in range(10):
            if self.zo(): gt.append(k(f'buffer_load_dwordx4 v{GO+u%5 if u else T+7}, s[24:27], s{63 if u==0 else 64+u//5} offen sc1 lds'))
            else: gt.append(k(f'buffer_load_dwordx4 v{GO+u%5}, s[16:19], s53 offen sc1 lds'))
            k('s_add_u32 m0, m0, 1024')
            if u==4: k(f's_add_u32 s53, s53, {8*10240}')
        self.end(L)
        if c.iss_g or c.tr_g:
            self.w_wait(c.tr_g); k.wait(self.trtok)
            k('s_barrier'); self.pf('g'); self.w_issue(c.iss_g); self.w_tr(c.tr_g)
        self.w_tr(c.tr_b5)
        for v,dst in enumerate((GA,SB,CB)):
            for u in range(5): k(f'v_cvt_pk_bf16_f32 v{T+u}, v{M0+src(v,2*u)}, v{M0+src(v,2*u+1)}')
            for u in range(5): k(f'v_lshlrev_b32 v{dst+2*u}, 16, v{T+u}'); k(f'v_and_b32 v{dst+2*u+1}, 0xffff0000, v{T+u}')
        for u in range(10): k(f'v_add_f32 v{CB+u}, 1.0, v{CB+u}')
        for u in range(5): k(f'v_cvt_pk_bf16_f32 v{T+u}, v{CB+2*u}, v{CB+2*u+1}')
        for u in range(5): k(f'v_lshlrev_b32 v{CB+2*u}, 16, v{T+u}'); k(f'v_and_b32 v{CB+2*u+1}, 0xffff0000, v{T+u}')
        k('s_mul_i32 s52, s3, 160'); k(f's_add_u32 s52, s52, {L_US}'); k(f'v_mul_u32_u24 v248, 2560, v3'); k('v_lshl_add_u32 v248, v2, 2, v248'); k('v_add_u32 v248, s52, v248')
        k('v_add_u32 v249, 1280, v248')
        k('s_lshl_b32 s74, s3, 1')
        k(f'v_and_b32 v{T+8}, 7, v1'); k(f'v_xor_b32 v{T+8}, s74, v{T+8}'); k(f'v_lshlrev_b32 v{T+8}, 4, v{T+8}'); k(f'v_lshl_add_u32 v{T+8}, v1, 7, v{T+8}')
        k(f'v_xor_b32 v{T+9}, 16, v{T+8}')
        k(f'v_bfe_u32 v{T+10}, v1, 2, 3'); k(f'v_xor_b32 v{T+10}, s74, v{T+10}'); k(f'v_lshlrev_b32 v{T+10}, 4, v{T+10}')
        k(f'v_lshrrev_b32 v{T+11}, 2, v1'); k(f'v_lshl_add_u32 v{T+10}, v{T+11}, 7, v{T+10}'); k(f'v_and_b32 v{T+11}, 3, v1'); k(f'v_lshl_add_u32 v{T+10}, v{T+11}, 2, v{T+10}')
        k(f'v_xor_b32 v{T+11}, 16, v{T+10}')
        k('s_lshr_b32 s62, s13, 1'); k('s_lshl_b32 s54, s12, 3'); k('s_add_u32 s62, s62, s54'); k('s_mul_i32 s62, s62, 20480')
        k('s_and_b32 s54, s13, 1'); k('s_lshl_b32 s54, s54, 7'); k('s_add_u32 s62, s62, s54'); k(f's_add_u32 s62, s62, {self.H2}')
        k(f'v_lshrrev_b32 v{T}, 3, v1'); k(f'v_xor_b32 v245, v{T}, v1'); k(f'v_and_b32 v245, 7, v245'); k(f'v_lshlrev_b32 v245, 4, v245'); k(f'v_lshl_add_u32 v245, v{T}, 8, v245')
        self.p3_setup(part=0)
        self.w_issue(c.iss_b5b)
        L=self.w0(); k.wait(*gt); self.end(L)
        self.w_wait([], self.sht)
        k.wait(self.trtok)
        k('s_barrier')
        self.stamp(11)
    def z_touch(self, at):
        k=self.k; c=self.c; T=self.T
        if c.ztouch!=at: return
        L=self.wn(); k('s_sub_u32 s52, s3, 1')
        if self.zo():
            L3=k.label('zt'); k('s_cmp_lg_u32 s3, 3'); k(f's_cbranch_scc1 {L3}')
        if c.pretouch:
            k('s_lshl_b32 s53, s12, 4'); k('s_add_u32 s53, s53, s13'); k('s_mul_i32 s53, s53, 10240'); k('s_mul_i32 s54, s52, 5120'); k('s_add_u32 s53, s53, s54')
            k(f's_add_u32 s53, s53, {WS_Z}'); k('s_cmp_eq_u32 s3, 3'); k('s_cselect_b32 s53, s68, s53')
            k(f'v_min_u32 v{T}, 39, v1'); k(f'v_lshlrev_b32 v{T}, 7, v{T}'); k(f'v_and_b32 v{T+1}, 15, v1'); k(f'v_lshlrev_b32 v{T+1}, 11, v{T+1}')
            k(f'v_bfe_u32 v{T+2}, v1, 0, 1'); k(f'v_mul_u32_u24 v{T+2}, {2048-128}, v{T+2}'); k(f'v_sub_u32 v{T+1}, v{T+1}, v{T+2}')
            k('s_cselect_b64 vcc, -1, 0'); k(f'v_cndmask_b32 v{T}, v{T}, v{T+1}, vcc')
            k(f'buffer_load_dword a246, v{T}, s[16:19], s53 offen')
        if self.zo(): k(f'{L3}:')
        self.end(L)
    def out_touch(self):
        k=self.k; c=self.c; T=self.T
        L=self.wn()
        if c.pretouch and c.alias2:
            k('s_sub_u32 s52, s3, 1')
            k('s_mul_i32 s53, s52, 27'); k(f'v_min_u32 v{T}, 26, v1'); k(f'v_add_u32 v{T}, s53, v{T}'); k(f'v_min_u32 v{T}, 79, v{T}')
            k(f's_mov_b32 s53, {(2**32+9)//10}'); k(f'v_mul_hi_u32 v{T+1}, v{T}, s53'); k(f'v_mul_u32_u24 v{T+2}, 10, v{T+1}'); k(f'v_sub_u32 v{T}, v{T}, v{T+2}')
            k(f'v_lshrrev_b32 v{T+2}, 1, v{T+1}'); k(f'v_lshl_add_u32 v{T+2}, v{T+2}, 5, s69'); k(f'v_sub_u32 v{T+3}, 2048, v{T+2}')
            k(f'v_cmp_eq_u32 vcc, 0, v{T+2}'); k(f'v_mov_b32 v{T+4}, 1024'); k(f'v_cndmask_b32 v{T+3}, v{T+3}, v{T+4}, vcc')
            k(f'v_and_b32 v{T+1}, 1, v{T+1}'); k(f'v_cmp_eq_u32 vcc, 1, v{T+1}'); k(f'v_cndmask_b32 v{T+2}, v{T+2}, v{T+3}, vcc')
            k(f'v_mul_u32_u24 v{T+2}, 1280, v{T+2}'); k(f'v_lshl_add_u32 v{T}, v{T}, 7, v{T+2}')
            srd(k,24,46,S*D*2)
            k(f'buffer_load_dword a247, v{T}, s[24:27], 0 offen')
        self.end(L)
    def sh_store(self):
        k=self.k; c=self.c
        L=self.wn()
        if c.defer_sh:
            L4=k.label('sh'); k('s_cmp_lt_u32 s2, 128'); k(f's_cbranch_scc1 {L4}'); self.sht=self.shuf_store(); k(f'{L4}:')
        self.end(L)
    def p2b(self):
        k=self.k; c=self.c; T=self.T; FA=self.FA; TW=self.TW; G4=self.G4; XV=self.XV; GA,SB,CB=self.GA,self.SB,self.CB
        ZF=20; VV=32; PB=80; YY=[ZF,32]
        for mt in range(3):
            for h in range(2): k(f'ds_read2_b32 v[{ZF+4*mt+2*h}:{ZF+4*mt+2*h+1}], v{248+h} offset0:{D2B[mt]} offset1:{160+D2B[mt]}')
        if c.otouch=='b6': self.out_touch()
        if c.shst=='b6': self.sh_store()
        self.pf('b6'); self.w_issue(c.iss_b6)
        def mA(ab,mt,o):
            d=VV+24*ab+8*mt+4*o
            return f'v_mfma_f32_16x16x32_bf16 v[{d}:{d+3}], v[{ZF+4*mt}:{ZF+4*mt+3}], v[{FA+8*ab+4*o}:{FA+8*ab+4*o+3}], 0'
        def mB(ab,mt,et):
            d=f'v[{YY[ab]+4*et}:{YY[ab]+4*et+3}]'
            return f'v_mfma_f32_16x16x32_bf16 {d}, v[{G4+12*et+4*mt}:{G4+12*et+4*mt+3}], v[{PB+12*ab+4*mt}:{PB+12*ab+4*mt+3}], {d if mt else 0}'
        def tw(ab,mt):
            re=VV+24*ab+8*mt; im=re+4; cc=TW+8*mt; s=cc+4; o=[]
            if c.pk2:
                P=lambda r,j: f'v[{r+2*j}:{r+2*j+1}]'
                for j in range(2): o+=[f'v_pk_mul_f32 {P(T,j)}, {P(re,j)}, {P(cc,j)}', f'v_pk_mul_f32 {P(T+4,j)}, {P(im,j)}, {P(cc,j)}']
                for j in range(2): o+=[f'v_pk_fma_f32 {P(T,j)}, {P(im,j)}, {P(s,j)}, {P(T,j)}', f'v_pk_fma_f32 {P(T+4,j)}, {P(re,j)}, {P(s,j)}, {P(T+4,j)} neg_lo:[1,0,0] neg_hi:[1,0,0]']
                for j in range(4): o.append(f'v_cvt_pk_bf16_f32 v{PB+12*ab+4*mt+j}, v{T+j}, v{T+4+j}')
                return o
            for j in range(4): o+=[f'v_mul_f32 v{T+j}, v{re+j}, v{cc+j}', f'v_mul_f32 v{T+4+j}, v{im+j}, v{cc+j}']
            for j in range(4): o+=[f'v_fmac_f32 v{T+j}, v{im+j}, v{s+j}', f'v_fma_f32 v{T+4+j}, -v{re+j}, v{s+j}, v{T+4+j}']
            for j in range(4): o.append(f'v_cvt_pk_bf16_f32 v{PB+12*ab+4*mt+j}, v{T+j}, v{T+4+j}')
            return o
        def mix(valu, mf, first=2, every=4):
            if c.pk2: every=max(1,(every*3+4)//5)
            for n,x in enumerate(valu):
                k(x)
                if mf and n>=first and (n-first)%every==0: k(mf.pop(0))
            for x in mf: k(x)
        for mt in range(3):
            for o in range(2): k(mA(0,mt,o))
        if c.defer_sh:
            L=self.w0()
            sh=c.rec.bit_length()-1
            k(f'v_lshrrev_b32 v253, 2, v1'); k(f'v_lshlrev_b32 v253, {sh+8}, v253'); k(f'v_and_b32 v246, 3, v1'); k(f'v_lshl_add_u32 v253, v246, 4, v253')
            L5=k.label('g2'); k('s_cmp_lt_u32 s2, 128'); k(f's_cbranch_scc1 {L5}')
            k(f's_lshl_b32 s52, s2, {sh}'); k(f's_add_u32 s52, s52, {WS_FLG+FL_GF2}'); self.rpost('s52',96); k(f'{L5}:')
            self.end(L)
        mix(tw(0,0),[mA(1,mt,o) for mt in range(3) for o in range(2)],first=0,every=3)
        mix(tw(0,1),[mB(0,0,et) for et in range(3)])
        mix(tw(0,2),[mB(0,1,et) for et in range(3)])
        mix(tw(1,0),[mB(0,2,et) for et in range(3)])
        mix(tw(1,1),[mB(1,0,et) for et in range(3)])
        mix(tw(1,2),[mB(1,1,et) for et in range(3)])
        SS=[230,231,254,255]
        def st1(ab):
            o=[f'v_fmac_f32 v{XV+10*ab+u}, v{GA+u}, v{YY[ab]+u}' for u in range(10)]
            if c.pk2:
                Q=lambda r,u: f'v[{r+2*u}:{r+2*u+1}]'; X=XV+10*ab; A=T if ab==0 else T+4
                o=[f'v_pk_fma_f32 {Q(X,u)}, {Q(GA,u)}, {Q(YY[ab],u)}, {Q(X,u)}' for u in range(5)]
                o+=[f'v_pk_add_f32 {Q(A,0)}, {Q(X,0)}, {Q(X,1)}', f'v_pk_mul_f32 {Q(A,1)}, {Q(X,0)}, {Q(X,0)}', f'v_pk_fma_f32 {Q(A,1)}, {Q(X,1)}, {Q(X,1)}, {Q(A,1)}']
                for u in range(2,5): o+=[f'v_pk_add_f32 {Q(A,0)}, {Q(A,0)}, {Q(X,u)}', f'v_pk_fma_f32 {Q(A,1)}, {Q(X,u)}, {Q(X,u)}, {Q(A,1)}']
                o+=[f'v_add_f32 v{SS[2*ab]}, v{A}, v{A+1}', f'v_add_f32 v{SS[2*ab+1]}, v{A+2}, v{A+3}']
                return o
            o+=[f'v_add_f32 v{SS[2*ab]}, v{XV+10*ab}, v{XV+10*ab+1}', f'v_mul_f32 v{SS[2*ab+1]}, v{XV+10*ab}, v{XV+10*ab}', f'v_fmac_f32 v{SS[2*ab+1]}, v{XV+10*ab+1}, v{XV+10*ab+1}']
            for u in range(2,10): o+=[f'v_add_f32 v{SS[2*ab]}, v{SS[2*ab]}, v{XV+10*ab+u}', f'v_fmac_f32 v{SS[2*ab+1]}, v{XV+10*ab+u}, v{XV+10*ab+u}']
            return o
        mix(st1(0),[mB(1,2,et) for et in range(3)],first=1,every=2)
        self.stamp(12)
        self.pf('stb'); self.w_issue(c.iss_stb)
        for x in st1(1): k(x)
        k(f'v_permlane16_swap_b32 v{SS[0]}, v{SS[1]}'); k(f'v_permlane16_swap_b32 v{SS[2]}, v{SS[3]}')
        k(f'v_add_f32 v{T}, v{SS[0]}, v{SS[1]}'); k(f'v_add_f32 v{T+2}, v{SS[2]}, v{SS[3]}')
        k(f'v_permlane32_swap_b32 v{T}, v{T+2}'); k(f'v_add_f32 v{T}, v{T}, v{T+2}')
        for sh in (8,4,2,1): k(f'v_add_f32_dpp v{T}, v{T}, v{T} row_ror:{sh} row_mask:0xf bank_mask:0xf')
        k(f'v_mul_f32 v{T}, 0x3acccccd, v{T}')
        for u in range(4): k(f'v_readlane_b32 s{52+u}, v{T}, {16*u}')
        for ab in range(2): k(f'v_mov_b32 v{T+2+ab}, s{53+2*ab}'); k(f'v_mov_b32 v{T+4+ab}, s{52+2*ab}')
        for ab in range(2): k(f'v_fma_f32 v{T+2+ab}, -v{T+4+ab}, v{T+4+ab}, v{T+2+ab}')
        for ab in range(2): k(f'v_max_f32 v{T+2+ab}, 0, v{T+2+ab}')
        for ab in range(2): k(f'v_add_f32 v{T+2+ab}, 0x3727c5ac, v{T+2+ab}')
        for ab in range(2): k(f'v_rsq_f32 v{T+2+ab}, v{T+2+ab}')
        H=48
        for ab in range(2): k(f'v_mul_f32 v{T+4+ab}, -v{T+4+ab}, v{T+2+ab}')
        for ab in range(2):
            if c.pk2:
                Q=lambda r,u: f'v[{r+2*u}:{r+2*u+1}]'
                for u in range(5): k(f'v_pk_fma_f32 {Q(H+12*ab,u)}, {Q(XV+10*ab,u)}, v[{T+2}:{T+3}], v[{T+4}:{T+5}] op_sel:[0,{ab},{ab}] op_sel_hi:[1,{ab},{ab}]')
                for u in range(5): k(f'v_pk_fma_f32 {Q(H+12*ab,u)}, {Q(H+12*ab,u)}, {Q(CB,u)}, {Q(SB,u)}')
            else:
              for u in range(10): k(f'v_fma_f32 v{H+12*ab+u}, v{XV+10*ab+u}, v{T+2+ab}, v{T+4+ab}')
              for u in range(10): k(f'v_fma_f32 v{H+12*ab+u}, v{H+12*ab+u}, v{CB+u}, v{SB+u}')
            for u in range(5): k(f'v_cvt_pk_bf16_f32 v{PB+8*ab+u}, v{H+12*ab+2*u}, v{H+12*ab+2*u+1}')
            k(f'ds_write_b128 v{T+8+ab}, v[{PB+8*ab}:{PB+8*ab+3}] offset:{L_ZS}')
            t=k(f'ds_write_b32 v{T+10+ab}, v{PB+8*ab+4} offset:{L_ZS+8192}')
        self.w_wait(c.tr_b7); k.wait(t)
        k('s_barrier')
        self.stamp(13)
        L=self.w0(); ht=[]
        R=136
        for u in range(10): k(f'ds_read_b128 v[{R+4*u}:{R+4*u+3}], v18 offset:{L_ZS+1024*u}')
        for u in range(10):
            if u%2==0 and u: k('s_add_u32 s62, s62, 4096')
            ht.append(k(f'buffer_store_dwordx4 v[{R+4*u}:{R+4*u+3}], v245, s[16:19], s62 offen offset:{2048*(u%2)} {c.hfl}'))
        self.end(L)
        self.w_issue(c.iss_b7)
        k(f'v_add_u32 v250, {L_X1-L_XR}, v250'); k(f'v_add_u32 v251, {L_X1-L_XR}, v251'); k(f's_add_u32 s72, s72, {L_X1-L_XR}')
        for ab in range(2):
            for u in range(5): k(f'v_cvt_pk_bf16_f32 v{20+8*ab+u}, v{XV+10*ab+2*u}, v{XV+10*ab+2*u+1}')
            for u in range(10):
                op='ds_write_b16_d16_hi' if u&1 else 'ds_write_b16'
                if u<8: t=k(f'{op} v250, v{20+8*ab+(u>>1)} offset:{1280*ab+32*u}')
                else: t=k(f'{op} v251, v{20+8*ab+(u>>1)} offset:{1280*ab+1024+32*(u-8)}')
        k(f'v_add_u32 v{T+2}, s72, v18'); k(f'v_lshlrev_b32 v107, 2, v1'); k(f'v_add_u32 v{T+3}, s72, v107')
        L=self.w0(); k.wait(*ht); self.stamp(14); self.gpost(1)
        k(f's_add_u32 s63, s68, 4096'); k('v_lshlrev_b32 v253, 2, v2'); k('buffer_load_dword v247, v253, s[16:19], s63 offen sc1')
        self.end(L)
        self.gf2_issue()
        k.wait(t)
        X1R=96
        for ab in range(2):
            k(f'ds_read_b128 v[{X1R+4*ab}:{X1R+4*ab+3}], v{T+2} offset:{1280*ab}'); tx=k(f'ds_read_b32 v{X1R+8+ab}, v{T+3} offset:{1280*ab+1024}')
        tw=self.w_tr(c.tr_b7)
        if c.w4:
            if self.who=='wn': self.q_flush()
            self.w4_setup()
        L=self.w0(); Lo=k.label('ok'); Le=k.label('e')
        k('v_cmp_ne_u32 vcc, s14, v247'); k(f's_cbranch_vccz {Lo}')
        self.poll('buffer_load_dword v247, v253, s[16:19], s63 offen sc1', ['v_cmp_ne_u32 vcc, s14, v247'])
        k(f'{Lo}:')
        k('s_cmp_lg_u32 s15, 0'); k(f's_cbranch_scc1 {Le}'); k('buffer_inv sc1'); k('s_waitcnt vmcnt(0)'); k(f'{Le}:')
        self.end(L)
        self.gf2_check()
        k.wait(tx)
        if tw: k.wait(tw)
        k('s_barrier')
        self.stamp(15)
    def gf2_issue(self):
        k=self.k; c=self.c; sh=c.rec.bit_length()-1
        if not c.defer_sh: return
        self.G2L='buffer_load_dword v244, v246, s[16:19], s87 offen sc1\nbuffer_load_dword v245, v246, s[16:19], s86 offen sc1'
        L=self.w0(); k(f's_lshl_b32 s87, s12, {sh+8}'); k(f's_add_u32 s87, s87, {WS_FLG+FL_GF2+128*c.rec}'); k(f's_add_u32 s86, s87, {64*c.rec}'); k(f'v_lshlrev_b32 v246, {sh}, v1')
        k(self.G2L); self.end(L)
    def gf2_check(self):
        k=self.k
        if not self.c.defer_sh: return
        L=self.w0(); Lo=k.label('ok'); chk=['v_xor_b32 v244, s14, v244', 'v_xor_b32 v245, s14, v245', 'v_or_b32 v244, v244, v245', 'v_cmp_ne_u32 vcc, 0, v244']
        for x in chk: k(x)
        k(f's_cbranch_vccz {Lo}'); self.poll(self.G2L, chk); k(f'{Lo}:'); self.end(L)

def make(path, **kw):
    c=Cfg()
    for a,b in kw.items():
        assert hasattr(c,a), a
        setattr(c,a,b)
    g=Gen2(c); k=g.build()
    t,d=k.finish(table_text(NAME+'_tab'))
    hdr=open('header.txt').read()
    open(path,'w').write(hdr+'; @launch grid=(256,1,1) block=(256,1,1) lds=163840\n.amdgcn_target "amdgcn-amd-amdhsa--gfx950"\n'+t+d)
    print(path,k.stats)
NOW=dict(iss_early=[],iss_role=[],iss_ld=[],iss_b2=[],iss_b2b=[],iss_b3=[],iss_b4=[],iss_b5=[],iss_g=[],iss_b5b=[],iss_b6=[],iss_stb=[],iss_b7=[],tr_b2=[],tr_b3=[],tr_b4=[],tr_b5=[],tr_b7=[],tr_c0=[],sweep=False)
if __name__=='__main__':
    make('f_dbg.s',prof=True,noalias=True); make('f.s'); make('v_a.s',prof=True); make('v_b.s',prof=True,**NOW)
```

```python
from gen_g import *
import random, sys, json
ST={0,6,7,8,9,11,13,15,16,17,20,21,26,31}
PTS=['early','ld','role','b2','b2b','b2c','b3','b4','b5','g','b5b','b6','stb','b7','b9']
IP=dict(early=0,ld=0,role=0,b2=1,b2b=1,b2c=2,b3=2,b4=3,mid4=3,b5=4,g=5,b5b=5,b6=6,stb=6,b7=7,b9=8)
TP=dict(b2=(1,2),b3=(2,3),b4=(3,5),b5=(4,6),g=(5,6),b7=(7,8),c0=(9,99),c0b=(10,99))
def mk(pts, **kw):
    if isinstance(pts,str):
        q=[]
        for w in pts.split():
            p,_,n=w.partition(':'); q+=[p]*int(n or 2)
        pts=q
    assert len(pts)==20, len(pts)
    d={('iss_'+p):[] for p in PTS+['mid4']}; d.update({('tr_'+p):[] for p in TP})
    order=kw.get('order',list(range(20)))
    d['slot']={o:j%10 for j,o in enumerate(order)}
    for st,p in enumerate(pts): d['iss_'+p].append(order[st])
    for st,p in enumerate(pts):
        cands=[t for t,(a,b) in TP.items() if a>IP[p]]
        if st<10: cands=[t for t in cands if TP[t][1]<=IP[pts[st+10]]]
        elif st<14: cands=[t for t in cands if TP[t][0]<=7]
        else:
            cands=[t for t in cands if t in ('b7','c0','c0b')]
            cands=['c0b'] if IP[p]>=8 else ([c for c in cands if c!='c0b'])
            if IP[p]<=5 and not kw.get('lazy'): cands=['b7']
        if not cands: return None
        d['tr_'+cands[-1]].append(order[st])
    kw.pop('lazy',None); d.update(kw)
    if d.pop('ride',False): d['w4']=d['iss_b9']; d['iss_b9']=[]
    return d
if __name__=='__main__':
    L=json.load(open(sys.argv[1]))
    names=[]
    for i,(pts,kw) in enumerate(L):
        d=mk(pts,**kw)
        assert d, pts
        make(f's_{i}.s',prof=True,stamps=ST,**d); names.append(f's_{i}.s')
    print(' '.join(names))
```

```python
from asmgen import *
from lay2 import *
from gen_p2 import table_text, f32, D2B
from gen_p34 import Side, K1c, K2c
import sys

NAME='adaLN_cond__spectral_fnet__geglu_ffn__prompt_kernel'
L_RING=40960; WST=24576
L_TAB=20480; L_MOD=20480; L_X1=20480; L_XR=10240; L_ZS=10240; L_US=0; L_CA=37888
L_H=[0,40960]
FL_GRP=32768; FL_GF=0x80000; FL_GF2=0x100000; FL_XC=0

class EV(dict):
    def __setitem__(self,a,b):
        assert a not in self, ('event collision',a)
        dict.__setitem__(self,a,b)
class Cfg:
    prof=False; noalias=False; force_slow=False
    iss_early=[0]; iss_ld=[]; iss_role=[1]; iss_b2=[2,3]; iss_b2b=[4]; iss_b2c=[]; iss_b3=[5]; iss_b4=[6]; iss_mid4=[]; iss_b5=[]; iss_g=[7,8]; iss_b5b=[]; iss_b6=[]; iss_stb=[9]; iss_b7=[]; iss_b9=[]
    tr_b2=[0]; tr_b3=[1,2,3]; tr_b4=[4]; tr_b5=[5,6]; tr_b7=[7,8]; tr_c0=[9]; tr_c0b=[]; tr_g=[]; c0bar=70
    pf={}
    slot={i:i%10 for i in range(20)}
    nwd1=5; poll1=100; post0=40; chk0=40; post1=72; post2n=40; post3=30; chk2=40; chk3=34; xbar={1:18,2:18,3:18}; gbwait=20; outfl='nt'; stamps=None; wsp=3; hold1=6; hold2=6; post2=10; hops=True; x1fl=''; x1sep=False; gfl=['sc1','sc1','sc1','']
    defer_sh=True; usplit=True; c0split=True; alias2=True; per=[16,16,15]; nob2p=False; a2u=[1]; rdp=[1,3,5,8]; p4pair=True; tailopt=True; shdma='early'; post2s=0; pd2=30; pd3=24; pk2=True; zout=True; galias=True; wdlate=False; zsh=False; cont=True; pk3=True; prio=0; rate=0; split=True; tlb=0; shlate=True; nl1=47; gap3=3; gap4=5; ep_sp=30; pk=False; pkcost=2; zfl=''; hfl=''; gnt=''; alias3=True; w4=[]; sweep_at='sw_early'; pfd=2; wnlag=False; tr5early=False; w4early=True; nlate=13; x1late=False; rsplit=False; epost=True; fakeA=False; xloc=True; burst_early=True; gap012=4; zpar=False; c0n=4; wbwho=3; wb4=None; hopstep=4096; hoptg=False; rec=32; shst='b4'; ztouch='b2'; otouch='none'; gtouch=''; utouch=''; a2pre=[0]; a2post=[1]; gpfl='sc1'; gasync=False; gsleep=0; gsleep2=0; wb_at=[]; sweep=True; pretouch=True; codetouch=True; pace=0; pacewb=False; probe=None

def srd(k, r, lo, size):
    k(f's_mov_b32 s{r}, s{lo}'); k(f's_and_b32 s{r+1}, s{lo+1}, 0xffff'); k(f's_mov_b32 s{r+2}, {size}'); k(f's_mov_b32 s{r+3}, 0x20000')

class Gen:
    def __init__(self, cfg):
        self.c=cfg; self.k=Kernel(NAME); self.wt={}; self.nst=0
        self.H2=0x1180000-0x300000*0 if False else WS_H2; self.X1=WS_X1
        if cfg.noalias: self.H2=0x1200000; self.X1=0x1500000
        if cfg.x1sep: self.X1=0x1500000
        self.wssize=0x1800000 if cfg.noalias or cfg.x1sep else WS_SIZE
    def stamp(self, slot):
        if self.c.probe==slot:
            self.k('s_memrealtime s[98:99]'); self.k('s_waitcnt lgkmcnt(0)'); self.k('s_sub_u32 s95, s98, s96'); self.k('s_lshl_b32 s95, s95, 2')
        if not self.c.prof or slot<0 or (self.c.stamps and slot not in self.c.stamps): return
        k=self.k
        k('s_memrealtime s[90:91]'); k('s_memtime s[100:101]'); k('s_waitcnt lgkmcnt(0)')
        k(f'v_writelane_b32 v19, s90, {slot}'); k(f'v_writelane_b32 v19, s100, {32+slot}')
    def stamp_flush(self):
        if not self.c.prof: return
        k=self.k; L=k.label('sf')
        k('s_mov_b64 exec, -1')
        k('s_lshl_b32 s94, s2, 8'); k('s_lshl_b32 s93, s3, 16'); k('s_add_u32 s94, s94, s93'); k(f's_add_u32 s94, s94, {WS_DBG}')
        k('v_lshlrev_b32 v1, 2, v1'); k('buffer_store_dword v19, v1, s[16:19], s94 offen')
        k(f'{L}:')
    def w0(self):
        if self.who: self.k.mute=(self.who!='w0'); self.nop=True; return None
        assert self.k.curcls is None
        L=self.k.label('w0'); self.k('s_cmp_lg_u32 s3, 0'); self.k(f's_cbranch_scc1 {L}'); self.k.curcls='w0'; self.open=L; return L
    def wn(self):
        if self.who: self.k.mute=(self.who!='wn'); self.nop=True; return None
        assert self.k.curcls is None
        L=self.k.label('wn'); self.k('s_cmp_eq_u32 s3, 0'); self.k(f's_cbranch_scc1 {L}'); self.k.curcls='wn'; self.open=L; return L
    open=None
    who=None; nop=False; q=None
    def end(self,L):
        if L is None: self.k.mute=False; self.nop=False; return
        c=None
        if L==self.open: c=self.k.curcls; self.k.curcls=None; self.open=None
        self.k(f'{L}:'); self.k.ins[-1].join=c
    def w_setup(self):
        k=self.k; T=240
        k('s_cmp_le_u32 s3, 2'); k('s_cselect_b32 s28, s36, s38'); k('s_cselect_b32 s29, s37, s39'); k('s_and_b32 s29, s29, 0xffff')
        k(f's_mov_b32 s30, {D*F*2}'); k('s_mov_b32 s31, 0x20000')
        k('s_cmp_le_u32 s3, 1'); k('s_cselect_b32 s32, s36, s38'); k('s_cselect_b32 s33, s37, s39'); k('s_and_b32 s33, s33, 0xffff')
        k(f's_mov_b32 s34, {D*F*2}'); k('s_mov_b32 s35, 0x20000')
        k('s_sub_u32 s52, s3, 1'); k('s_lshl_b32 s56, s52, 12'); k(f's_add_u32 s56, s56, {L_RING}')
        k('s_mul_i32 s57, s13, 192')
        if self.c.fakeA: k('s_lshr_b32 s57, s2, 5'); k('s_and_b32 s53, s2, 1'); k('s_lshl_b32 s53, s53, 3'); k('s_add_u32 s57, s57, s53'); k('s_mul_i32 s57, s57, 192')
        k(f's_mov_b32 s53, {(2**32+11)//12}')
        k('s_lshl_b32 s52, s52, 2')
        for m in range(4):
            k(f's_add_u32 s54, s52, {m}'); k('s_cmp_ge_u32 s54, 6'); k('s_cselect_b32 s55, 6, 0'); k('s_sub_u32 s54, s54, s55'); k('s_lshl_b32 s54, s54, 6')
            k(f'v_add_u32 v{T}, s54, v1'); k(f'v_mul_hi_u32 v{T+1}, v{T}, s53')
            k(f'v_mul_u32_u24 v{T+2}, 12, v{T+1}'); k(f'v_sub_u32 v{T+2}, v{T}, v{T+2}'); k(f'v_lshlrev_b32 v{T+2}, 4, v{T+2}')
            k(f'v_lshrrev_b32 v{T+3}, 3, v{T+1}'); k(f'v_and_b32 v{T+4}, 7, v{T+1}')
            k(f'v_lshl_add_u32 v{T+5}, v{T+4}, 4, v{T+3}'); k(f'v_mul_u32_u24 v{T+5}, 3072, v{T+5}'); k(f'v_add_u32 v{4+m}, v{T+5}, v{T+2}')
            k(f'v_lshrrev_b32 v{T+5}, 1, v{T+4}'); k(f'v_lshl_add_u32 v{T+5}, v{T+3}, 2, v{T+5}'); k(f'v_and_b32 v{T+4}, 1, v{T+4}')
            k(f'v_lshl_add_u32 v{T+5}, v{T+4}, 4, v{T+5}'); k(f'v_mul_u32_u24 v{T+5}, 3072, v{T+5}'); k(f'v_add_u32 v{8+m}, v{T+5}, v{T+2}')
    def w_setup_tr(self):
        k=self.k; T=240
        k(f'v_lshrrev_b32 v{T}, 2, v2'); k(f'v_lshl_add_u32 v{T}, v3, 3, v{T}'); k(f'v_mul_u32_u24 v{T}, 192, v{T}')
        k('s_mul_i32 s52, s3, 48'); k(f's_add_u32 s52, s52, {L_RING}'); k(f'v_add_u32 v{T}, s52, v{T}')
        k(f'v_and_b32 v{T+1}, 3, v2'); k(f'v_lshl_add_u32 v12, v{T+1}, 3, v{T}')
        k(f'v_and_b32 v{T+1}, 1, v2'); k(f'v_lshl_add_u32 v13, v{T+1}, 3, v{T}'); k(f'v_bfe_u32 v{T+1}, v2, 1, 1')
        k(f'v_mul_u32_u24 v{T+1}, 6144, v{T+1}'); k(f'v_add3_u32 v13, v13, v{T+1}, 32')
        for p in (1,2):
            k(f'v_add_u32 v{12+2*p}, {2*p*WST}, v12'); k(f'v_add_u32 v{13+2*p}, {2*p*WST}, v13')
    def w_issue(self, stages, then=None, masked=False, burst=False):
        k=self.k
        if not stages:
            if then: k.wait(*then)
            return
        if self.who and self.c.rate and not burst:
            if self.who=='wn':
                for ks in stages:
                    reg=4 if ks<16 else 8
                    row=(4*(ks&3)+128*(ks>>2)) if ks<16 else 512+32*(ks-16)
                    for m in range(4):
                        self.q.append((ks, ([f's_add_u32 s58, s57, {row*3072}'] if m==0 else [])+[f's_add_u32 m0, s56, {self.c.slot[ks]*12288+1024*m}'], f'buffer_load_dwordx4 v{reg+m}, s[{28 if m<2 else 32}:{31 if m<2 else 35}], s58 offen lds'))
            return
        if masked: k('s_cmp_eq_u32 s3, 0'); k('s_cselect_b64 exec, 0, -1')
        else: L=self.wn()
        for st in stages:
            for ks in (st,):
                reg=4 if ks<16 else 8
                row=(4*(ks&3)+128*(ks>>2)) if ks<16 else 512+32*(ks-16)
                k(f's_add_u32 s58, s57, {row*3072}'); k(f's_add_u32 m0, s56, {self.c.slot[st]*12288}')
                for m in range(4):
                    t=k(f'buffer_load_dwordx4 v{reg+m}, s[{28 if m<2 else 32}:{31 if m<2 else 35}], s58 offen lds')
                    self.wt.setdefault(st,[]).append(t)
                    if m<3: k('s_add_u32 m0, m0, 1024')
        if masked: k('s_mov_b64 exec, -1')
        elif then:
            k.wait(*then); self.end(L); L=self.w0(); k.wait(*then); self.end(L); k.forget(*then)
        else: self.end(L)
    def pf_setup(self):
        k=self.k; T=240
        k('s_lshr_b32 s52, s2, 3'); k('s_and_b32 s53, s52, 15'); k('s_lshl_b32 s53, s53, 1'); k('s_lshr_b32 s52, s52, 4')
        k(f's_mul_i32 s92, s52, {4*3072}'); k(f's_mul_i32 s93, s52, {32*3072}')
        k(f'v_min_u32 v{T}, 47, v1'); k(f'v_cmp_le_u32 vcc, 24, v{T}'); k(f'v_cndmask_b32 v{T+1}, 0, 1, vcc')
        k(f'v_mul_u32_u24 v{T+2}, 24, v{T+1}'); k(f'v_sub_u32 v{T+2}, v{T}, v{T+2}'); k(f'v_lshlrev_b32 v{T+2}, 7, v{T+2}')
        k(f'v_add_u32 v{T+1}, s53, v{T+1}')
        k(f'v_lshrrev_b32 v{T+3}, 3, v{T+1}'); k(f'v_and_b32 v{T+4}, 7, v{T+1}')
        k(f'v_lshl_add_u32 v{T+5}, v{T+4}, 4, v{T+3}'); k(f'v_mul_u32_u24 v{T+5}, 3072, v{T+5}'); k(f'v_add_u32 v{T+5}, v{T+5}, v{T+2}'); k(f'v_accvgpr_write_b32 a244, v{T+5}')
        k(f'v_lshrrev_b32 v{T+5}, 1, v{T+4}'); k(f'v_lshl_add_u32 v{T+5}, v{T+3}, 2, v{T+5}'); k(f'v_and_b32 v{T+4}, 1, v{T+4}')
        k(f'v_lshl_add_u32 v{T+5}, v{T+4}, 4, v{T+5}'); k(f'v_mul_u32_u24 v{T+5}, 3072, v{T+5}'); k(f'v_add_u32 v{T+5}, v{T+5}, v{T+2}'); k(f'v_accvgpr_write_b32 a245, v{T+5}')
    def pf(self, point):
        sts=self.c.pf.get(point,[])
        if not sts: return
        k=self.k; L=k.label('pf'); k('s_cmp_lg_u32 s3, 2'); k(f's_cbranch_scc1 {L}')
        for st in sts:
            ks=2*st; row=(4*(ks&3)+128*(ks>>2)) if ks<16 else 512+32*(ks-16)
            k(f'v_accvgpr_read_b32 v252, a{244 if ks<16 else 245}')
            k(f's_add_u32 s58, s{92 if ks<16 else 93}, {row*3072}')
            k('buffer_load_dword a246, v252, s[28:31], s58 offen'); k('buffer_load_dword a247, v252, s[32:35], s58 offen')
            if point=='chain' and st!=sts[-1]: k(f's_waitcnt vmcnt({2*self.c.pfd-2})')
        self.end(L)
    def q_pop(self):
        k=self.k; h=k.hook; k.hook=None
        ks,pre,op=self.q.pop(0)
        for x in pre: k(x)
        self.wt.setdefault(ks,[]).append(k(op)); k.hook=h; self.acc=0
    def q_flush(self, stages=None):
        while self.q and (stages is None or any(e[0] in stages for e in self.q)): self.q_pop()
    def pace(self, i):
        if i.kind in ('label','dir'): return
        self.acc+=4 if i.kind=='mfma' else (2 if i.op.startswith(('v_exp','v_rcp','v_cos','v_rsq')) else 1)
        if ('exec',0) in i.dst or ('exec',1) in i.dst: self.ezf=i.text.replace(' ','') not in ('s_mov_b64exec,-1','s_mov_b32exec_hi,-1')
        if self.q and self.acc>=self.c.rate and not self.nop and not self.ezf and i.kind in ('valu','ds','mfma') and not self.sccl: self.q_pop()
    acc=0; ezf=False; sccl=False
    def w_wait(self, stages, extra=()):
        if self.who=='wn': self.q_flush(stages)
        if self.who=='w0': return
        toks=[t for st in stages for t in self.wt[st]]+list(extra)
        if not toks: return
        if self.k.curcls=='wn': self.k.wait(*toks)
        else:
            L=self.wn(); self.k.wait(*toks); self.end(L)
    def w_tr_list(self, stages):
        out=[]
        for st in stages:
            sl=self.c.slot[st]
            for ks in (st,):
                base=(sl&3)*12288; r0=12+2*(sl>>2)
                for T in range(3):
                    for hh in range(2):
                        a=(ks*3+T)*4+2*hh
                        out.append(f'ds_read_b64_tr_b16 a[{a}:{a+1}], v{r0+1 if T==2 else r0} offset:{base+768*hh+(6144 if T==1 else 0)}')
        return out
    def w_tr(self, stages):
        t=None
        for s in self.w_tr_list(stages): t=self.k(s); self.trtok=t
        return t
    trtok=None
    def check_sched(self):
        c=self.c
        ip=dict(early=0,ld=0,role=0,b2=1,b2b=1,b2c=2,b3=2,b4=3,mid4=3,b5=4,g=5,b5b=5,b6=6,stb=6,b7=7,b9=8)
        tp=dict(b2=(1,2),b3=(2,3),b4=(3,5),b5=(4,6),g=(5,6),b7=(7,8),c0=(9,99),c0b=(10,99))
        I={}; Tr={}
        if c.nob2p: ip['b2c']=1
        for n,p in ip.items():
            for st in getattr(c,'iss_'+n)+(c.w4 if n=='b9' else []): assert st not in I; I[st]=p
        for n,p in tp.items():
            for st in getattr(c,'tr_'+n): assert st not in Tr; Tr[st]=p
        if not I: return
        assert sorted(I)==sorted(Tr)==list(range(20)), (I,Tr)
        for st in I:
            assert I[st]<Tr[st][0], ('tr before issue',st)
            if Tr[st][0]>=9: assert c.slot[st]>=4
            if st>=18: assert Tr[st][0]>=7
            if c.shlate and c.slot[st]>=8: assert I[st]>=2
            for o in I:
                if o!=st and c.slot[o]==c.slot[st] and (I[o],o)<(I[st],st): assert Tr[o][1]<=I[st], ('slot reuse',o,st)
    def early(self):
        k=self.k; c=self.c
        k(f's_add_u32 s60, s50, {WS_FLG}'); k('s_addc_u32 s61, s51, 0'); k('s_load_dword s14, s[60:61], 0')
        srd(k,16,50,self.wssize)
        self.w_setup()
        if c.sweep:
            L=self.w0()
            k('v_lshlrev_b32 v240, 7, v1'); k('s_mul_i32 s52, s2, 7680')
            k('s_mov_b32 s32, s38'); k('s_and_b32 s33, s39, 0xffff')
            k('buffer_load_dword a246, v240, s[28:31], s52 offen'); k('buffer_load_dword a246, v240, s[32:35], s52 offen')
            self.end(L)
        if c.pf: self.pf_setup(); self.pf('early')
        self.w_setup_tr()
        k('v_lshlrev_b32 v18, 4, v1')
        Lp=k.label('pc'); k('s_getpc_b64 s[52:53]'); k(f'{Lp}:'); k(f's_add_u32 s52, s52, {NAME}_tab-{Lp}'); k('s_addc_u32 s53, s53, 0'); srd(k,24,52,17408)
        k('s_lshl_b32 s53, s3, 12'); k(f's_add_u32 m0, s53, {L_TAB}'); self.tabt=[]
        for u in range(4): self.tabt.append(k(f'buffer_load_dwordx4 v18, s[24:27], s53 offen offset:{1024*u} lds'))
        k(f's_mov_b32 m0, {L_TAB+16384}'); k('s_mov_b32 s53, 16384')
        self.tabt.append(k(f'buffer_load_dwordx4 v18, s[24:27], s53 offen lds'))
    def role_ln_a(self):
        k=self.k
        X=20; X2=52
        k('s_mul_i32 s52, s3, 320')
        k(f's_mov_b32 s53, 655360'); k('v_mul_u32_u24 v24, s53, v3'); k('v_add_u32 v24, s52, v24')
        k('v_lshl_add_u32 v250, v2, 4, v24'); k('v_lshl_add_u32 v251, v2, 2, v24')
        if self.c.xloc:
            k('s_and_b32 s66, s2, 7'); k('s_lshl_b32 s66, s66, 1'); k('s_and_b32 s54, s13, 1'); k('s_add_u32 s66, s66, s54')
            k('s_sub_u32 s54, 32, s66'); k('s_cmp_eq_u32 s66, 0'); k('s_cselect_b32 s54, 16, s54')
            k('s_bitcmp1_b32 s13, 2'); k('s_cselect_b32 s66, s54, s66'); k('s_bitcmp1_b32 s13, 1'); k('s_cselect_b32 s54, 32, 0'); k('s_add_u32 s66, s66, s54')
        else: k('s_and_b32 s66, s2, 7'); k('s_lshl_b32 s54, s13, 3'); k('s_add_u32 s66, s66, s54')
        k('s_mul_i32 s54, s66, 1280')
        srd(k,20,4,S*D*2)
        for r in range(8):
            k(f'buffer_load_dwordx4 v[{X+4*r}:{X+4*r+3}], v250, s[20:23], s54 offen')
            k(f'buffer_load_dword v{X2+r}, v251, s[20:23], s54 offen offset:256')
            if r<7: k('s_add_u32 s54, s54, 81920')
    def role_ln(self):
        k=self.k
        X=20; X2=52; B=60; Fm=100; V=116; Fp=132; MU=140; BI=144; DD=152; T=232
        k('s_mov_b32 s62, 0x05040100'); k('s_mov_b32 s63, 0x07060302')
        k(f'v_lshlrev_b32 v{T+2}, 3, v3'); k(f'v_cvt_f32_u32 v{T+2}, v{T+2}')
        k('s_bfe_u32 s67, s2, 0x10003')
        k('s_lshl_b32 s52, s67, 3'); k(f'v_lshrrev_b32 v{T}, 1, v2'); k(f'v_add_u32 v{T}, s52, v{T}'); k(f'v_and_b32 v{T+1}, 1, v2')
        k('s_cmp_eq_u32 s67, 0'); k('s_cselect_b32 s52, 1, 99'); k('v_cmp_eq_u32 vcc, s52, v2'); k(f'v_cndmask_b32 v{T}, v{T}, 16, vcc'); k(f'v_cndmask_b32 v{T+1}, v{T+1}, 0, vcc')
        k(f'v_cvt_f32_u32 v{T}, v{T}'); k(f'v_cvt_f32_u32 v{T+1}, v{T+1}')
        k(f'v_mul_f32 v{T}, 0x3d000000, v{T}'); k(f'v_mul_f32 v{T+1}, 0x3e800000, v{T+1}')
        k(f'v_fma_f32 v{T+1}, v{T}, v{T+2}, v{T+1}')
        for jj in range(8): k(f'v_fmamk_f32 v{Fm+jj}, v{T}, {float(jj)}, v{T+1}')
        for jj in range(8): k(f'v_cos_f32 v{Fm+jj}, v{Fm+jj}')
        k('s_mul_i32 s52, s3, 320'); k(f's_mov_b32 s53, {2*163840}'); k(f'v_mul_u32_u24 v{T}, s53, v3'); k(f'v_add_u32 v{T}, s52, v{T}')
        k(f'v_lshl_add_u32 v250, v2, 4, v{T}'); k(f'v_lshl_add_u32 v251, v2, 2, v{T}')
        k('s_mul_i32 s64, s66, 2560'); k(f's_mul_i32 s52, s67, {8*163840}'); k('s_add_u32 s64, s64, s52')
        if WS_U: k(f's_add_u32 s64, s64, {WS_U}')
        k(f's_add_u32 s65, s64, 163840')
        k(f'v_mov_b32 v{T+3}, 0x3f803f80')
        for i in range(16): k(f'v_mov_b32 v{V+i}, 0')
        k('s_lshl_b32 s52, s3, 8')
        k(f'v_lshrrev_b32 v{T+4}, 3, v2'); k(f'v_lshlrev_b32 v{T+4}, 7, v{T+4}'); k(f'v_bfe_u32 v{T+5}, v2, 2, 1'); k(f'v_lshl_add_u32 v{T+4}, v{T+5}, 4, v{T+4}')
        k(f'v_lshl_add_u32 v{T+4}, v3, 5, v{T+4}'); k(f'v_add_u32 v{T+4}, s52, v{T+4}')
        k(f'v_and_b32 v{T+5}, 7, v2'); k(f'v_lshlrev_b32 v{T+5}, 2, v{T+5}'); k(f'v_lshl_add_u32 v{T+5}, v3, 5, v{T+5}')
        self.w_issue(self.c.iss_early, masked=True)
        self.stamp(1)
        for r in range(8):
            for d in range(5):
                x=X+4*r+d if d<4 else X2+r
                k(f'v_dot2c_f32_bf16 v{V+r}, v{x}, v{T+3}'); k(f'v_dot2c_f32_bf16 v{V+8+r}, v{x}, v{x}')
        self.stamp(2)
        self.pf('ld'); self.w_issue(self.c.iss_ld)
        for i in range(8): k(f'v_add_f32_dpp v{V+i}, v{V+i}, v{V+i} row_ror:8 row_mask:0xf bank_mask:0x3')
        for i in range(8): k(f'v_add_f32_dpp v{V+i}, v{V+8+i}, v{V+8+i} row_ror:8 row_mask:0xf bank_mask:0xc')
        for i in range(4): k(f'v_add_f32_dpp v{V+i}, v{V+i}, v{V+i} row_shl:4 row_mask:0xf bank_mask:0x5')
        for i in range(4): k(f'v_add_f32_dpp v{V+i}, v{V+4+i}, v{V+4+i} row_shr:4 row_mask:0xf bank_mask:0xa')
        for i in range(4): k(f'v_add_f32_dpp v{V+i}, v{V+i}, v{V+i} quad_perm:[1,0,3,2] row_mask:0xf bank_mask:0xf')
        for i in range(4): k(f'v_add_f32_dpp v{V+i}, v{V+i}, v{V+i} quad_perm:[2,3,0,1] row_mask:0xf bank_mask:0xf')
        t=k(f'ds_write_b128 v{T+4}, v[{V}:{V+3}]')
        def perms(js):
            for j in js:
                for i in range(4):
                    if j<8: a,b=X+8*i+4+(j>>1), X+8*i+(j>>1)
                    else: a,b=X2+2*i+1, X2+2*i
                    k(f'v_perm_b32 v{B+4*j+i}, v{a}, v{b}, s{62+(j&1)}')
        perms(range(0,3))
        k.wait(t); k('s_barrier')
        for w in range(4): k(f'ds_read2_b32 v[{V+4+2*w}:{V+5+2*w}], v{T+5} offset0:{64*w} offset1:{64*w+32}')
        perms(range(3,10))
        k(f'v_add_f32 v{V}, v{V+4}, v{V+6}'); k(f'v_add_f32 v{V+1}, v{V+5}, v{V+7}')
        k(f'v_add_f32 v{V+2}, v{V+8}, v{V+10}'); k(f'v_add_f32 v{V+3}, v{V+9}, v{V+11}')
        k(f'v_add_f32 v{V}, v{V}, v{V+2}'); k(f'v_add_f32 v{V+1}, v{V+1}, v{V+3}')
        k(f'v_mul_f32 v{V}, 0xbacccccd, v{V}'); k(f'v_mul_f32 v{V+1}, 0x3acccccd, v{V+1}')
        k(f'v_fma_f32 v{V+1}, -v{V}, v{V}, v{V+1}'); k(f'v_max_f32 v{V+1}, 0, v{V+1}'); k(f'v_add_f32 v{V+1}, 0x3727c5ac, v{V+1}')
        k(f'v_rsq_f32 v{V+1}, v{V+1}')
        for jj in range(8): k(f'v_mov_b32_dpp v{V+4+jj}, v{V} row_newbcast:{jj} row_mask:0xf bank_mask:0xf')
        for jj in range(8): k(f'v_mul_f32_dpp v{Fm+jj}, v{V+1}, v{Fm+jj} row_newbcast:{jj} row_mask:0xf bank_mask:0xf')
        for i in range(4): k(f'v_cvt_pk_bf16_f32 v{MU+i}, v{V+4+2*i}, v{V+5+2*i}')
        for i in range(4): k(f'v_cvt_pk_bf16_f32 v{Fp+i}, v{Fm+2*i}, v{Fm+2*i+1}')
        k(f'v_mfma_f32_16x16x32_bf16 v[{BI}:{BI+3}], v[{Fp}:{Fp+3}], v[{MU}:{MU+3}], 0')
        for j in range(10):
            d=DD+4*j
            k(f'v_mfma_f32_16x16x32_bf16 v[{d}:{d+3}], v[{Fp}:{Fp+3}], v[{B+4*j}:{B+4*j+3}], v[{BI}:{BI+3}]')
        for i in range(4):
            o=X+4*i; o2=X2+i
            for jp in range(4): k(f'v_cvt_pk_bf16_f32 v{o+jp}, v{DD+8*jp+i}, v{DD+8*jp+4+i}')
            k(f'v_cvt_pk_bf16_f32 v{o2}, v{DD+32+i}, v{DD+36+i}')
            self.drain.append(k(f'buffer_store_dwordx4 v[{o}:{o+3}], v250, s[16:19], s{64+(i>>1)} offen offset:{1280*(i&1)} sc1'))
            self.drain.append(k(f'buffer_store_dword v{o2}, v251, s[16:19], s{64+(i>>1)} offen offset:{1280*(i&1)+256} sc1'))
    def role_mod_a(self):
        k=self.k
        Wr=20; C=60; Sf=68; SP=80; A=88; P=96; Q=108; Rr=120; T=232
        k('s_sub_u32 s64, s2, 128'); k('s_and_b32 s65, s64, 1'); k('s_lshr_b32 s64, s64, 1')
        k('v_and_b32 v250, 7, v0'); k('v_lshrrev_b32 v251, 3, v0')
        k(f's_mov_b32 s52, {10*7680}'); k(f'v_lshlrev_b32 v{T}, 4, v250'); k(f'v_mad_u32_u24 v{T}, v251, s52, v{T}')
        k(f'v_mul_u32_u24 v{T+1}, 20, v251')
        k(f's_mul_i32 s53, s65, {320*7680}'); k('s_lshl_b32 s54, s64, 7'); k('s_add_u32 s53, s53, s54'); k('s_mul_i32 s54, s65, 640')
        srd(k,20,44,640*3840*2); srd(k,24,42,1280)
        k(f'buffer_load_dwordx4 v[{C}:{C+3}], v{T+1}, s[24:27], s54 offen'); k(f'buffer_load_dword v{C+4}, v{T+1}, s[24:27], s54 offen offset:16')
        for i in range(10):
            k(f'buffer_load_dwordx4 v[{Wr+4*i}:{Wr+4*i+3}], v{T}, s[20:23], s53 offen')
            if i<9: k('s_add_u32 s53, s53, 7680')
    def role_mod(self):
        k=self.k
        Wr=20; C=60; Sf=68; SP=80; A=88; P=96; Q=108; Rr=120; T=232
        k('s_mov_b32 s62, 0x05040100'); k('s_mov_b32 s63, 0x07060302')
        n=10
        for i in range(n):
            if i&1: k(f'v_and_b32 v{Sf+i}, 0xffff0000, v{C+(i>>1)}')
            else: k(f'v_lshlrev_b32 v{Sf+i}, 16, v{C+(i>>1)}')
        for i in range(n): k(f'v_mul_f32 v{P+i}, 0xbfb8aa3b, v{Sf+i}')
        for i in range(n): k(f'v_exp_f32 v{P+i}, v{P+i}')
        for i in range(n): k(f'v_add_f32 v{P+i}, 1.0, v{P+i}')
        for i in range(n): k(f'v_rcp_f32 v{Rr+i}, v{P+i}')
        for i in range(n): k(f'v_mul_f32 v{Q+i}, v{Sf+i}, v{Rr+i}')
        for i in range(n): k(f'v_fma_f32 v{P+i}, -v{Q+i}, v{P+i}, v{Sf+i}')
        for i in range(n): k(f'v_fma_f32 v{P+i}, v{P+i}, v{Rr+i}, v{Q+i}')
        for i in range(n):
            k(f'v_cmp_o_f32 vcc, v{P+i}, v{P+i}'); k(f'v_cndmask_b32 v{Sf+i}, v{Q+i}, v{P+i}, vcc')
        for i in range(5): k(f'v_cvt_pk_bf16_f32 v{SP+i}, v{Sf+2*i}, v{Sf+2*i+1}')
        for j in range(8): k(f'v_mov_b32 v{A+j}, 0')
        k('s_mul_i32 s66, s64, 26'); k('s_lshr_b32 s66, s66, 8')
        k('s_mul_i32 s52, s66, 10'); k('s_sub_u32 s52, s64, s52'); k('s_lshl_b32 s52, s52, 6')
        U=140
        k(f'v_add_u32 v{U}, s52, v1')
        k('s_mul_i32 s53, s66, 640'); k('s_add_u32 s54, s53, 768'); k('s_cmp_lt_u32 s66, 2'); k('s_cselect_b32 s53, s53, s54'); k('s_cmp_eq_u32 s66, 5'); k('s_cselect_b32 s53, 1280, s53')
        k(f'v_add_lshl_u32 v{U+3}, v{U}, s53, 2')
        k(f's_mul_i32 s67, s65, {MODP}'); k(f's_add_u32 s67, s67, {WS_MOD}')
        k(f'v_lshrrev_b32 v{U+1}, 4, v0'); k(f'v_lshlrev_b32 v{U+1}, 8, v{U+1}'); k(f'v_lshl_add_u32 v{U+1}, v250, 5, v{U+1}')
        k(f'v_lshlrev_b32 v{U+2}, 2, v1')
        self.w_issue(self.c.iss_early, masked=True)
        self.stamp(1)
        for i2 in range(5):
            for j in range(8): k(f'v_perm_b32 v{P+j}, v{Wr+8*i2+4+(j>>1)}, v{Wr+8*i2+(j>>1)}, s{62+(j&1)}')
            for j in range(8): k(f'v_dot2c_f32_bf16 v{A+j}, v{P+j}, v{SP+i2}')
        self.stamp(2)
        self.pf('ld'); self.w_issue(self.c.iss_ld)
        for j in range(8): k(f'v_add_f32_dpp v{A+j}, v{A+j}, v{A+j} row_ror:8 row_mask:0xf bank_mask:0xf')
        k(f'ds_write_b128 v{U+1}, v[{A}:{A+3}]'); t=k(f'ds_write_b128 v{U+1}, v[{A+4}:{A+7}] offset:16')
        k.wait(t); k('s_barrier')
        L=self.w0()
        for i in range(8): k(f'ds_read2st64_b32 v[{Wr+2*i}:{Wr+2*i+1}], v{U+2} offset0:{2*i} offset1:{2*i+1}')
        for i in range(8): k(f'v_add_f32 v{Wr+2*i}, v{Wr+2*i}, v{Wr+2*i+1}')
        for a,b in [(0,2),(4,6),(8,10),(12,14),(0,4),(8,12),(0,8)]: k(f'v_add_f32 v{Wr+a}, v{Wr+a}, v{Wr+b}')
        self.drain.append(k(f'buffer_store_dword v{Wr}, v{U+3}, s[16:19], s67 offen sc1'))
        self.end(L)
    def role_shuf_a(self):
        k=self.k; T=232
        L=self.wn()
        k('s_sub_u32 s74, s2, 128'); k('s_mul_i32 s74, s74, 3'); k('s_add_u32 s74, s74, s3'); k('s_sub_u32 s74, s74, 1')
        k('s_lshr_b32 s52, s74, 3'); k('s_mul_i32 s52, s52, 40960'); k('s_and_b32 s53, s74, 7'); k('s_mul_i32 s53, s53, 160'); k('s_add_u32 s52, s52, s53')
        k('s_mul_i32 s75, s3, 5120')
        if self.c.shlate: k(f's_add_u32 s75, s75, {L_RING+4*WST}')
        k('s_mov_b32 m0, s75')
        k(f's_mov_b32 s54, {(2**32+9)//10}')
        srd(k,24,40,F*D*2)
        toks=self.shtoks=[]
        for i in range(5):
            k(f'v_add_u32 v{T+2}, {64*i}, v1'); k(f'v_mul_hi_u32 v{T+3}, v{T+2}, s54'); k(f'v_mul_u32_u24 v{T+3}, {1280-160}, v{T+3}'); k(f'v_lshl_add_u32 v{T+3}, v{T+2}, 4, v{T+3}')
            toks.append(k(f'buffer_load_dwordx4 v{T+3}, s[24:27], s52 offen lds'))
            if i<4: k('s_add_u32 m0, m0, 1024')
        self.end(L)
    def role_shuf(self):
        k=self.k; toks=self.shtoks; T=232; O=216
        L=self.wn()
        k(f'v_lshrrev_b32 v{T}, 2, v2'); k(f'v_lshl_add_u32 v{T}, v3, 3, v{T}'); k(f'v_mul_u32_u24 v{T}, 160, v{T}'); k(f'v_add_u32 v{T}, s75, v{T}')
        k(f'v_and_b32 v{T+1}, 3, v2'); k(f'v_lshl_add_u32 v{T+2}, v{T+1}, 3, v{T}'); k(f'v_lshl_add_u32 v{T+1}, v{T+1}, 4, v{T}')
        k('s_and_b32 s52, s74, 7'); k('s_mul_i32 s52, s52, 48'); k('s_lshr_b32 s53, s74, 3'); k('s_add_u32 s52, s52, s53'); k('s_mul_i32 s52, s52, 5120'); k(f's_add_u32 s84, s52, {WS_WDS}')
        k('s_add_u32 s85, s84, 4096')
        k.wait(*toks)
        for mt in range(5):
            for hh in range(2):
                if mt<4: k(f'ds_read_b64_tr_b16 a[{O+4*mt+2*hh}:{O+4*mt+2*hh+1}], v{T+1} offset:{640*hh+64*(mt>>1)+8*(mt&1)}')
                else: t=k(f'ds_read_b64_tr_b16 a[{O+4*mt+2*hh}:{O+4*mt+2*hh+1}], v{T+2} offset:{640*hh+128}')
        if self.c.defer_sh: k.wait(t)
        else: self.drain+=self.shuf_store()
        self.end(L)
    def shuf_store(self):
        k=self.k; O=216
        return [k(f'buffer_store_dwordx4 a[{O+4*mt}:{O+4*mt+3}], v18, s[16:19], s{84+(mt>>2)} offen offset:{1024*(mt&3)} sc1') for mt in range(5)]
    def poll(self, ld, chk, sleep=0):
        k=self.k; Lp=k.label('p'); Lx=k.label('x')
        k('s_mov_b32 s52, 0'); k(f'{Lp}:')
        if sleep: k(f's_sleep {sleep}')
        k(ld); k('s_waitcnt vmcnt(0)')
        k('s_add_u32 s52, s52, 1'); k('s_cmp_gt_u32 s52, 0x400000'); k(f's_cbranch_scc1 {Lx}')
        for s in chk: k(s)
        k(f's_cbranch_vccnz {Lp}'); k(f'{Lx}:')
    def gpost(self, kind, pre=None):
        k=self.k; Ls=k.label('s'); Le=k.label('e')
        if pre: k(f's_mov_b32 s52, {pre}')
        else:
            k(f's_add_u32 s53, s68, {kind*4096}'); k('s_lshl_b32 s52, s13, 2'); k('s_add_u32 s52, s52, s53')
            k('v_mov_b32 v252, s14'); k('v_mov_b32 v253, 0')
        k('s_mov_b64 exec, 1')
        k('s_cmp_eq_u32 s15, 0'); k(f's_cbranch_scc1 {Ls}')
        k('buffer_store_dword v252, v253, s[16:19], s52 offen'); k(f's_branch {Le}')
        k(f'{Ls}:'); k('buffer_wbl2 sc1'); k('s_waitcnt vmcnt(0)'); k('buffer_store_dword v252, v253, s[16:19], s52 offen sc1')
        k(f'{Le}:'); k('s_mov_b64 exec, -1')
    def gpoll(self, kind):
        k=self.k; Le=k.label('e')
        k(f's_add_u32 s53, s68, {kind*4096}'); k('v_lshlrev_b32 v253, 2, v2')
        self.poll('buffer_load_dword v252, v253, s[16:19], s53 offen sc1', ['v_cmp_ne_u32 vcc, s14, v252'])
        k('s_cmp_lg_u32 s15, 0'); k(f's_cbranch_scc1 {Le}')
        k('buffer_inv sc1'); k('s_waitcnt vmcnt(0)')
        k(f'{Le}:')
    def wpost(self, kind, wb):
        k=self.k; Ls=k.label('s'); Le=k.label('e')
        k(f's_add_u32 s52, s86, {kind*4096}'); k('s_mov_b64 exec, 1')
        k('s_cmp_eq_u32 s15, 0'); k(f's_cbranch_scc1 {Ls}')
        k('buffer_store_dword v252, v253, s[16:19], s52 offen'); k(f's_branch {Le}')
        k(f'{Ls}:')
        if wb: k('buffer_wbl2 sc1'); k('s_waitcnt vmcnt(0)')
        k('buffer_store_dword v252, v253, s[16:19], s52 offen sc1')
        k(f'{Le}:'); k('s_mov_b64 exec, -1')
    def apoll(self, kind):
        k=self.k; k(f's_add_u32 s87, s68, {kind*4096}'); k('buffer_load_dword v251, v14, s[16:19], s87 offen sc1')
    def acheck(self):
        k=self.k; Lo=k.label('ok')
        k('v_cmp_ne_u32 vcc, s14, v251'); k(f's_cbranch_vccz {Lo}')
        self.poll('buffer_load_dword v251, v14, s[16:19], s87 offen sc1', ['v_cmp_ne_u32 vcc, s14, v251'])
        k(f'{Lo}:')
    def build(self):
        k=self.k; c=self.c
        END=k.label('end'); LM=k.label('mod'); LS=k.label('shuf'); LN_=k.label('none'); LJ=k.label('join')
        self.drain=[]; self.check_sched()
        k('s_cmp_ge_u32 s2, 256'); k(f's_cbranch_scc1 {END}')
        k(f's_load_dwordx2 s[4:5], s[0:1], {KA["x"]}'); k(f's_load_dwordx16 s[36:51], s[0:1], {KA["wg"]}')
        if c.prof: k('v_mov_b32 v19, -1')
        if c.pace: k('s_memrealtime s[96:97]'); k('s_mov_b32 s95, 0')
        self.stamp(0)
        k('v_lshrrev_b32 v1, 6, v0'); k('v_readfirstlane_b32 s3, v1')
        k('v_and_b32 v1, 63, v0'); k('v_and_b32 v2, 15, v0'); k('v_lshrrev_b32 v3, 4, v1')
        k('s_and_b32 s12, s2, 7'); k('s_lshl_b32 s12, s12, 1'); k('s_bfe_u32 s13, s2, 0x10003'); k('s_add_u32 s12, s12, s13'); k('s_lshr_b32 s13, s2, 4')
        if c.codetouch:
            L=self.w0(); Lp=k.label('pc')
            k('s_getpc_b64 s[52:53]'); k(f'{Lp}:'); k(f's_sub_u32 s52, s52, {Lp}-{NAME}'); k('s_subb_u32 s53, s53, 0'); srd(k,24,52,f'{NAME}_tab-{NAME}+17408')
            k('s_bfe_u32 s54, s2, 0x30003'); k('s_lshl_b32 s54, s54, 13'); k('v_lshlrev_b32 v240, 7, v1')
            k('buffer_load_dword a246, v240, s[24:27], s54 offen')
            self.end(L)
        LA=k.label('a'); LB=k.label('b'); LE=k.label('e')
        k('s_cmp_ge_u32 s2, 128'); k(f's_cbranch_scc1 {LA}')
        self.role_ln_a(); k(f's_branch {LE}')
        k(f'{LA}:'); k('s_cmp_ge_u32 s2, 248'); k(f's_cbranch_scc1 {LB}')
        self.role_mod_a()
        k(f'{LB}:')
        self.role_shuf_a()
        k(f'{LE}:')
        self.early()
        if c.hops:
            back=k.label('back'); main=k.label('main')
            k('s_mov_b64 exec, 0')
            for w in range(4):
                k(f's_cmp_eq_u32 s3, {w}'); y=Ins('s_nop 0'); y.meta=('hopstart',w); k.ins.append(y)
            k(f'{back}:'); k('s_mov_b64 exec, -1')
            k(f's_branch {main}'); k('.p2align 12'); k(f'{main}:')
            k.hops=(main,back,4)
        k('s_cmp_ge_u32 s2, 128'); k(f's_cbranch_scc1 {LM}')
        self.role_ln(); k(f's_branch {LJ}')
        k(f'{LN_}:'); self.w_issue(c.iss_early); self.pf('ld'); self.w_issue(c.iss_ld); k(f's_branch {LS}')
        k(f'{LM}:'); k('s_cmp_ge_u32 s2, 248'); k(f's_cbranch_scc1 {LN_}')
        self.role_mod()
        k(f'{LS}:')
        self.role_shuf()
        k(f'{LJ}:')
        self.stamp(3)
        self.pf('role')
        k('s_mul_i32 s14, s14, 0x9E3779B1'); k('s_add_u32 s14, s14, 0x7F4A7C15')
        k('s_getreg_b32 s52, hwreg(HW_REG_XCC_ID, 0, 4)'); k('s_add_u32 s52, s52, 1'); k('s_xor_b32 s59, s14, s52')
        L=self.w0()
        k('s_lshl_b32 s52, s12, 7'); k('s_lshl_b32 s53, s13, 2'); k('s_add_u32 s52, s52, s53'); k(f's_add_u32 s52, s52, {WS_FLG+FL_XC}')
        k('v_mov_b32 v240, s59'); k('v_mov_b32 v241, 0'); k('s_mov_b64 exec, 1')
        self.drain.append(k('buffer_store_dword v240, v241, s[16:19], s52 offen sc1'))
        k('s_mov_b64 exec, -1')
        self.end(L)
        self.w_issue(c.iss_role, self.drain+self.tabt+[t for st in c.tr_b2 for t in self.wt[st]])
        k('s_barrier')
        L=self.w0()
        k('v_lshlrev_b32 v241, 10, v2'); k('v_mov_b32 v240, s14'); k('s_lshl_b32 s52, s2, 2'); k(f's_add_u32 s52, s52, {WS_FLG+FL_GF}')
        k('s_mov_b64 exec, 0xffff'); k('buffer_store_dword v240, v241, s[16:19], s52 offen sc1'); k('s_mov_b64 exec, -1')
        self.end(L)
        self.stamp(4)
        self.pf('b2')
        self.p2_pre()
        self.p2a()
        self.p2b()
        self.p3()
        self.p4()
        if c.pacewb: k('s_waitcnt vmcnt(0)'); k('buffer_wbl2 sc1'); k('s_waitcnt vmcnt(0)')
        if c.pace:
            Lq=k.label('pace'); k(f'{Lq}:'); k('s_memrealtime s[98:99]'); k('s_waitcnt lgkmcnt(0)'); k('s_sub_u32 s98, s98, s96'); k('s_sub_u32 s98, s98, s95'); k(f's_cmp_lt_i32 s98, {c.pace}'); k(f's_cbranch_scc1 {Lq}')
        if c.prof: k('s_waitcnt vmcnt(0)')
        self.stamp(31); self.stamp_flush()
        k(f'{END}:'); k('s_endpgm')
        return k
    A2=20; BF=52; ACC=100; CAV=124; FA=136; TW=152; G4=176; XV=212; T=232
    def p2_pre(self):
        k=self.k; c=self.c; T=self.T; A2=self.A2
        srd(k,20,4,S*D*2)
        k('s_lshl_b32 s68, s12, 8'); k(f's_add_u32 s68, s68, {WS_FLG+FL_GRP}')
        k('s_lshl_b32 s69, s13, 7'); k('s_add_u32 s52, s69, s12'); k('s_sub_u32 s53, s69, 1008'); k('s_cmp_lt_u32 s13, 8'); k('s_cselect_b32 s53, s69, s53')
        k('s_cmp_eq_u32 s12, 0'); k('s_cselect_b32 s69, s53, s52')
        k('s_lshl_b32 s70, s3, 5'); k('s_add_u32 s70, s70, s69'); k('s_sub_u32 s71, 2048, s70'); k('s_cmp_eq_u32 s70, 0'); k('s_cselect_b32 s71, 1024, s71')
        k('s_mul_i32 s72, s3, 2560'); k(f's_add_u32 s72, s72, {L_XR}')
        self.misc=[]; self.sht=[]
        L=self.wn()
        k('s_sub_u32 s52, s3, 1')
        k(f'v_lshlrev_b32 v{T}, 2, v1')
        for u in range(3):
            L3=k.label('xr')
            k('s_mul_i32 s53, s52, 3'); k(f's_add_u32 s53, s53, {u}')
            if u==2: k('s_cmp_eq_u32 s53, 8'); k(f's_cbranch_scc1 {L3}')
            k('s_lshr_b32 s54, s53, 1'); k('s_lshl_b32 s54, s54, 5'); k('s_add_u32 s54, s54, s69')
            k('s_sub_u32 s55, 2048, s54'); k('s_cmp_eq_u32 s54, 0'); k('s_cselect_b32 s55, 1024, s55')
            k('s_bitcmp1_b32 s53, 0'); k('s_cselect_b32 s54, s55, s54'); k('s_mul_i32 s54, s54, 1280')
            k('s_mul_i32 s53, s53, 1280'); k(f's_add_u32 m0, s53, {L_XR}'); k('s_nop 0')
            self.misc.append(k(f'buffer_load_dwordx4 v18, s[20:23], s54 offen lds'))
            self.misc.append(k(f'buffer_load_dword v{T}, s[20:23], s54 offen offset:1024 lds'))
            k(f'{L3}:')
        if c.pretouch:
            k('s_lshl_b32 s53, s12, 4'); k('s_add_u32 s53, s53, s13'); k('s_mul_i32 s53, s53, 10240'); k('s_mul_i32 s54, s52, 5120'); k('s_add_u32 s53, s53, s54')
            k(f's_add_u32 s53, s53, {WS_Z}'); k('s_cmp_eq_u32 s3, 3'); k('s_cselect_b32 s53, s68, s53')
            k(f'v_min_u32 v{T}, 39, v1'); k(f'v_lshlrev_b32 v{T}, 7, v{T}'); k(f'v_and_b32 v{T+1}, 15, v1'); k(f'v_lshlrev_b32 v{T+1}, 11, v{T+1}'); k(f'v_bfe_u32 v{T+2}, v1, 0, 1'); k(f'v_mul_u32_u24 v{T+2}, {2048-128}, v{T+2}'); k(f'v_sub_u32 v{T+1}, v{T+1}, v{T+2}')
            k('s_cselect_b64 vcc, -1, 0'); k(f'v_cndmask_b32 v{T}, v{T}, v{T+1}, vcc')
            k(f'buffer_load_dword a246, v{T}, s[16:19], s53 offen')
            if c.alias2:
                k('s_mul_i32 s53, s52, 27'); k(f'v_min_u32 v{T}, 26, v1'); k(f'v_add_u32 v{T}, s53, v{T}'); k(f'v_min_u32 v{T}, 79, v{T}')
                k(f's_mov_b32 s53, {(2**32+9)//10}'); k(f'v_mul_hi_u32 v{T+1}, v{T}, s53'); k(f'v_mul_u32_u24 v{T+2}, 10, v{T+1}'); k(f'v_sub_u32 v{T}, v{T}, v{T+2}')
                k(f'v_lshrrev_b32 v{T+2}, 1, v{T+1}'); k(f'v_lshl_add_u32 v{T+2}, v{T+2}, 5, s69'); k(f'v_sub_u32 v{T+3}, 2048, v{T+2}')
                k(f'v_cmp_eq_u32 vcc, 0, v{T+2}'); k(f'v_mov_b32 v{T+4}, 1024'); k(f'v_cndmask_b32 v{T+3}, v{T+3}, v{T+4}, vcc')
                k(f'v_and_b32 v{T+1}, 1, v{T+1}'); k(f'v_cmp_eq_u32 vcc, 1, v{T+1}'); k(f'v_cndmask_b32 v{T+2}, v{T+2}, v{T+3}, vcc')
                k(f'v_mul_u32_u24 v{T+2}, 1280, v{T+2}'); k(f'v_lshl_add_u32 v{T}, v{T}, 7, v{T+2}')
                srd(k,24,46,S*D*2)
                k(f'buffer_load_dword a247, v{T}, s[24:27], 0 offen')
        self.end(L)
        self.w_issue(c.iss_b2)
        self.tw2=self.w_tr(c.tr_b2)
        FA=self.FA; TW=self.TW; G4=self.G4
        for u in range(2): k(f'ds_read_b128 v[{FA+4*u}:{FA+4*u+3}], v18 offset:{L_TAB+1024*u}')
        for u in range(6): k(f'ds_read_b128 v[{TW+4*u}:{TW+4*u+3}], v18 offset:{L_TAB+2048+1024*u}')
        for u in range(9): self.tw2=k(f'ds_read_b128 v[{G4+4*u}:{G4+4*u+3}], v18 offset:{L_TAB+8192+1024*u}')
        k('s_cmp_ge_u32 s3, 2'); k('s_cselect_b32 s52, -1008, 0'); k('s_cmp_eq_u32 s12, 0'); k('s_cselect_b32 s52, s52, s12')
        k('s_lshl_b32 s53, s3, 9'); k('s_add_u32 s73, s52, s53')
        k('s_cmp_eq_u32 s12, 0'); k('s_cselect_b32 s54, 1, 0'); k('s_lshr_b32 s55, s3, 1')
        k('s_and_b32 s52, s54, s55'); k('s_andn2_b32 s53, s54, s55')
        k(f'v_and_b32 v{T+1}, 1, v2'); k(f'v_cvt_f32_u32 v{T+1}, v{T+1}'); k(f'v_mul_f32 v{T+1}, 0x3e800000, v{T+1}')
        k('s_cmp_eq_u32 s12, 0'); k('s_cselect_b32 s54, 0, 0xbe800000'); k(f'v_add_f32 v{T+3}, s54, v{T+1}')
        k(f'v_mov_b32 v{T+6}, 0x3e800000')
        k(f'v_lshlrev_b32 v{T+4}, 2, v3'); k(f'v_cvt_f32_u32 v{T+4}, v{T+4}')
        k('s_cmp_lg_u32 s52, 0'); k('s_cselect_b64 s[62:63], -1, 0'); k('s_cmp_lg_u32 s53, 0'); k('s_cselect_b64 s[64:65], -1, 0')
        k(f'v_cndmask_b32 v{T+1}, v{T+1}, v{T+6}, s[62:63]'); k(f'v_cndmask_b32 v{T+3}, v{T+3}, v{T+6}, s[64:65]')
        for mt in range(2):
            k(f'v_lshrrev_b32 v{T}, 1, v2'); k(f'v_lshl_add_u32 v{T}, v{T}, 5, s73')
            if mt: k(f'v_add_u32 v{T}, 256, v{T}')
            k(f'v_cvt_f32_u32 v{T}, v{T}'); k(f'v_mul_f32 v{T}, 0x3a000000, v{T}')
            k(f'v_cndmask_b32 v{T+2}, v{T}, 0, s[64:65]'); k(f'v_cndmask_b32 v{T}, v{T}, 0, s[62:63]')
            k(f'v_mov_b32 v{T+5}, v{T+1}')
            if mt==0:
                k('s_cmp_eq_u32 s73, 0'); k('s_cselect_b32 s54, 1, 99'); k('v_cmp_eq_u32 vcc, s54, v2')
                k(f'v_cndmask_b32 v{T}, v{T}, 0.5, vcc'); k(f'v_cndmask_b32 v{T+5}, v{T+5}, 0, vcc')
            k(f'v_fma_f32 v{T+5}, v{T}, v{T+4}, v{T+5}'); k(f'v_fma_f32 v{T+7}, v{T+2}, v{T+4}, v{T+3}')
            for ks in range(4):
                for u in range(4):
                    cc=16*ks+u
                    k(f'v_fmamk_f32 v{T+8+2*u}, v{T}, {float(cc)}, v{T+5}'); k(f'v_fmamk_f32 v{T+9+2*u}, v{T+2}, {float(cc)}, v{T+7}')
                for u in range(8): k(f'v_cos_f32 v{T+8+u}, v{T+8+u}')
                for u in range(4): k(f'v_cvt_pk_bf16_f32 v{A2+16*mt+4*ks+u}, v{T+8+2*u}, v{T+9+2*u}')
        k('s_cmp_eq_u32 s70, 0'); k('s_cselect_b64 vcc, -1, 0'); k('s_cselect_b32 s52, 0xffff, -1')
        for u in range(8):
            k(f'v_xor_b32 v{FA+8+u}, 0x80000000, v{FA+u}'); k(f'v_lshlrev_b32 v{T+4}, 16, v{FA+u}')
            k(f'v_cndmask_b32 v{FA+8+u}, v{FA+8+u}, v{T+4}, vcc'); k(f'v_and_b32 v{FA+u}, s52, v{FA+u}')
        k(f's_mov_b32 s54, {(2**32+4)//5}')
        for m in range(5):
            k(f'v_add_u32 v{T}, {64*m}, v1'); k(f'v_mul_hi_u32 v{T+1}, v{T}, s54'); k(f'v_mul_u32_u24 v{T+2}, 5, v{T+1}'); k(f'v_sub_u32 v{T+2}, v{T}, v{T+2}')
            k(f'v_mul_u32_u24 v{T+1}, 1280, v{T+1}'); k(f'v_lshl_add_u32 v{self.ACC+m}, v{T+2}, 4, v{T+1}')
        k(f's_mov_b32 s54, {(2**32+9)//10}')
        k(f'v_mul_hi_u32 v{T+1}, v1, s54'); k(f'v_mul_u32_u24 v{T+2}, 10, v{T+1}'); k(f'v_sub_u32 v{T+2}, v1, v{T+2}')
        k(f'v_lshrrev_b32 v{T+3}, 1, v{T+1}'); k(f'v_and_b32 v{T+1}, 1, v{T+1}'); k(f'v_mul_u32_u24 v{T+3}, 2560, v{T+3}')
        k(f'v_lshl_add_u32 v{T+3}, v{T+1}, 14, v{T+3}'); k(f'v_lshl_add_u32 v{self.ACC+5}, v{T+2}, 4, v{T+3}')
        for u in range(20): k(f'v_mov_b32 v{self.XV+u}, 0')
        self.w_issue(c.iss_b2b); self.pf('pre')
    def p2a(self):
        k=self.k; c=self.c; T=self.T; A2=self.A2; BF=self.BF; ACC=self.ACC; CAV=self.CAV; FA=self.FA; TW=self.TW; G4=self.G4; XV=self.XV
        self.stamp(5)
        L=self.w0()
        k('s_lshl_b32 s53, s12, 10'); k(f's_add_u32 s53, s53, {WS_FLG+FL_GF}')
        self.poll(f'buffer_load_dwordx4 v[{T}:{T+3}], v18, s[16:19], s53 offen sc1',
                  [f'v_xor_b32 v{T}, s14, v{T}', f'v_xor_b32 v{T+1}, s14, v{T+1}', f'v_xor_b32 v{T+2}, s14, v{T+2}', f'v_xor_b32 v{T+3}, s14, v{T+3}',
                   f'v_or3_b32 v{T}, v{T}, v{T+1}, v{T+2}', f'v_or_b32 v{T}, v{T}, v{T+3}', f'v_cmp_ne_u32 vcc, 0, v{T}'])
        self.stamp(6)
        ut=[]
        k('s_mul_i32 s53, s12, 163840'); k('s_mul_i32 s54, s13, 80'); k('s_add_u32 s53, s53, s54')
        if WS_U: k(f's_add_u32 s53, s53, {WS_U}')
        k(f's_mov_b32 m0, {L_US}')
        for u in range(0 if c.usplit else 10):
            ut.append(k(f'buffer_load_dwordx4 v{ACC+u%5}, s[16:19], s53 offen sc1 lds'))
            k('s_add_u32 m0, m0, 1024')
            if u==4: k(f's_add_u32 s53, s53, {64*1280}')
        k(f's_mov_b32 m0, {L_CA}'); k('s_mul_i32 s53, s13, 160'); k(f's_add_u32 s53, s53, {WS_MOD}')
        k('s_mov_b32 exec_hi, 0xff')
        ut.append(k(f'buffer_load_dwordx4 v{ACC+5}, s[16:19], s53 offen sc1 lds'))
        k('s_mov_b32 exec_hi, -1')
        L2=k.label('n'); k('s_cmp_lg_u32 s2, 0'); k(f's_cbranch_scc1 {L2}')
        k(f'v_mov_b32 v{T+2}, s14'); k(f'v_mov_b32 v{T+3}, 0'); k(f's_mov_b32 s53, {WS_FLG}'); k('s_mov_b64 exec, 1')
        k(f'buffer_store_dword v{T+2}, v{T+3}, s[16:19], s53 offen sc1'); k('s_mov_b64 exec, -1')
        k(f'{L2}:')
        self.end(L)
        self.w_wait(c.tr_b3); k.wait(*self.misc); k.wait(self.tw2)
        self.stamp(27)
        k('s_barrier')
        self.stamp(28)
        if c.usplit:
            k('s_mul_i32 s53, s12, 163840'); k('s_mul_i32 s54, s13, 80'); k('s_add_u32 s53, s53, s54'); k(f's_mul_i32 s54, s3, {32*1280}'); k('s_add_u32 s53, s53, s54')
            if WS_U: k(f's_add_u32 s53, s53, {WS_U}')
            k('s_mul_i32 s54, s3, 2560'); k(f's_add_u32 m0, s54, {L_US}')
            for u in range(3):
                if u==2: k('s_mov_b32 exec_hi, 0')
                ut.append(k(f'buffer_load_dwordx4 v{ACC+u}, s[16:19], s53 offen sc1 lds'))
                if u<2: k('s_add_u32 m0, m0, 1024')
            k('s_mov_b32 exec_hi, -1')
        k('s_lshl_b32 s53, s12, 7'); k(f's_add_u32 s53, s53, {WS_FLG+FL_XC}'); k(f'v_lshlrev_b32 v{T}, 2, v2')
        k(f'buffer_load_dword v253, v{T}, s[16:19], s53 offen sc1')
        L=self.wn(); self.modt=[]
        if c.defer_sh:
            L4=k.label('sh'); k('s_cmp_lt_u32 s2, 128'); k(f's_cbranch_scc1 {L4}'); self.sht=self.shuf_store(); k(f'{L4}:')
        k('s_sub_u32 s52, s3, 1'); k('s_mul_i32 s52, s52, 5')
        for u in range(6):
            L3=k.label('m')
            if u==5: k('s_cmp_lg_u32 s3, 3'); k(f's_cbranch_scc1 {L3}')
            k(f's_add_u32 s53, s52, {u}'); k('s_lshl_b32 s54, s53, 10'); k(f's_add_u32 m0, s54, {L_MOD}')
            k('s_lshr_b32 s55, s53, 3'); k('s_lshl_b32 s55, s55, 13'); k('s_add_u32 s54, s54, s55'); k(f's_add_u32 s54, s54, {WS_MOD+8192}')
            self.modt.append(k('buffer_load_dwordx4 v18, s[16:19], s54 offen sc1 lds'))
            k(f'{L3}:')
        self.end(L)
        self.pf('b3'); self.w_issue(c.iss_b3)
        tw=self.w_tr(c.tr_b3)
        k(f'v_lshlrev_b32 v{T+4}, 1, v2'); k(f'v_lshl_add_u32 v250, v3, 8, v{T+4}'); k(f'v_lshl_add_u32 v251, v3, 6, v{T+4}')
        k('v_add_u32 v250, s72, v250'); k('v_add_u32 v251, s72, v251')
        for ab in range(2):
            for jj in range(8): k(f'ds_read_u16_d16_hi v{XV+10*ab+jj}, v250 offset:{1280*ab+32*jj}')
            for j in range(2): tw=k(f'ds_read_u16_d16_hi v{XV+10*ab+8+j}, v251 offset:{1280*ab+1024+32*j}')
        k(f'v_lshrrev_b32 v{T+4}, 2, v2'); k(f'v_lshl_add_u32 v{T+4}, v3, 3, v{T+4}'); k(f'v_mul_u32_u24 v{T+4}, 80, v{T+4}')
        k(f'v_and_b32 v{T+5}, 3, v2'); k(f'v_lshl_add_u32 v248, v{T+5}, 3, v{T+4}')
        k('s_mul_i32 s52, s3, 2560'); k(f'v_mul_u32_u24 v249, 320, v3'); k('v_lshl_add_u32 v249, v2, 2, v249'); k('v_add_u32 v249, s52, v249')
        k('v_lshlrev_b32 v246, 2, v2'); k(f'v_add_u32 v246, {L_CA}, v246')
        if c.usplit: k.wait(*ut)
        else: L=self.w0(); k.wait(*ut); self.end(L)
        k.wait(tw); self.w_wait(c.tr_b4)
        self.stamp(29)
        k('s_barrier')
        self.stamp(7)
        for ks in range(4):
            for nt in range(3):
                for hh in range(2):
                    o=BF+12*ks+4*nt+2*hh
                    k(f'ds_read_b64_tr_b16 v[{o}:{o+1}], v248 offset:{L_US+2560*ks+320*hh+2*D2B[nt]}')
            if ks==0:
                for nt in range(3):
                    k(f'ds_read2_b32 v[{CAV+2*nt}:{CAV+2*nt+1}], v246 offset0:{D2B[nt]} offset1:{40+D2B[nt]}')
                    k(f'ds_read2_b32 v[{CAV+6+2*nt}:{CAV+7+2*nt}], v246 offset0:{80+D2B[nt]} offset1:{120+D2B[nt]}')
        for ks in range(4):
            for mt in range(2):
                for nt in range(3):
                    d=f'v[{ACC+12*mt+4*nt}:{ACC+12*mt+4*nt+3}]'
                    k(f'v_mfma_f32_16x16x32_bf16 {d}, v[{A2+16*mt+4*ks}:{A2+16*mt+4*ks+3}], v[{BF+12*ks+4*nt}:{BF+12*ks+4*nt+3}], {d if ks else 0}')
            if ks==0:
                for nt in range(3):
                    k(f'v_add_f32 v{CAV+2*nt}, v{CAV+2*nt}, v{CAV+2*nt+1}'); k(f'v_add_f32 v{CAV+6+2*nt}, v{CAV+6+2*nt}, v{CAV+7+2*nt}')
                for nt in range(3): k(f'v_cvt_pk_bf16_f32 v{CAV+2*nt}, v{CAV+2*nt}, v{CAV+6+2*nt}')
            if ks==1:
                for nt in range(3):
                    k(f'v_and_b32 v{CAV+6+2*nt}, 0xffff0000, v{CAV+2*nt}'); k(f'v_lshlrev_b32 v{CAV+2*nt}, 16, v{CAV+2*nt}')
                for nt in range(3): k(f'v_add_f32 v{CAV+6+2*nt}, 1.0, v{CAV+6+2*nt}'); k(f'v_mul_f32 v{CAV+2*nt}, 0x45000000, v{CAV+2*nt}')
            if ks==2:
                for nt in range(3): k(f'v_cvt_pk_bf16_f32 v{CAV+6+2*nt}, v{CAV+6+2*nt}, v{CAV+6+2*nt}')
                for nt in range(3): k(f'v_and_b32 v{CAV+6+2*nt}, 0xffff0000, v{CAV+6+2*nt}')
                self.pf('b4'); self.w_issue(c.iss_b4)
            if ks==3: self.w_tr(c.tr_b4)
        for mt in range(2):
            for nt in range(3):
                for j in range(4): k(f'v_mul_f32 v{ACC+12*mt+4*nt+j}, v{ACC+12*mt+4*nt+j}, v{CAV+6+2*nt}')
        Ld=k.label('d')
        k('s_cmp_lg_u32 s73, 0'); k(f's_cbranch_scc1 {Ld}'); k('s_mov_b64 exec, 0xffff')
        for nt in range(3): k(f'v_add_f32 v{ACC+4*nt}, v{ACC+4*nt}, v{CAV+2*nt}')
        k('s_mov_b64 exec, -1'); k(f'{Ld}:')
        for mt in range(2):
            for nt in range(3):
                for rr in range(2):
                    a=ACC+12*mt+4*nt+2*rr
                    k(f'v_cvt_pk_bf16_f32 v{a}, v{a}, v{a+1}')
                    t=k(f'ds_write_b32 v249, v{a} offset:{L_ZS+1280*mt+160*rr+4*D2B[nt]}')
        self.pf('mid4'); self.w_issue(c.iss_mid4)
        k(f'v_cmp_ne_u32 vcc, s59, v253'); k('s_cmp_eq_u64 vcc, 0'); k(f's_cselect_b32 s15, {0 if c.force_slow else 1}, 0')
        self.stamp(30)
        k.wait(t); self.w_wait(c.tr_b5); k.wait(*self.sht)
        k('s_barrier')
        self.stamp(8)
        L=self.w0(); zt=[]
        for u in range(10): k(f'ds_read_b128 v[{BF+4*u}:{BF+4*u+3}], v18 offset:{L_ZS+1024*u}')
        k('s_lshl_b32 s53, s12, 4'); k('s_add_u32 s53, s53, s13'); k('s_mul_i32 s53, s53, 10240'); k(f's_add_u32 s53, s53, {WS_Z}')
        for u in range(10):
            if u%4==0 and u: k('s_add_u32 s53, s53, 4096')
            zt.append(k(f'buffer_store_dwordx4 v[{BF+4*u}:{BF+4*u+3}], v18, s[16:19], s53 offen offset:{1024*(u%4)}'))
        self.end(L)
        self.pf('b5'); self.w_issue(c.iss_b5)
        self.tw5=self.w_tr(c.tr_b5)
        k(f's_mov_b32 s54, {(2**32+39)//40}')
        for m in range(5):
            k(f'v_add_u32 v{T}, {64*m}, v1'); k(f'v_mul_hi_u32 v{T+1}, v{T}, s54'); k(f'v_mul_u32_u24 v{T+2}, 40, v{T+1}'); k(f'v_sub_u32 v{T+2}, v{T}, v{T+2}')
            k(f'v_mul_u32_u24 v{T+1}, 10240, v{T+1}'); k(f'v_lshl_add_u32 v{ACC+m}, v{T+2}, 4, v{T+1}')
        L=self.w0(); gt=[]
        k.wait(*zt)
        self.stamp(9)
        self.gpost(0); self.gpoll(0)
        self.stamp(10)
        k('s_mul_i32 s53, s12, 163840'); k('s_mul_i32 s54, s13, 640'); k('s_add_u32 s53, s53, s54'); k(f's_add_u32 s53, s53, {WS_Z}')
        k(f's_mov_b32 m0, {L_US}')
        for u in range(10):
            gt.append(k(f'buffer_load_dwordx4 v{ACC+u%5}, s[16:19], s53 offen sc1 lds'))
            k('s_add_u32 m0, m0, 1024')
            if u==4: k(f's_add_u32 s53, s53, {8*10240}')
        if c.defer_sh:
            k('v_lshlrev_b32 v253, 10, v2'); k('v_mov_b32 v252, s14'); k('s_lshl_b32 s52, s2, 2'); k(f's_add_u32 s52, s52, {WS_FLG+FL_GF2}')
            k('s_mov_b64 exec, 0xffff'); k('buffer_store_dword v252, v253, s[16:19], s52 offen sc1'); k('s_mov_b64 exec, -1')
        self.end(L)
        k.wait(self.trtok)
        k.wait(*self.modt); self.w_wait(c.tr_g)
        k('s_barrier'); self.w_issue(c.iss_g)
        self.tw5=self.w_tr(c.tr_g)
        GA,SB,CB=self.GA,self.SB,self.CB; M0=20; M1=52
        for p,base in ((0,M0),(1,M1)):
            for u in range(8): k(f'ds_read_b128 v[{base+4*u}:{base+4*u+3}], v18 offset:{L_MOD+8192*p+1024*u}')
        src=lambda v,u: (8*v+u) if u<8 else (24+4*(v>>1)+2*(v&1)+u-8)
        for v in range(3):
            for u in range(10): k(f'v_add_f32 v{M0+src(v,u)}, v{M0+src(v,u)}, v{M1+src(v,u)}')
        for v,dst in enumerate((GA,SB,CB)):
            for u in range(5): k(f'v_cvt_pk_bf16_f32 v{M1+5*v+u}, v{M0+src(v,2*u)}, v{M0+src(v,2*u+1)}')
            for u in range(5): k(f'v_lshlrev_b32 v{dst+2*u}, 16, v{M1+5*v+u}'); k(f'v_and_b32 v{dst+2*u+1}, 0xffff0000, v{M1+5*v+u}')
        for u in range(10): k(f'v_add_f32 v{CB+u}, 1.0, v{CB+u}')
        for u in range(5): k(f'v_cvt_pk_bf16_f32 v{M1+u}, v{CB+2*u}, v{CB+2*u+1}')
        for u in range(5): k(f'v_lshlrev_b32 v{CB+2*u}, 16, v{M1+u}'); k(f'v_and_b32 v{CB+2*u+1}, 0xffff0000, v{M1+u}')
        k('s_mul_i32 s52, s3, 160'); k(f's_add_u32 s52, s52, {L_US}'); k(f'v_mul_u32_u24 v248, 2560, v3'); k('v_lshl_add_u32 v248, v2, 2, v248'); k('v_add_u32 v248, s52, v248')
        k('v_add_u32 v249, 1280, v248')
        self.w_issue(c.iss_b5b)
        L=self.w0(); k.wait(*gt); self.end(L)
        if self.tw5: k.wait(self.tw5)
        k('s_barrier')
        self.stamp(11)
    GA=106; SB=116; CB=126
    def p2b(self):
        k=self.k; c=self.c; T=self.T; FA=self.FA; TW=self.TW; G4=self.G4; XV=self.XV; GA,SB,CB=self.GA,self.SB,self.CB
        ZF=20; VV=32; PB=80; Y=32
        for mt in range(3):
            for h in range(2): k(f'ds_read2_b32 v[{ZF+4*mt+2*h}:{ZF+4*mt+2*h+1}], v{248+h} offset0:{D2B[mt]} offset1:{160+D2B[mt]}')
        self.w_issue(c.iss_b6)
        for ab in range(2):
            for mt in range(3):
                for o in range(2):
                    d=VV+24*ab+8*mt+4*o
                    k(f'v_mfma_f32_16x16x32_bf16 v[{d}:{d+3}], v[{ZF+4*mt}:{ZF+4*mt+3}], v[{FA+8*ab+4*o}:{FA+8*ab+4*o+3}], 0')
        YY=[ZF, 32]
        for ab in range(2):
            for mt in range(3):
                re=VV+24*ab+8*mt; im=re+4; cc=TW+8*mt; s=cc+4
                for j in range(4): k(f'v_mul_f32 v{T+j}, v{re+j}, v{cc+j}'); k(f'v_mul_f32 v{T+4+j}, v{im+j}, v{cc+j}')
                for j in range(4): k(f'v_fmac_f32 v{T+j}, v{im+j}, v{s+j}'); k(f'v_fma_f32 v{T+4+j}, -v{re+j}, v{s+j}, v{T+4+j}')
                for j in range(4): k(f'v_cvt_pk_bf16_f32 v{PB+12*ab+4*mt+j}, v{T+j}, v{T+4+j}')
            for mt in range(3):
                for et in range(3):
                    d=f'v[{YY[ab]+4*et}:{YY[ab]+4*et+3}]'
                    k(f'v_mfma_f32_16x16x32_bf16 {d}, v[{G4+12*et+4*mt}:{G4+12*et+4*mt+3}], v[{PB+12*ab+4*mt}:{PB+12*ab+4*mt+3}], {d if mt else 0}')
        self.stamp(12)
        if c.defer_sh:
            L=self.w0(); k('s_lshl_b32 s87, s12, 10'); k(f's_add_u32 s87, s87, {WS_FLG+FL_GF2+512}'); k('v_lshlrev_b32 v253, 3, v1')
            k('buffer_load_dwordx2 v[246:247], v253, s[16:19], s87 offen sc1'); self.end(L)
        self.w_issue(c.iss_stb)
        k('s_lshl_b32 s74, s3, 1')
        k(f'v_and_b32 v{T+8}, 7, v1'); k(f'v_xor_b32 v{T+8}, s74, v{T+8}'); k(f'v_lshlrev_b32 v{T+8}, 4, v{T+8}'); k(f'v_lshl_add_u32 v{T+8}, v1, 7, v{T+8}')
        k(f'v_xor_b32 v{T+9}, 16, v{T+8}')
        k(f'v_bfe_u32 v{T+10}, v1, 2, 3'); k(f'v_xor_b32 v{T+10}, s74, v{T+10}'); k(f'v_lshlrev_b32 v{T+10}, 4, v{T+10}')
        k(f'v_lshrrev_b32 v{T+11}, 2, v1'); k(f'v_lshl_add_u32 v{T+10}, v{T+11}, 7, v{T+10}'); k(f'v_and_b32 v{T+11}, 3, v1'); k(f'v_lshl_add_u32 v{T+10}, v{T+11}, 2, v{T+10}')
        k(f'v_xor_b32 v{T+11}, 16, v{T+10}')
        for ab in range(2):
            for u in range(10): k(f'v_fmac_f32 v{XV+10*ab+u}, v{GA+u}, v{YY[ab]+u}')
        for ab in range(2):
            k(f'v_add_f32 v{T+2*ab}, v{XV+10*ab}, v{XV+10*ab+1}'); k(f'v_mul_f32 v{T+2*ab+1}, v{XV+10*ab}, v{XV+10*ab}')
        for ab in range(2): k(f'v_fmac_f32 v{T+2*ab+1}, v{XV+10*ab+1}, v{XV+10*ab+1}')
        for u in range(2,10):
            for ab in range(2):
                k(f'v_add_f32 v{T+2*ab}, v{T+2*ab}, v{XV+10*ab+u}'); k(f'v_fmac_f32 v{T+2*ab+1}, v{XV+10*ab+u}, v{XV+10*ab+u}')
        k(f'v_permlane16_swap_b32 v{T}, v{T+1}'); k(f'v_permlane16_swap_b32 v{T+2}, v{T+3}')
        k(f'v_add_f32 v{T}, v{T}, v{T+1}'); k(f'v_add_f32 v{T+2}, v{T+2}, v{T+3}')
        k(f'v_permlane32_swap_b32 v{T}, v{T+2}'); k(f'v_add_f32 v{T}, v{T}, v{T+2}')
        for sh in (8,4,2,1): k(f'v_add_f32_dpp v{T}, v{T}, v{T} row_ror:{sh} row_mask:0xf bank_mask:0xf')
        k(f'v_mul_f32 v{T}, 0x3acccccd, v{T}')
        for u in range(4): k(f'v_readlane_b32 s{52+u}, v{T}, {16*u}')
        for ab in range(2): k(f'v_mov_b32 v{T+2+ab}, s{53+2*ab}'); k(f'v_mov_b32 v{T+4+ab}, s{52+2*ab}')
        for ab in range(2): k(f'v_fma_f32 v{T+2+ab}, -v{T+4+ab}, v{T+4+ab}, v{T+2+ab}')
        for ab in range(2): k(f'v_max_f32 v{T+2+ab}, 0, v{T+2+ab}')
        for ab in range(2): k(f'v_add_f32 v{T+2+ab}, 0x3727c5ac, v{T+2+ab}')
        for ab in range(2): k(f'v_rsq_f32 v{T+2+ab}, v{T+2+ab}')
        for ab in range(2): k(f'v_mul_f32 v{T+4+ab}, -v{T+4+ab}, v{T+2+ab}')
        H=48
        for ab in range(2):
            for u in range(10): k(f'v_fma_f32 v{H+12*ab+u}, v{XV+10*ab+u}, v{T+2+ab}, v{T+4+ab}')
            for u in range(10): k(f'v_fma_f32 v{H+12*ab+u}, v{H+12*ab+u}, v{CB+u}, v{SB+u}')
            for u in range(5): k(f'v_cvt_pk_bf16_f32 v{PB+8*ab+u}, v{H+12*ab+2*u}, v{H+12*ab+2*u+1}')
            k(f'ds_write_b128 v{T+8+ab}, v[{PB+8*ab}:{PB+8*ab+3}] offset:{L_ZS}')
            t=k(f'ds_write_b32 v{T+10+ab}, v{PB+8*ab+4} offset:{L_ZS+8192}')
        k('s_lshr_b32 s53, s13, 1'); k('s_lshl_b32 s54, s12, 3'); k('s_add_u32 s53, s53, s54'); k('s_mul_i32 s53, s53, 20480')
        k('s_and_b32 s54, s13, 1'); k('s_lshl_b32 s54, s54, 7'); k('s_add_u32 s53, s53, s54'); k(f's_add_u32 s53, s53, {self.H2}')
        k(f'v_lshrrev_b32 v{T}, 3, v1'); k(f'v_xor_b32 v{T+1}, v{T}, v1'); k(f'v_and_b32 v{T+1}, 7, v{T+1}'); k(f'v_lshlrev_b32 v{T+1}, 4, v{T+1}')
        k(f'v_lshl_add_u32 v{T+1}, v{T}, 8, v{T+1}')
        k.wait(t); self.w_wait(c.tr_b7)
        k('s_barrier')
        self.stamp(13)
        L=self.w0(); ht=[]
        R=136
        for u in range(10): k(f'ds_read_b128 v[{R+4*u}:{R+4*u+3}], v18 offset:{L_ZS+1024*u}')
        for u in range(10):
            if u%2==0 and u: k('s_add_u32 s53, s53, 4096')
            ht.append(k(f'buffer_store_dwordx4 v[{R+4*u}:{R+4*u+3}], v{T+1}, s[16:19], s53 offen offset:{2048*(u%2)}'))
        self.end(L)
        self.w_issue(c.iss_b7)
        k(f'v_add_u32 v250, {L_X1-L_XR}, v250'); k(f'v_add_u32 v251, {L_X1-L_XR}, v251'); k(f's_add_u32 s72, s72, {L_X1-L_XR}')
        for ab in range(2):
            for u in range(5): k(f'v_cvt_pk_bf16_f32 v{20+8*ab+u}, v{XV+10*ab+2*u}, v{XV+10*ab+2*u+1}')
            for u in range(10):
                op='ds_write_b16_d16_hi' if u&1 else 'ds_write_b16'
                if u<8: t=k(f'{op} v250, v{20+8*ab+(u>>1)} offset:{1280*ab+32*u}')
                else: t=k(f'{op} v251, v{20+8*ab+(u>>1)} offset:{1280*ab+1024+32*(u-8)}')
        k(f'v_add_u32 v{T+2}, s72, v18'); k(f'v_lshlrev_b32 v107, 2, v1'); k(f'v_add_u32 v{T+3}, s72, v107')
        k.wait(t)
        X1R=96
        for ab in range(2):
            k(f'ds_read_b128 v[{X1R+4*ab}:{X1R+4*ab+3}], v{T+2} offset:{1280*ab}'); tx=k(f'ds_read_b32 v{X1R+8+ab}, v{T+3} offset:{1280*ab+1024}')
        L=self.w0(); k.wait(*ht); self.stamp(14); self.gpost(1); self.end(L)
        tw=self.w_tr(c.tr_b7)
        self.p3_setup()
        L=self.w0()
        if c.defer_sh:
            Lo=k.label('ok'); chk=['v_xor_b32 v246, s14, v246', 'v_xor_b32 v247, s14, v247', 'v_or_b32 v246, v246, v247', 'v_cmp_ne_u32 vcc, 0, v246']
            for x in chk: k(x)
            k(f's_cbranch_vccz {Lo}'); k('v_lshlrev_b32 v253, 3, v1')
            self.poll('buffer_load_dwordx2 v[246:247], v253, s[16:19], s87 offen sc1', chk)
            k(f'{Lo}:')
        self.gpoll(1); self.end(L)
        k.wait(tx)
        if tw: k.wait(tw)
        k('s_barrier')
        self.stamp(15)
    HB=24; AC=56; EP=104; WDV=116
    def p3_setup(self, part=None):
        k=self.k; T=20
        if part!=0:
            k(f'v_and_b32 v{T}, 1, v3'); k(f'v_lshrrev_b32 v{T+1}, 1, v3')
            k(f'v_mul_u32_u24 v248, 49152, v{T}'); k(f'v_lshl_add_u32 v248, v{T+1}, 8, v248'); k('v_lshl_add_u32 v248, v2, 4, v248')
            k(f'v_mul_u32_u24 v249, 49152, v{T+1}'); k(f'v_lshl_add_u32 v249, v{T}, 3, v249'); k('v_lshl_add_u32 v249, v2, 4, v249')
            k(f'v_mov_b32 v250, 0x{f32(K1c):08x}'); k(f'v_mov_b32 v254, 0x{f32(K2c):08x}'); k(f'v_add_u32 v255, {L_H[1]}, v18')
        if part!=1:
            k('s_mul_i32 s75, s13, 3072'); k('s_mul_i32 s52, s3, 768'); k('s_add_u32 s75, s75, s52')
            k(f's_mul_i32 s66, s12, {8*49152}'); k('s_mul_i32 s67, s12, 163840')
            srd(k,20,46,S*D*2)
            k('s_mul_i32 s76, s12, 163840'); k('s_mul_i32 s77, s3, 10240'); k('s_add_u32 s76, s76, s77'); k(f's_add_u32 s76, s76, {self.H2}')
            k('s_lshl_b32 s78, s12, 7'); k('s_lshl_b32 s52, s13, 3'); k('s_add_u32 s78, s78, s52'); k('s_add_u32 s78, s78, s74'); k('s_mul_i32 s78, s78, 1280'); k(f's_add_u32 s78, s78, {self.X1}')
            k('s_and_b32 s79, s13, 7'); k('s_mul_i32 s80, s79, 48'); k('s_mul_i32 s52, s3, 12'); k('s_add_u32 s80, s80, s52'); k('s_mul_i32 s80, s80, 5120'); k(f's_add_u32 s88, s80, {WS_WDS}')
    def gfl(self,c): return '' if (c==0 and self.a3()) else self.c.gfl[c]
    def zo(self): return self.c.zout and not self.c.noalias
    def a3(self): return not self.c.zout and self.c.galias and self.c.alias3 and self.c.alias2 and not self.c.noalias
    def w4_setup(self):
        k=self.k; T=232
        k('s_cmp_lt_u32 s3, 2'); k('s_cselect_b32 s28, s36, s38'); k('s_cselect_b32 s29, s37, s39'); k('s_and_b32 s29, s29, 0xffff')
        k(f's_mov_b32 s53, {(2**32+11)//12}'); k('s_and_b32 s52, s3, 1'); k('s_mul_i32 s52, s52, 192'); k('s_mul_i32 s56, s3, 3072'); k(f's_add_u32 s56, s56, {L_RING}')
        for m in range(3):
            k(f'v_add_u32 v{T}, s52, v1')
            if m: k(f'v_add_u32 v{T}, {64*m}, v{T}')
            k(f'v_mul_hi_u32 v{T+1}, v{T}, s53'); k(f'v_mul_u32_u24 v{T+2}, 12, v{T+1}'); k(f'v_sub_u32 v{T+2}, v{T}, v{T+2}')
            k(f'v_lshrrev_b32 v{T+3}, 3, v{T+1}'); k(f'v_bfe_u32 v{T+4}, v{T+1}, 1, 2'); k(f'v_lshl_add_u32 v{T+3}, v{T+3}, 2, v{T+4}'); k(f'v_and_b32 v{T+4}, 1, v{T+1}')
            k(f'v_lshl_add_u32 v{T+3}, v{T+4}, 4, v{T+3}'); k(f'v_mul_u32_u24 v{T+3}, 3072, v{T+3}'); k(f'v_lshl_add_u32 v{4+m}, v{T+2}, 4, v{T+3}')
    def w4_items(self):
        k=self.k; out=[]
        for st in self.c.w4:
            for ks in (st,):
                assert ks>=16
                for m in range(3):
                    pre=[f's_add_u32 m0, s56, {self.c.slot[st]*12288+1024*m}']
                    if m==0: pre.insert(0,f's_add_u32 s58, s57, {(512+32*(ks-16))*3072}')
                    out.append((pre, lambda m=m,st=st: self.wt.setdefault(st,[]).append(k(f'buffer_load_dwordx4 v{4+m}, s[28:31], s58 offen lds'))))
        return out
    def gf2_check(self): pass
    def gf2_issue(self): pass
    def gbase(self, cidx):
        if not self.c.galias: return ('s66', WS_G+2*cidx*49152)
        if self.zo(): return ('s67', self.H2+(0 if self.c.gfl[2] else 98304*(cidx-2))) if self.c.gfl[cidx]=='' else ('s66', WS_G+2*cidx*49152)
        if self.c.alias2 and not self.c.noalias and self.c.alias3 and cidx!=1: return ('s67', {0:WS_Z,2:self.H2,3:self.H2+98304}[cidx])
        if self.c.alias2 and not self.c.noalias and cidx>=2: return ('s67', self.H2 if cidx==2 else WS_Z)
        return ('s66', WS_G+2*cidx*49152)
    def h2_dma(self, cidx, toks):
        k=self.k; out=[]
        def first(): k(f's_add_u32 s81, s76, {cidx*40960}'); k(f's_add_u32 m0, s77, {L_H[cidx&1]}')
        out.append(first)
        for u in range(10):
            if u%4==0 and u: out.append(lambda: (k('s_add_u32 s81, s81, 4096'), k('s_add_u32 m0, m0, 4096')))
            out.append(lambda u=u: toks.append(k(f'buffer_load_dwordx4 v18, s[16:19], s81 offen offset:{1024*(u%4)} sc1 lds')))
        return out
    def wd_dst(self,u):
        return f'v[{self.WDV+4*u}:{self.WDV+4*u+3}]' if u<self.NL0 else f'a[{4*(u-self.NL0)}:{4*(u-self.NL0)+3}]'
    NL0=33; L_WD=81920
    @property
    def NL1(self): return self.c.nl1
    def wd_loads(self, us):
        k=self.k; out=[]; prev=None
        for u in us:
            pre=[]
            if u//4!=prev: pre.append(f's_add_u32 s80, s88, {4096*(u//4)}')
            if self.NL0<=u<self.NL1:
                pre.insert(0,f's_add_u32 m0, s85, {(u-self.NL0-(u%4))*1024}')
                out.append((pre, lambda u=u: self.wdl.append(k(f'buffer_load_dwordx4 v18, s[16:19], s80 offen offset:{1024*(u%4)} sc1 lds'))))
            else: out.append((pre, f'buffer_load_dwordx4 {self.wd_dst(u)}, v18, s[16:19], s80 offen offset:{1024*(u%4)} sc1'))
            prev=u//4
        return out
    def h2_dma2(self, cidx, toks):
        k=self.k; out=[]
        for u in range(10):
            pre=[]
            if u%4==0: pre=[f's_add_u32 m0, s77, {L_H[cidx&1]+4096*(u//4)}', f's_add_u32 s81, s76, {cidx*40960+4096*(u//4)}']
            out.append((pre, lambda u=u: toks.append(k(f'buffer_load_dwordx4 v18, s[16:19], s81 offen offset:{1024*(u%4)} sc1 lds'))))
        return out
    def epi(self, cidx):
        A=self.AC+24*(cidx&1); EP=self.EP; L=[]; k=self.k; fl=self.gfl(cidx) or self.c.gnt
        acc=lambda nt,T,j: A+12*nt+4*T+j
        for j in range(4): L.append(f'v_permlane32_swap_b32 v{acc(0,2,j)}, v{acc(1,2,j)}')
        groups=[[(acc(0,0,j),acc(0,1,j)) for j in range(4)],[(acc(1,0,j),acc(1,1,j)) for j in range(4)],[(acc(0,2,j),acc(1,2,j)) for j in range(4)]]
        for gi,gr in enumerate(groups):
            t=EP
            if self.c.pk or (self.c.pk3 and cidx==3):
                g0,u0=gr[0]; P=lambda r,j: f'v[{r+2*j}:{r+2*j+1}]'
                for j in range(2): L.append(f'v_pk_mul_f32 {P(t,j)}, {P(g0,j)}, {P(g0,j)}')
                for j in range(2): L.append(f'v_pk_fma_f32 {P(t,j)}, {P(t,j)}, v[254:255], v[250:251] op_sel_hi:[1,0,0]')
                for j in range(2): L.append(f'v_pk_mul_f32 {P(t,j)}, {P(t,j)}, {P(g0,j)}')
                for j in range(4): L.append(f'v_exp_f32 v{t+j}, v{t+j}')
                for j in range(2): L.append(f'v_pk_mul_f32 {P(g0,j)}, {P(g0,j)}, {P(u0,j)}')
                for j in range(2): L.append(f'v_pk_add_f32 {P(t,j)}, {P(t,j)}, 1.0 op_sel_hi:[1,0]')
                for j in range(4): L.append(f'v_rcp_f32 v{t+j}, v{t+j}')
                for j in range(2): L.append(f'v_pk_mul_f32 {P(g0,j)}, {P(g0,j)}, {P(t,j)}')
            else:
                for j,(g,u) in enumerate(gr): L.append(f'v_mul_f32 v{t+j}, v{g}, v{g}')
                for j,(g,u) in enumerate(gr): L.append(f'v_fma_f32 v{t+j}, v{t+j}, v254, v250')
                for j,(g,u) in enumerate(gr): L.append(f'v_mul_f32 v{t+j}, v{t+j}, v{g}')
                for j,(g,u) in enumerate(gr): L.append(f'v_exp_f32 v{t+j}, v{t+j}')
                for j,(g,u) in enumerate(gr): L.append(f'v_mul_f32 v{g}, v{g}, v{u}')
                for j,(g,u) in enumerate(gr): L.append(f'v_add_f32 v{t+j}, 1.0, v{t+j}')
                for j,(g,u) in enumerate(gr): L.append(f'v_rcp_f32 v{t+j}, v{t+j}')
                for j,(g,u) in enumerate(gr): L.append(f'v_mul_f32 v{g}, v{g}, v{t+j}')
            o=EP+4+2*gi
            L.append(f'v_cvt_pk_bf16_f32 v{o}, v{gr[0][0]}, v{gr[1][0]}'); L.append(f'v_cvt_pk_bf16_f32 v{o+1}, v{gr[2][0]}, v{gr[3][0]}')
            if gi==1:
                L.append(f's_add_u32 s82, s75, {self.gbase(cidx)[0]}'); L.append(f's_add_u32 s82, s82, {self.gbase(cidx)[1]}')
                L.append(f'v_permlane16_swap_b32 v{EP+4}, v{EP+6}'); L.append(f'v_permlane16_swap_b32 v{EP+5}, v{EP+7}')
                L.append(lambda: self.gst[cidx].append(k(f'buffer_store_dwordx4 v[{EP+4}:{EP+7}], v248, s[16:19], s82 offen {fl}')))
        L.append(lambda: self.gst[cidx].append(k(f'buffer_store_dwordx2 v[{EP+8}:{EP+9}], v249, s[16:19], s82 offen offset:512 {fl}')))
        return L
    def cost(self,x): return 2 if isinstance(x,str) and x.startswith(('v_exp','v_rcp','ds_read_b128')) else (self.c.pkcost if isinstance(x,str) and x.startswith('v_pk') else 1)
    def do(self,x): return None if isinstance(x,int) else (x() if callable(x) else self.k(x))
    def fill(self, side, slots, now=0):
        while side and slots>=self.cost(side[0]) and now>=self.until:
            x=side.pop(0)
            if isinstance(x,int): self.until=now+x; continue
            slots-=self.cost(x); self.do(x)
        return slots
    until=0
    def vm_step(self, vm, slots, now, gap):
        if not vm or slots<=0: return slots
        e=vm[0]
        if len(e)>2 and now<e[2]-len(e[0]): return slots
        if e[0]:
            self.do(e[0].pop(0)); return slots-1
        if now-self.lastvm<gap or (len(e)>2 and now<e[2]): return slots
        self.do(e[1]); vm.pop(0); self.lastvm=now
        return slots-1
    GFa=108
    def gdst(self,s,kl):
        o=self.GFa+((s%3)*12+kl)*4; return f'a[{o}:{o+3}]'
    def g_loads(self,s):
        out=[]
        for kl in range(12):
            pre=[f's_add_u32 s{60+s}, s{60+s}, 4096'] if kl%4==0 and kl else []
            out.append((pre, f'buffer_load_dwordx4 {self.gdst(s,kl)}, v18, s[16:19], s{60+s} offen offset:{1024*(kl%4)} sc1'))
        return out
    def p3(self):
        k=self.k; c=self.c; self.gst={i:[] for i in range(4)}; self.wdl=[]
        ht={i:[] for i in range(4)}
        if c.c0split:
            n1=c.c0n; hta=[]
            k('s_lshr_b32 s52, s3, 1'); k('s_mul_i32 s52, s52, 20480'); k('s_and_b32 s53, s3, 1'); k('s_sub_u32 s54, s76, s77'); k('s_add_u32 s54, s54, s52')
            for h,(n,base) in enumerate(((n1,0),(10-n1,2*n1))):
                k(f's_mul_i32 s55, s53, {1024*n}'); k(f's_add_u32 s55, s55, {1024*base}'); k('s_add_u32 s81, s54, s55'); k('s_add_u32 m0, s52, s55')
                for u in range(n):
                    if u%4==0 and u: k('s_add_u32 s81, s81, 4096'); k('s_add_u32 m0, m0, 4096')
                    t=k(f'buffer_load_dwordx4 v18, s[16:19], s81 offen offset:{1024*(u%4)} sc1 lds'); (ht[0] if h==0 else hta).append(t)
        else:
          for pre,op in self.h2_dma2(0,ht[0]):
            for x in pre: k(x)
            op()
        X1R=96; x1items=[]
        if c.x1late:
            for ab in range(2):
                x1items.append(([f's_mul_i32 s65, s{70+ab}, 1280'], lambda ab=ab: self.gst[0].append(k(f'buffer_store_dwordx4 v[{X1R+4*ab}:{X1R+4*ab+3}], v18, s[20:23], s65 offen {c.x1fl}'))))
                x1items.append(([], lambda ab=ab: self.gst[0].append(k(f'buffer_store_dword v{X1R+8+ab}, v107, s[20:23], s65 offen offset:1024 {c.x1fl}'))))
        for ab in range(0 if c.x1late else 2):
            if c.alias2:
                k(f's_mul_i32 s52, s{70+ab}, 1280')
                self.gst[0].append(k(f'buffer_store_dwordx4 v[{X1R+4*ab}:{X1R+4*ab+3}], v18, s[20:23], s52 offen {c.x1fl}'))
                self.gst[0].append(k(f'buffer_store_dword v{X1R+8+ab}, v107, s[20:23], s52 offen offset:1024 {c.x1fl}'))
            if c.noalias or not c.alias2:
                self.gst[0].append(k(f'buffer_store_dwordx4 v[{X1R+4*ab}:{X1R+4*ab+3}], v18, s[16:19], s78 offen offset:{1280*ab} {c.x1fl}'))
                self.gst[0].append(k(f'buffer_store_dword v{X1R+8+ab}, v107, s[16:19], s78 offen offset:{1280*ab+1024} {c.x1fl}'))
        if c.pretouch and not (c.alias2 and c.galias):
            c0=min(i for i in range(4) if c.gfl[i]=='' ); nl=12*(4-c0)
            k(f's_mov_b32 s52, {(2**32+5)//6}'); k(f'v_min_u32 v20, {nl-1}, v1'); k('v_mul_hi_u32 v21, v20, s52')
            k(f'v_mul_u32_u24 v21, {49152-768}, v21'); k('v_lshl_add_u32 v21, v20, 7, v21'); k('s_add_u32 s52, s75, s66'); k(f's_add_u32 s52, s52, {WS_G+2*c0*49152}')
            k('buffer_load_dword a246, v21, s[16:19], s52 offen')
        self.w_issue(c.iss_b9)
        k('v_lshrrev_b32 v20, 2, v1'); k('v_min_u32 v20, 9, v20'); k('s_mul_i32 s53, s79, 320'); k('v_lshl_add_u32 v20, v20, 5, s53')
        for p in range(2):
            k(f's_mov_b32 s52, {WS_MOD+5120+MODP*p}')
            for h in range(2): k(f'buffer_load_dwordx4 v[{80+8*p+4*h}:{83+8*p+4*h}], v20, s[16:19], s52 offen offset:{16*h} sc1')
        if c.otouch=='c0':
            k('s_mul_i32 s52, s70, 1280'); k('s_mul_i32 s53, s71, 1280'); k('s_sub_u32 s53, s53, 1280')
            k('v_min_u32 v21, 19, v1'); k('v_cmp_gt_u32 vcc, 10, v21'); k('v_mov_b32 v22, s53'); k('v_mov_b32 v23, s52'); k('v_cndmask_b32 v22, v22, v23, vcc')
            k('v_lshl_add_u32 v21, v21, 7, v22'); k('buffer_load_dword a246, v21, s[20:23], 0 offen sc1')
        n0=len(k.ins); self.p3_setup(part=1); self.p4_setup()
        rec=[x.text for x in k.ins[n0:]]; del k.ins[n0:]
        p4s=[]; i=0
        touch=lambda t: any(f'v{r},' in t+',' for r in range(12,18))
        while i<len(rec):
            if rec[i].startswith('s_cmp'): p4s.append(lambda a=rec[i],b=rec[i+1]: (k(a),k(b))); i+=2
            else: p4s.append(rec[i]); i+=1
        cut=min(j for j,x in enumerate(p4s) if isinstance(x,str) and touch(x))
        p4a,p4b=p4s[:cut],p4s[cut:]
        gbc=[f'v_add_f32 v{80+u}, v{80+u}, v{88+u}' for u in range(8)]+[f'v_cvt_pk_bf16_f32 v{80+u}, v{80+2*u}, v{81+2*u}' for u in range(4)]
        gbc+=[f'v_accvgpr_write_b32 a{252+u}, v{80+u}' for u in range(4)]
        if c.wdlate:
            wd=self.wd_loads(list(range(0,c.per[0]))+list(range(self.NL0,self.NL1))+list(range(c.per[0],self.NL0))+list(range(self.NL1,60-c.nlate))); self.wdx=self.wd_loads(range(60-c.nlate,60))
        else: wd=self.wd_loads(range(60)); self.wdx=[]
        per=c.per
        rt={}
        def rd(g,nt):
            cj,ks=divmod(g,20); o=self.HB+8*(g%4)+4*nt
            return k(f'ds_read_b128 v[{o}:{o+3}], v{255 if cj&1 else 18} offset:{20480*nt+1024*ks}')
        for ci in range(4):
            if ci==0 or not c.cont:
                k.wait(*ht[ci])
                if ci==0: self.w_wait(c.tr_c0)
                k('s_barrier')
                rd(20*ci,0); rt[20*ci]=rd(20*ci+1,0); rd(20*ci,1); rt[20*ci+1]=rd(20*ci+1,1)
            self.stamp(16+ci)
            side=[]; vm=[]; ev=EV()
            if ci==0:
                if c.tr_c0b:
                    side+=self.w_tr_list(c.tr_c0)
                    side+=p4a+gbc
                    ev[c.c0bar]=lambda side=side: (k.wait(*[t for st in c.tr_c0b for t in self.wt[st]]), k('s_barrier'), side.__setitem__(slice(0,0),self.w_tr_list(c.tr_c0b)), side.extend(p4b))
                else:
                    side+=self.w_tr_list(c.tr_c0)
                    side+=p4s+gbc
            if ci>0: side+=self.epi(ci-1)
            if ci<3:
                h=self.h2_dma2(ci+1,ht[ci+1]); w=[wd.pop(0) for _ in range(per[ci])]
                vm=h+(x1items if ci==0 else [])+w; gap=c.gap012
                if ci==0 and c.w4: vm=self.w4_items()+vm; gap=3
            else:
                wl=[]; gl=[]
                for e in wd:
                    if 'a[' not in e[1]: wl.append(e); continue
                    idx=int(e[1].split('a[')[1].split(':')[0]); wl.append((e[0],e[1],12*((idx+3)//24+1)))
                for e in self.g_loads(0):
                    idx=int(e[1].split('a[')[1].split(':')[0]); gl.append((e[0],e[1],max(12*((idx+3)//24+1),c.chk0+1)))
                vm=wl[:c.nwd1]+gl+wl[c.nwd1:]
                gap=c.gap3
                ev[c.chk0-20]=lambda: self.apoll(2)
                ev[c.chk0]=lambda: self.acheck()
                ev[c.post1]=lambda: (k.wait(*self.gst[1]), self.wpost(3,c.gfl[1]==''))
                ev[c.poll1]=lambda: self.apoll(3)
                lds=[f'ds_read_b128 a[{4*u}:{4*u+3}], v15 offset:{1024*u}' for u in range(self.NL1-self.NL0)]
                ev[27]=lambda: k.wait(*self.wdl)
            if ci==0 and c.c0split: ev[12*(c.c0n-1)+1]=lambda: (k.wait(*hta), k('s_barrier'))
            if ci==2: ev[c.post0]=lambda: (k.wait(*self.gst[0]), self.wpost(2,True))
            self.lastvm=-99; self.until=0; nm=0
            A=self.AC+24*(ci&1)
            for kp in range(10):
                for m in range(12):
                    if 1:
                        nt=m//6; T=(m%6)//2; ks=2*kp+(m&1); g=20*ci+ks; g0=20*ci+2*kp
                        if m==0: k.wait(rt[g0] if (kp==0 and g0 in rt) else rt[g0+1])
                        if c.cont and ci<3 and kp==9 and m==1:
                            assert len(ht[ci+1])==10
                            k.wait(*ht[ci+1])
                            if ci==0:
                                assert not any(isinstance(x,str) and x.startswith('ds_read_b64_tr') for x in side)
                                k('s_waitcnt lgkmcnt(0)')
                            k('s_barrier')
                        d=f'v[{A+12*nt+4*T}:{A+12*nt+4*T+3}]'; a=(ks*3+T)*4; o=self.HB+8*(g%4)+4*nt
                        k(f'v_mfma_f32_16x16x32_bf16 {d}, a[{a}:{a+3}], v[{o}:{o+3}], {d if ks else 0}')
                        nm+=1; slots=2
                        if nm in ev: ev.pop(nm)(); slots=0
                        if (kp<9 or (c.cont and ci<3)) and m in c.rdp:
                            j=c.rdp.index(m); rt[g0+3]=rd(g0+2+(j&1), j>>1); slots-=1
                        if m==11 and (kp<9 or (c.cont and ci<3)): slots-=1
                        if ci==3 and nm>=28 and lds and m in (0,2,4,7,9) and int(lds[0].split('a[')[1].split(':')[0])+3<24*(nm//12): k(lds.pop(0)); slots-=1
                        slots=self.vm_step(vm,slots,nm,gap)
                        self.fill(side,slots,nm)
            assert not ev
            for x in side: self.do(x)
            while vm:
                e=vm.pop(0)
                for x in e[0]: self.do(x)
                self.do(e[1])
            if ci==3: assert not lds
        self.stamp(20)
    def p4_setup(self):
        k=self.k
        k('s_lshr_b32 s83, s13, 3')
        k('s_mul_i32 s52, s83, 49152'); k('s_mul_i32 s53, s3, 12288'); k('s_add_u32 s52, s52, s53')
        for s in range(4): k(f's_add_u32 s{60+s}, s52, {self.gbase(s)[0]}'); k(f's_add_u32 s{60+s}, s{60+s}, {self.gbase(s)[1]}')
        if self.a3(): k(f's_mul_i32 s52, s83, {WS_Z-self.H2-49152}'); k('s_add_u32 s63, s63, s52')
        k('s_mul_i32 s85, s3, 20480'); k(f's_add_u32 s85, s85, {self.L_WD}')
        k('s_lshl_b32 s86, s13, 4'); k('s_lshl_b32 s52, s3, 2'); k('s_add_u32 s86, s86, s52'); k('s_add_u32 s86, s86, s68')
        k('v_mov_b32 v252, s14'); k('v_mov_b32 v253, 0')
        k('v_and_b32 v20, 3, v1'); k('v_lshrrev_b32 v21, 2, v1'); k('v_min_u32 v21, 9, v21')
        k('s_lshl_b32 s52, s3, 2'); k('v_add_u32 v20, s52, v20')
        k('v_lshrrev_b32 v22, 2, v21'); k('v_mul_u32_u24 v22, 2560, v22'); k('v_and_b32 v23, 3, v21')
        k('v_cmp_le_u32 vcc, 8, v21'); k('v_lshlrev_b32 v9, 1, v23'); k('v_cndmask_b32 v23, v23, v9, vcc')
        k('v_mul_u32_u24 v23, 320, v23'); k('v_add_u32 v22, v22, v23'); k('v_lshl_add_u32 v9, v20, 4, v22')
        k('v_mov_b32 v22, 1280'); k('v_mov_b32 v23, 320'); k('v_cndmask_b32 v22, v22, v23, vcc'); k('v_add_u32 v10, v9, v22')
        k('s_mul_i32 s53, s79, 160'); k('v_lshl_add_u32 v21, v21, 4, s53')
        k('s_lshl_b32 s52, s83, 4'); k('v_add_u32 v20, s52, v20')
        k('v_mul_u32_u24 v11, 1280, v20'); k('v_add_u32 v11, v11, v21')
        k('v_lshrrev_b32 v22, 1, v20'); k('v_lshl_add_u32 v22, v22, 5, s12')
        k('v_and_b32 v20, 1, v20')
        k('s_cmp_eq_u32 s12, 0'); k('s_cselect_b32 s53, -1008, 0')
        for s in range(4):
            r=[12,13,16,17][s]
            if s: k('v_add_u32 v22, 512, v22')
            if s==2: k('v_add_u32 v22, s53, v22')
            k('v_sub_u32 v23, 2048, v22')
            if s==0: k('v_cmp_eq_u32 vcc, 0, v22'); k(f'v_mov_b32 v{r}, 1024'); k(f'v_cndmask_b32 v23, v23, v{r}, vcc')
            k('v_cmp_eq_u32 vcc, 1, v20'); k(f'v_cndmask_b32 v{r}, v22, v23, vcc')
            k(f'v_mul_u32_u24 v{r}, 1280, v{r}'); k(f'v_add_u32 v{r}, v{r}, v21')
        k('s_mul_i32 s84, s12, 163840'); k(f's_add_u32 s84, s84, {self.X1}')
        k('s_mul_i32 s64, s3, 6400'); k('v_add_u32 v15, s85, v18'); k('v_lshlrev_b32 v14, 2, v1')
    def fin(self, s, cb=None):
        R=64; X=248; GB=self.GBr; L=[]; buf=25600*(s&1); k=self.k
        if s==3: R=self.WDV
        for w in range(4):
            L.append(f'ds_read_b128 v[{R+8*w}:{R+8*w+3}], v9 offset:{buf+6400*w}'); L.append(f'ds_read_b128 v[{R+8*w+4}:{R+8*w+7}], v10 offset:{buf+6400*w}')
        XU=4 if s&1 else 20
        L.append(self.c.hold1)
        if s==3 and self.c.tailopt:
            P=lambda r,u: f'v[{r+2*u}:{r+2*u+1}]'
            for u in range(4): L.append(f'v_pk_add_f32 {P(R,u)}, {P(R,u)}, {P(R+8,u)}')
            for u in range(4): L.append(f'v_pk_add_f32 {P(R+16,u)}, {P(R+16,u)}, {P(R+24,u)}')
            for u in range(4): L.append(f'v_pk_add_f32 {P(R,u)}, {P(R,u)}, {P(R+16,u)}')
            for u in range(4): L.append(f'v_pk_fma_f32 {P(R,u)}, {P(R,u)}, {P(GB,u)}, {P(64,u)}')
            for u in range(4): L.append(f'v_cvt_pk_bf16_f32 v{R+u}, v{R+2*u}, v{R+2*u+1}')
            L.append(lambda: (k('s_mov_b32 exec_hi, 0xff'), k(f'buffer_store_dwordx4 v[{R}:{R+3}], v17, s[20:23], 0 offen {self.c.outfl}')))
            return L
        for u in range(8): L.append(f'v_add_f32 v{R+u}, v{R+u}, v{R+8+u}')
        for u in range(8): L.append(f'v_add_f32 v{R+16+u}, v{R+16+u}, v{R+24+u}')
        for u in range(4): L.append(f'v_lshlrev_b32 v{R+8+2*u}, 16, v{XU+u}'); L.append(f'v_and_b32 v{R+9+2*u}, 0xffff0000, v{XU+u}')
        if cb: L.append(cb)
        for u in range(8): L.append(f'v_add_f32 v{R+u}, v{R+u}, v{R+16+u}')
        for u in range(8): L.append(f'v_fmac_f32 v{R+8+u}, v{R+u}, v{GB+u}')
        for u in range(4): L.append(f'v_cvt_pk_bf16_f32 v{R+u}, v{R+8+2*u}, v{R+9+2*u}')
        r=[12,13,16,17][s]
        L.append(lambda: (k('s_mov_b32 exec_hi, 0xff'), k(f'buffer_store_dwordx4 v[{R}:{R+3}], v{r}, s[20:23], 0 offen {self.c.outfl}'), k('s_mov_b32 exec_hi, -1')))
        return L
    GBr=96
    def p4(self):
        k=self.k; c=self.c
        ACC=24; GB=self.GBr
        x1ld=(lambda s: ([], f'buffer_load_dwordx4 v[{4 if s&1 else 20}:{7 if s&1 else 23}], v{[12,13,16,17][s]}, s[20:23], 0 offen sc1')) if c.alias2 else lambda s: ([f's_add_u32 s65, s84, {32*s*1280}'], f'buffer_load_dwordx4 v[{4 if s&1 else 20}:{7 if s&1 else 23}], v11, s[16:19], s65 offen sc1')
        k('v_lshl_add_u32 v8, v3, 6, v18'); k('v_add_u32 v8, s64, v8')
        if self.a3():
            k(f's_mov_b32 s52, {WS_Z-self.H2-49152}'); k('v_and_b32 v20, 1, v3'); k('v_lshrrev_b32 v21, 1, v3'); k('v_mad_u32_u24 v248, v20, s52, v248'); k('v_mad_u32_u24 v249, v21, s52, v249')
        ep=self.epi(3); self.gtok={}
        def vmk(e,s,kl): return (e[0], lambda: self.gtok.__setitem__((s,kl), k(e[1])))+tuple(e[2:])
        for x in ep[:12]: self.do(x)
        self.stamp(27)
        self.acheck()
        self.stamp(28)
        vm=self.wdx+[vmk(e,1,i) for i,e in enumerate(self.g_loads(1))]+[x1ld(0)]
        for n,x in enumerate(ep[12:]):
            self.do(x)
            if n==c.post2n and not c.post2s: k.wait(*self.gst[2]); self.wpost(4,c.gfl[2]=='')
            if n%c.ep_sp==0 and vm:
                e=vm.pop(0)
                for y in e[0]: self.do(y)
                self.do(e[1])
        assert len(ep)-12>c.post2n
        self.stamp(29)
        carry=vm
        self.stamp(21)
        for s in range(4):
            A=ACC+20*(s&1); side=[]; vm=carry; carry=[]; ev=EV()
            if s==0:
                if c.post2s: ev[c.post2s]=lambda: (k.wait(*self.gst[2]), self.wpost(4,c.gfl[2]==''))
                ev[c.chk2-c.pd2]=lambda: self.apoll(4); ev[c.chk2]=lambda: self.acheck()
                vm+=[vmk(e+(c.chk2+1,),2,i) for i,e in enumerate(self.g_loads(2))]
                ev[c.post3]=lambda: (k.wait(*self.gst[3]), self.wpost(5,c.gfl[3]==''))
                side+=[f'v_accvgpr_read_b32 v{GB+2*u+1}, a{252+u}' for u in range(4)]+[x for u in range(4) for x in (f'v_lshlrev_b32 v{GB+2*u}, 16, v{GB+2*u+1}', f'v_and_b32 v{GB+2*u+1}, 0xffff0000, v{GB+2*u+1}')]
                vm.append(x1ld(1))
            else:
                B=ACC+20*((s-1)&1)
                wr=[f'ds_write_b128 v8, v[{B+4*mt}:{B+4*mt+3}] offset:{25600*((s-1)&1)+1280*mt}' for mt in range(5)]
            if s==1:
                ev[c.chk3-c.pd3]=lambda: self.apoll(5); ev[c.chk3]=lambda: self.acheck()
                vm+=[vmk(e+(c.chk3+1,),3,i) for i,e in enumerate(self.g_loads(3))]
            for wbp in [p for p in (c.wb4 or []) if p[0]==s]:
                def wbf():
                    Lw=k.label('wb'); k('s_and_b32 s52, s12, 1'); k('s_lshl_b32 s52, s52, 4'); k('s_add_u32 s52, s52, s13'); k('s_lshl_b32 s52, s52, 2'); k('s_add_u32 s52, s52, s3'); k(f's_cmp_lg_u32 s52, {c.wbwho}'); k(f's_cbranch_scc1 {Lw}')
                    k('buffer_wbl2 sc1'); k(f'{Lw}:')
                ev[wbp[1]]=wbf
            self.lastvm=-99; self.until=0; nm=0; stage=0
            order=[(kl,mt) for kl in range(12) for mt in range(5)]
            if c.p4pair: order=[(2*kp+j,mt) for kp in range(6) for mt in range(5) for j in range(2)]
            if s==3 and c.tailopt: order=order[:20]+[(kl,mt) for mt in range(5) for kl in range(4,12)]
            for kl,mt in order:
                if 1:
                    if mt==0 and kl%4==0 and (s,kl+3) in self.gtok: k.wait(self.gtok[(s,kl+3)])
                    d=f'v[{A+4*mt}:{A+4*mt+3}]'; u=kl*5+mt
                    k(f'v_mfma_f32_16x16x32_bf16 {d}, {self.wd_dst(u)}, {self.gdst(s,kl)}, {d if kl else 0}')
                    nm+=1; slots=2
                    if nm in (20,40): slots-=1
                    if nm in ev: ev.pop(nm)(); slots=0
                    if s>=1:
                        if wr and nm>=4 and nm%c.wsp==0: tw=k(wr.pop(0)); slots-=1; lastw=nm
                        if stage==0 and not side and not wr and nm>=lastw+c.hold2:
                            stage=1
                            k.wait(tw); k('s_barrier'); slots=0
                            if c.x1late: side+=self.fin(s-1, (lambda s=s,vm=vm: vm.insert(0,x1ld(s+1))) if s<3 else None)
                            else:
                                side+=self.fin(s-1)
                                if s<3: side.append(lambda s=s,vm=vm: vm.append(x1ld(s+1)))
                    if s==3 and c.tailopt and nm in (32,40,48,56):
                        m2=(nm-32)//8; k(f'ds_write_b128 v8, v[{A+4*m2}:{A+4*m2+3}] offset:{25600+1280*m2}'); slots-=1
                    slots=self.vm_step(vm,slots,nm,c.gap4)
                    self.fill(side,slots,nm)
            assert s==0 or stage==1
            assert not ev
            for x in side: self.do(x)
            if s<3: carry=[e[:2] for e in vm]; vm=[]
            while vm:
                e=vm.pop(0)
                for x in e[0]: self.do(x)
                self.do(e[1])
            self.stamp(23+s)
        B=ACC+20
        if c.tailopt:
            for u in range(4): k(f'v_lshlrev_b32 v{64+2*u}, 16, v{4+u}'); k(f'v_and_b32 v{65+2*u}, 0xffff0000, v{4+u}')
        for mt in range(4 if c.tailopt else 0,5): tw=k(f'ds_write_b128 v8, v[{B+4*mt}:{B+4*mt+3}] offset:{25600+1280*mt}')
        k.wait(tw); k('s_barrier')
        for x in self.fin(3): self.do(x)

def make(path, **kw):
    c=Cfg()
    for a,b in kw.items(): setattr(c,a,b)
    g=Gen(c); k=g.build()
    t,d=k.finish(table_text(NAME+'_tab'))
    hdr=open('header.txt').read()
    open(path,'w').write(hdr+'; @launch grid=(256,1,1) block=(256,1,1) lds=163840\n.amdgcn_target "amdgcn-amd-amdhsa--gfx950"\n'+t+d)
    print(path,k.stats)
if __name__=='__main__':
    make('f_dbg.s',prof=True,noalias=True); make('f_prof.s',prof=True); make('f.s')
```

```python
from gen_f import *
import gen_f

class Gen2(Gen):
    BF=20; ACC=68; CAV=92; FA=104; TW=120; G4=144; XV=180; UO=192; A2=200; T=232
    GA=200; SB=210; CB=220
    def pre0(self, mts, first=True):
        k=self.k; c=self.c; T=self.T; A2=self.A2; UO=self.UO
        if first: k(f's_add_u32 s60, s50, {WS_FLG}'); k('s_addc_u32 s61, s51, 0'); k('s_load_dword s14, s[60:61], 0')
        if not mts: return
        k('s_cmp_ge_u32 s3, 2'); k('s_cselect_b32 s52, -1008, 0'); k('s_cmp_eq_u32 s12, 0'); k('s_cselect_b32 s52, s52, s12')
        k('s_lshl_b32 s53, s3, 9'); k('s_add_u32 s73, s52, s53')
        k('s_cmp_eq_u32 s12, 0'); k('s_cselect_b32 s54, 1, 0'); k('s_lshr_b32 s55, s3, 1')
        k('s_and_b32 s52, s54, s55'); k('s_andn2_b32 s53, s54, s55')
        k(f'v_and_b32 v{T+1}, 1, v2'); k(f'v_cvt_f32_u32 v{T+1}, v{T+1}'); k(f'v_mul_f32 v{T+1}, 0x3e800000, v{T+1}')
        k('s_cmp_eq_u32 s12, 0'); k('s_cselect_b32 s54, 0, 0xbe800000'); k(f'v_add_f32 v{T+3}, s54, v{T+1}')
        k(f'v_mov_b32 v{T+6}, 0x3e800000')
        k(f'v_lshlrev_b32 v{T+4}, 2, v3'); k(f'v_cvt_f32_u32 v{T+4}, v{T+4}')
        k('s_cmp_lg_u32 s52, 0'); k('s_cselect_b64 s[68:69], -1, 0'); k('s_cmp_lg_u32 s53, 0'); k('s_cselect_b64 s[70:71], -1, 0')
        k(f'v_cndmask_b32 v{T+1}, v{T+1}, v{T+6}, s[68:69]'); k(f'v_cndmask_b32 v{T+3}, v{T+3}, v{T+6}, s[70:71]')
        for mt in mts:
            k(f'v_lshrrev_b32 v{T}, 1, v2'); k(f'v_lshl_add_u32 v{T}, v{T}, 5, s73')
            if mt: k(f'v_add_u32 v{T}, 256, v{T}')
            k(f'v_cvt_f32_u32 v{T}, v{T}'); k(f'v_mul_f32 v{T}, 0x3a000000, v{T}')
            k(f'v_cndmask_b32 v{T+2}, v{T}, 0, s[70:71]'); k(f'v_cndmask_b32 v{T}, v{T}, 0, s[68:69]')
            k(f'v_mov_b32 v{T+5}, v{T+1}')
            if mt==0:
                k('s_cmp_eq_u32 s73, 0'); k('s_cselect_b32 s54, 1, 99'); k('v_cmp_eq_u32 vcc, s54, v2')
                k(f'v_cndmask_b32 v{T}, v{T}, 0.5, vcc'); k(f'v_cndmask_b32 v{T+5}, v{T+5}, 0, vcc')
            k(f'v_fma_f32 v{T+5}, v{T}, v{T+4}, v{T+5}'); k(f'v_fma_f32 v{T+7}, v{T+2}, v{T+4}, v{T+3}')
            for ks in range(4):
                for u in range(4):
                    cc=16*ks+u
                    k(f'v_fmamk_f32 v{T+8+2*u}, v{T}, {float(cc)}, v{T+5}'); k(f'v_fmamk_f32 v{T+9+2*u}, v{T+2}, {float(cc)}, v{T+7}')
                for u in range(8): k(f'v_cos_f32 v{T+8+u}, v{T+8+u}')
                for u in range(4): k(f'v_cvt_pk_bf16_f32 v{A2+16*mt+4*ks+u}, v{T+8+2*u}, v{T+9+2*u}')
    def early(self):
        k=self.k; c=self.c; T=self.T; UO=self.UO
        srd(k,16,50,self.wssize)
        k('v_lshlrev_b32 v18, 4, v1')
        Lp=k.label('pc'); k('s_getpc_b64 s[52:53]'); k(f'{Lp}:'); k(f's_add_u32 s52, s52, {NAME}_tab-{Lp}'); k('s_addc_u32 s53, s53, 0'); srd(k,24,52,17408)
        k('s_lshl_b32 s53, s3, 12'); k(f's_add_u32 m0, s53, {L_TAB}'); self.tabt=[]
        for u in range(4): self.tabt.append(k(f'buffer_load_dwordx4 v18, s[24:27], s53 offen offset:{1024*u} lds'))
        k(f's_mov_b32 m0, {L_TAB+16384}'); k('s_mov_b32 s53, 16384')
        self.tabt.append(k(f'buffer_load_dwordx4 v18, s[24:27], s53 offen lds'))
        if c.tlb:
            L=k.label('tl'); k('s_cmp_lg_u32 s3, 3'); k(f's_cbranch_scc1 {L}')
            k(f'v_lshlrev_b32 v{T}, {c.tlb}, v1'); k(f'v_add_u32 v{T}, 0x3ff80, v{T}')
            k(f'buffer_load_dword a246, v{T}, s[16:19], 0 offen')
            srd(k,28,46,S*D*2); k(f'buffer_load_dword a247, v{T}, s[28:31], 0 offen')
            k(f'{L}:')
        if c.gtouch:
            k(f'v_and_b32 v{T}, 7, v1'); k(f'v_lshlrev_b32 v{T}, 7, v{T}'); k(f'v_bfe_u32 v{T+1}, v1, 3, 1'); k(f'v_mul_u32_u24 v{T+1}, {FL_GF2-FL_GF}, v{T+1}'); k(f'v_add_u32 v{T}, v{T}, v{T+1}')
            k('s_lshl_b32 s53, s12, 10'); k(f's_add_u32 s53, s53, {WS_FLG+FL_GF}')
            L=k.label('gt'); k('s_add_u32 s52, s13, s3'); k('s_cmp_lg_u32 s52, 0'); k(f's_cbranch_scc1 {L}')
            k(f'buffer_load_dword a246, v{T}, s[16:19], s53 offen {c.gtouch}'); k(f'{L}:')
        if c.utouch:
            L=k.label('ut'); k('s_cmp_ge_u32 s2, 128'); k(f's_cbranch_scc1 {L}')
            k(f'v_min_u32 v{T}, 39, v1'); k(f'v_cmp_le_u32 vcc, 20, v{T}'); k(f'v_mov_b32 v{T+1}, {163840-2560}'); k(f'v_cndmask_b32 v{T+1}, 0, v{T+1}, vcc'); k(f'v_lshl_add_u32 v{T}, v{T}, 7, v{T+1}')
            k('s_bfe_u32 s52, s2, 0x10003'); k('s_lshl_b32 s52, s52, 2'); k('s_add_u32 s52, s52, s3'); k(f's_mul_i32 s52, s52, {2*163840}'); k('s_mul_i32 s53, s66, 2560'); k('s_add_u32 s52, s52, s53')
            k(f'buffer_load_dword a246, v{T}, s[16:19], s52 offen {c.utouch}'); k(f'{L}:')
        self.w_setup()
        self.pf('sw_early')
        if c.pf: self.pf_setup(); self.pf('early')
        k('s_mul_i32 s14, s14, 0x9E3779B1'); k('s_add_u32 s14, s14, 0x7F4A7C15')
        k('s_getreg_b32 s52, hwreg(HW_REG_XCC_ID, 0, 4)'); k('s_add_u32 s52, s52, 1'); k('s_xor_b32 s59, s14, s52')
    def pf(self, point):
        k=self.k; c=self.c
        if c.sweep and point==c.sweep_at:
            L=self.w0()
            k('v_lshlrev_b32 v252, 7, v1'); k('s_mul_i32 s52, s2, 7680')
            k('s_mov_b32 s32, s38'); k('s_and_b32 s33, s39, 0xffff')
            k('buffer_load_dword a246, v252, s[28:31], s52 offen'); k('buffer_load_dword a246, v252, s[32:35], s52 offen')
            self.end(L)
        if self.who!='w0':
            o=self.nop; self.nop=True; Gen.pf(self, point); self.nop=o
    def late_setup(self):
        k=self.k; T=self.T; UO=self.UO
        self.w_setup_tr()
        k('s_lshl_b32 s68, s12, 8'); k(f's_add_u32 s68, s68, {WS_FLG+FL_GRP}')
        k('s_lshl_b32 s69, s13, 7'); k('s_add_u32 s52, s69, s12'); k('s_sub_u32 s53, s69, 1008'); k('s_cmp_lt_u32 s13, 8'); k('s_cselect_b32 s53, s69, s53')
        k('s_cmp_eq_u32 s12, 0'); k('s_cselect_b32 s69, s53, s52')
        k('s_lshl_b32 s70, s3, 5'); k('s_add_u32 s70, s70, s69'); k('s_sub_u32 s71, 2048, s70'); k('s_cmp_eq_u32 s70, 0'); k('s_cselect_b32 s71, 1024, s71')
        k('s_mul_i32 s72, s3, 2560'); k(f's_add_u32 s72, s72, {L_XR}')
        srd(k,20,4,S*D*2)
        if self.zo():
            for r in range(0 if self.c.zpar else 4):
                k(f's_add_u32 s52, s69, {32*r}'); k('s_sub_u32 s53, 2048, s52')
                if r==0: k('s_cmp_eq_u32 s52, 0'); k('s_cselect_b32 s53, 1024, s53')
                k(f's_mul_i32 s{4+2*r}, s52, 1280'); k(f's_mul_i32 s{5+2*r}, s53, 1280')
            srd(k,24,46,S*D*2)
        k(f's_mov_b32 s54, {(2**32+4)//5}')
        for m in range(5):
            k(f'v_add_u32 v{T}, {64*m}, v1'); k(f'v_mul_hi_u32 v{T+1}, v{T}, s54'); k(f'v_mul_u32_u24 v{T+1}, {1280-80}, v{T+1}'); k(f'v_lshl_add_u32 v{UO+m}, v{T}, 4, v{T+1}')
        k(f's_mov_b32 s54, {(2**32+9)//10}')
        k(f'v_mul_hi_u32 v{T+1}, v1, s54'); k(f'v_mul_u32_u24 v{T+2}, 10, v{T+1}'); k(f'v_sub_u32 v{T+2}, v1, v{T+2}')
        k(f'v_lshrrev_b32 v{T+3}, 1, v{T+1}'); k(f'v_and_b32 v{T+1}, 1, v{T+1}'); k(f'v_mul_u32_u24 v{T+3}, 2560, v{T+3}')
        k(f'v_lshl_add_u32 v{T+3}, v{T+1}, 14, v{T+3}'); k(f'v_lshl_add_u32 v{UO+5}, v{T+2}, 4, v{T+3}')
        R=self.c.rec; sh=R.bit_length()-1
        k(f'v_lshrrev_b32 v253, 2, v1'); k(f'v_lshlrev_b32 v253, {sh+8}, v253'); k(f'v_and_b32 v{T}, 3, v1'); k(f'v_lshl_add_u32 v253, v{T}, 4, v253')
        k(f's_lshl_b32 s62, s2, {sh}'); k(f's_add_u32 s62, s62, {WS_FLG+FL_GF}')
        k(f's_lshl_b32 s63, s12, {sh+8}'); k(f's_add_u32 s63, s63, {WS_FLG+FL_GF}')
        k('s_lshr_b32 s52, s12, 3'); k('s_lshl_b32 s52, s52, 3'); k(f'v_and_b32 v{T}, 7, v1'); k(f'v_lshrrev_b32 v{T+1}, 3, v1'); k(f'v_lshl_add_u32 v{T}, v{T+1}, 4, v{T}')
        k(f'v_add_lshl_u32 v198, v{T}, s52, {sh}')
        k(f'v_min_u32 v{T}, 39, v1'); k(f'v_add_u32 v{T}, 128, v{T}'); k(f'v_lshlrev_b32 v199, {sh}, v{T}')
        k(f'v_add_u32 v{T}, 168, v1'); k(f'v_lshlrev_b32 v254, {sh}, v{T}')
        k('s_and_b32 s52, s2, 15'); k(f'v_lshl_add_u32 v{T}, v2, 4, s52'); k(f'v_add_u32 v{T+1}, 232, v2'); k('v_cmp_gt_u32 vcc, 16, v1'); k(f'v_cndmask_b32 v{T}, v{T+1}, v{T}, vcc'); k(f'v_lshlrev_b32 v255, {sh}, v{T}')
    def rpost(self, soff, r=240):
        k=self.k; R=self.c.rec
        k(f'v_mov_b32 v{r}, s14'); k(f'v_mov_b32 v{r+1}, s59'); k(f'v_mov_b32 v{r+2}, s14'); k(f'v_mov_b32 v{r+3}, s14')
        if R==32: k('s_mov_b32 exec_lo, 0x33333333'); k('s_mov_b32 exec_hi, 0x33333333')
        k(f'buffer_store_dwordx4 v[{r}:{r+3}], v253, s[16:19], {soff} offen sc1')
        if R==128: k(f'buffer_store_dwordx4 v[{r}:{r+3}], v253, s[16:19], {soff} offen offset:64 sc1')
        if R==32: k('s_mov_b64 exec, -1')
    def build(self):
        k=self.k; c=self.c
        END=k.label('end'); LM=k.label('mod'); LS=k.label('shuf'); LN_=k.label('none'); LJ=k.label('join')
        self.drain=[]; self.check_sched()
        k('s_cmp_ge_u32 s2, 256'); k(f's_cbranch_scc1 {END}')
        k(f's_load_dwordx2 s[4:5], s[0:1], {KA["x"]}'); k(f's_load_dwordx16 s[36:51], s[0:1], {KA["wg"]}')
        if c.prof: k('v_mov_b32 v19, -1')
        if c.pace: k('s_memrealtime s[96:97]'); k('s_mov_b32 s95, 0')
        self.stamp(0)
        k('v_lshrrev_b32 v1, 6, v0'); k('v_readfirstlane_b32 s3, v1')
        k('v_and_b32 v1, 63, v0'); k('v_and_b32 v2, 15, v0'); k('v_lshrrev_b32 v3, 4, v1')
        k('s_and_b32 s12, s2, 7'); k('s_lshl_b32 s12, s12, 1'); k('s_bfe_u32 s13, s2, 0x10003'); k('s_add_u32 s12, s12, s13'); k('s_lshr_b32 s13, s2, 4')
        if c.codetouch:
            L=self.w0(); Lp=k.label('pc')
            k('s_getpc_b64 s[52:53]'); k(f'{Lp}:'); k(f's_sub_u32 s52, s52, {Lp}-{NAME}'); k('s_subb_u32 s53, s53, 0'); srd(k,24,52,f'{NAME}_tab-{NAME}+17408')
            k('s_bfe_u32 s54, s2, 0x30003'); k('s_lshl_b32 s54, s54, 13'); k('v_lshlrev_b32 v240, 7, v1')
            k('buffer_load_dword a246, v240, s[24:27], s54 offen')
            self.end(L)
        LA=k.label('a'); LB=k.label('b'); LE=k.label('e'); n0=len(k.ins)
        k('s_cmp_ge_u32 s2, 128'); k(f's_cbranch_scc1 {LA}')
        self.role_ln_a(); k(f's_branch {LE}')
        k(f'{LA}:'); k('s_cmp_ge_u32 s2, 248'); k(f's_cbranch_scc1 {LB}')
        self.role_mod_a()
        k(f'{LB}:')
        if c.shdma=='early': self.role_shuf_a()
        else: self.shtoks=[]
        k(f'{LE}:')
        roletoks=[x.tag for x in k.ins[n0:] if x.kind=='vmem' and not (c.shlate and x.tag in self.shtoks)]
        self.pre0(c.a2pre)
        if c.hops:
            back=k.label('back'); main=k.label('main')
            k('s_mov_b64 exec, 0')
            for w in range(4):
                k(f's_cmp_eq_u32 s3, {w}'); y=Ins('s_nop 0'); y.meta=('hopstart',w); k.ins.append(y)
            k(f'{back}:'); k('s_mov_b64 exec, -1')
            k(f's_branch {main}'); k('.p2align 12'); k(f'{main}:')
            self.tg=[LM,LJ] if c.hoptg else []; k.hops=(main,back,4,c.hopstep,self.tg)
        self.early()
        k('s_cmp_ge_u32 s2, 128'); k(f's_cbranch_scc1 {LM}')
        self.role_ln(); k(f's_branch {LJ}')
        k(f'{LN_}:'); self.w_issue(c.iss_early); self.pf('ld'); self.w_issue(c.iss_ld); k(f's_branch {LS}')
        k(f'{LM}:'); k('s_cmp_ge_u32 s2, 248'); k(f's_cbranch_scc1 {LN_}')
        self.role_mod()
        k(f'{LS}:')
        if c.shdma=='role': self.role_shuf_a()
        if not c.shlate: self.role_shuf()
        k(f'{LJ}:'); k.forget(*roletoks)
        self.stamp(3)
        self.pf('role')
        self.pre0([m for m in (0,1) if m not in c.a2pre and m not in c.a2post], False)
        self.late_setup()
        self.z_touch('role')
        if c.rsplit:
            L2=k.label('rs'); k('s_cmp_lt_u32 s2, 128'); k(f's_cbranch_scc1 {L2}'); self.w_issue(c.iss_role); k(f'{L2}:')
            L=self.w0(); k.wait(*self.drain,*self.tabt); self.end(L)
            L=self.wn(); L3=k.label('rt'); L4=k.label('ru'); k('s_cmp_lt_u32 s2, 128'); k(f's_cbranch_scc1 {L3}')
            k(f's_waitcnt vmcnt({4*len(c.iss_role)+(5 if c.shdma=="role" else 0)})'); k(f's_branch {L4}'); k(f'{L3}:'); k('s_waitcnt vmcnt(0)'); k(f'{L4}:'); self.end(L)
            k.forget(*self.drain,*self.tabt); assert not c.tr_b2
        else: self.w_issue(c.iss_role, self.drain+self.tabt+[t for st in c.tr_b2 for t in self.wt[st]])
        if c.epost:
            L=self.w0(); L2=k.label('ep'); k('s_cmp_lt_u32 s2, 128'); k(f's_cbranch_scc1 {L2}'); self.rpost('s62'); k(f'{L2}:'); self.end(L)
        k('s_barrier')
        if c.split:
            LW=k.label('wn'); LX=k.label('x9'); wt0={a:list(b) for a,b in self.wt.items()}
            if c.hoptg and c.hops: self.tg+=[LW,LX]
            k('s_cmp_lg_u32 s3, 0'); k(f's_cbranch_scc1 {LW}')
            self.who='w0'
            if c.prio: k(f's_setprio {c.prio}')
            self.p2a(); self.p2b()
            if c.prio: k('s_setprio 0')
            k(f's_branch {LX}')
            k(f'{LW}:'); self.who='wn'; self.q=[]; self.wt=wt0; self.trtok=None; k.hook=self.pace; k.curcls='wn'
            self.p2a(); self.p2b(); self.q_flush(); k.hook=None; k.curcls=None; self.who=None
            k(f'{LX}:')
        else:
            self.p2a()
            self.p2b()
        self.p3()
        self.p4()
        if c.pacewb: k('s_waitcnt vmcnt(0)'); k('buffer_wbl2 sc1'); k('s_waitcnt vmcnt(0)')
        if c.pace:
            Lq=k.label('pace'); k(f'{Lq}:'); k('s_memrealtime s[98:99]'); k('s_waitcnt lgkmcnt(0)'); k('s_sub_u32 s98, s98, s96'); k('s_sub_u32 s98, s98, s95'); k(f's_cmp_lt_i32 s98, {c.pace}'); k(f's_cbranch_scc1 {Lq}')
        if c.prof: k('s_waitcnt vmcnt(0)')
        self.stamp(31); self.stamp_flush()
        k(f'{END}:'); k('s_endpgm')
        return k
    def p2a(self):
        k=self.k; c=self.c; T=self.T; A2=self.A2; BF=self.BF; ACC=self.ACC; CAV=self.CAV; FA=self.FA; TW=self.TW; G4=self.G4; XV=self.XV; UO=self.UO
        PL=f'buffer_load_dword v{T+8}, v198, s[16:19], s63 offen {c.gpfl}\nbuffer_load_dword v{T+9}, v199, s[16:19], s63 offen {c.gpfl}'
        CH=[f'v_xor_b32 v{T+8}, s14, v{T+8}', f'v_xor_b32 v{T+9}, s14, v{T+9}', f'v_or_b32 v{T+8}, v{T+8}, v{T+9}', f'v_cmp_ne_u32 vcc, 0, v{T+8}']
        PL2=f'buffer_load_dword v{T+8}, v254, s[16:19], s63 offen sc1\nbuffer_load_dwordx2 v[{T+10}:{T+11}], v255, s[16:19], s63 offen sc1'
        CH2=[f'v_xor_b32 v{T+8}, s14, v{T+8}', f'v_xor_b32 v{T+9}, s14, v{T+10}', f'v_or_b32 v{T+8}, v{T+8}, v{T+9}', f'v_cmp_ne_u32 vcc, 0, v{T+8}']
        L=self.w0()
        if c.epost: L2=k.label('ep'); k('s_cmp_ge_u32 s2, 128'); k(f's_cbranch_scc1 {L2}')
        self.rpost('s62')
        if c.epost: k(f'{L2}:')
        self.end(L)
        self.stamp(4)
        self.misc=[]; self.sht=[]
        L=self.wn()
        k('s_sub_u32 s52, s3, 1'); k(f'v_lshlrev_b32 v{T}, 2, v1')
        for u in range(3):
            L3=k.label('xr')
            k('s_mul_i32 s53, s52, 3'); k(f's_add_u32 s53, s53, {u}')
            if u==2: k('s_cmp_eq_u32 s53, 8'); k(f's_cbranch_scc1 {L3}')
            k('s_lshr_b32 s54, s53, 1'); k('s_lshl_b32 s54, s54, 5'); k('s_add_u32 s54, s54, s69')
            k('s_sub_u32 s55, 2048, s54'); k('s_cmp_eq_u32 s54, 0'); k('s_cselect_b32 s55, 1024, s55')
            k('s_bitcmp1_b32 s53, 0'); k('s_cselect_b32 s54, s55, s54'); k('s_mul_i32 s54, s54, 1280')
            k('s_mul_i32 s53, s53, 1280'); k(f's_add_u32 m0, s53, {L_XR}'); k('s_nop 0')
            self.misc.append(k(f'buffer_load_dwordx4 v18, s[20:23], s54 offen lds'))
            self.misc.append(k(f'buffer_load_dword v{T}, s[20:23], s54 offen offset:1024 lds'))
            k(f'{L3}:')
        self.end(L)
        self.z_touch('b2')
        if c.otouch=='b2': self.out_touch()
        if c.rsplit and self.who!='w0':
            L2=k.label('rs'); k('s_cmp_ge_u32 s2, 128'); k(f's_cbranch_scc1 {L2}'); self.w_issue(c.iss_role,burst=True); k(f'{L2}:')
        self.pf('b2'); self.w_issue(c.iss_b2,burst=c.burst_early)
        if c.gasync: L=self.w0(); k(PL); self.end(L)
        self.w_tr(c.tr_b2)
        for u in range(2): k(f'ds_read_b128 v[{FA+4*u}:{FA+4*u+3}], v18 offset:{L_TAB+1024*u}')
        for u in range(6): k(f'ds_read_b128 v[{TW+4*u}:{TW+4*u+3}], v18 offset:{L_TAB+2048+1024*u}')
        for u in range(9): tw2=k(f'ds_read_b128 v[{G4+4*u}:{G4+4*u+3}], v18 offset:{L_TAB+8192+1024*u}')
        k('s_cmp_eq_u32 s70, 0'); k('s_cselect_b64 vcc, -1, 0'); k('s_cselect_b32 s52, 0xffff, -1')
        for u in range(8):
            k(f'v_xor_b32 v{FA+8+u}, 0x80000000, v{FA+u}'); k(f'v_lshlrev_b32 v{T+4}, 16, v{FA+u}')
            k(f'v_cndmask_b32 v{FA+8+u}, v{FA+8+u}, v{T+4}, vcc'); k(f'v_and_b32 v{FA+u}, s52, v{FA+u}')
        def a2(mts):
            if mts: k('s_mov_b64 s[80:81], s[68:69]'); k('s_mov_b64 s[82:83], s[70:71]'); self.pre0(mts, False); k('s_mov_b64 s[68:69], s[80:81]'); k('s_mov_b64 s[70:71], s[82:83]')
        late=[m for m in c.a2post if m in c.a2u] if (c.nob2p and self.who=='w0') else []
        a2([m for m in c.a2post if m not in late])
        if c.shlate:
            Ls=k.label('sl'); k('s_cmp_lt_u32 s2, 128'); k(f's_cbranch_scc1 {Ls}'); self.role_shuf(); k(f'{Ls}:')
        self.w_issue(c.iss_b2b,burst=c.burst_early); self.pf('pre')
        if not c.nob2p: self.w_wait(c.tr_b3, self.misc); k.wait(tw2); k('s_barrier')
        self.stamp(5)
        self.z_touch('b2c')
        if c.shst=='b2c': self.sh_store()
        self.w_issue(c.iss_b2c,burst=c.burst_early); self.pf('chain')
        L=self.w0(); ut=[]; Lo=k.label('ok')
        if c.gasync:
            for x in CH: k(x)
            k(f's_cbranch_vccz {Lo}')
        self.poll(PL, CH, c.gsleep)
        k(f'{Lo}:')
        self.stamp(6)
        k('s_mul_i32 s53, s12, 163840'); k('s_mul_i32 s52, s13, 80'); k('s_add_u32 s53, s53, s52')
        if WS_U: k(f's_add_u32 s53, s53, {WS_U}')
        k(f's_mov_b32 m0, {L_US}')
        for u in range(10):
            ut.append(k(f'buffer_load_dwordx4 v{UO+u%5}, s[16:19], s53 offen sc1 lds'))
            k('s_add_u32 m0, m0, 1024')
            if u==4: k(f's_add_u32 s53, s53, {64*1280}')
        k(f's_mov_b32 m0, {L_CA}'); k('s_mul_i32 s53, s13, 160'); k(f's_add_u32 s53, s53, {WS_MOD}')
        k('s_mov_b32 exec_hi, 0xff')
        ut.append(k(f'buffer_load_dwordx4 v{UO+5}, s[16:19], s53 offen sc1 lds'))
        k('s_mov_b32 exec_hi, -1')
        self.end(L)
        a2(late)
        if self.who: self.wn()
        L=k.label('w1'); k('s_cmp_lg_u32 s3, 1'); k(f's_cbranch_scc1 {L}')
        self.poll(PL2, CH2, c.gsleep2)
        k(f'v_cmp_ne_u32 vcc, s59, v{T+11}'); k('s_and_b32 s52, vcc_lo, 0xffff'); k('s_cmp_eq_u32 s52, 0'); k(f's_cselect_b32 s15, {0 if c.force_slow else 1}, 0')
        k(f'v_mov_b32 v{T}, s15'); k(f'v_mov_b32 v{T+1}, {L_CA+640}'); tmode=k(f'ds_write_b32 v{T+1}, v{T}'); k.wait(tmode)
        def modl():
            self.modt=[]; oc=k.curcls; k.curcls='wn'
            for u in range(16):
                if u%4==0: k(f's_mov_b32 m0, {L_MOD+1024*u}'); k(f's_mov_b32 s54, {WS_MOD+8192+1024*u+8192*(u>>3)}')
                self.modt.append(k(f'buffer_load_dwordx4 v18, s[16:19], s54 offen offset:{1024*(u%4)} sc1 lds'))
            k.curcls=oc
        if not c.nob2p: modl()
        L2=k.label('n'); k('s_cmp_lg_u32 s2, 0'); k(f's_cbranch_scc1 {L2}')
        self.poll(f'buffer_load_dword v{T+8}, v198, s[16:19], s63 offen sc1\nbuffer_load_dword v{T+9}, v198, s[16:19], s63 offen offset:{8*c.rec} sc1\nbuffer_load_dword v{T+10}, v199, s[16:19], s63 offen sc1\nbuffer_load_dword v{T+11}, v255, s[16:19], s63 offen offset:{16*c.rec} sc1',
                  [f'v_xor_b32 v{T+8+u}, s14, v{T+8+u}' for u in range(3)]+[f'v_xor_b32 v{T+11}, s14, v{T+11}', f'v_cmp_gt_u32 vcc, 16, v1', f'v_cndmask_b32 v{T+11}, v{T+11}, 0, vcc', f'v_cmp_lt_u32 vcc, 7, v2', f'v_cndmask_b32 v{T+11}, v{T+11}, 0, vcc',
                   f'v_or3_b32 v{T+8}, v{T+8}, v{T+9}, v{T+10}', f'v_or_b32 v{T+8}, v{T+8}, v{T+11}', f'v_cmp_ne_u32 vcc, 0, v{T+8}'])
        k(f'v_mov_b32 v{T+3}, 0'); k(f's_mov_b32 s53, {WS_FLG}'); k('s_mov_b64 exec, 1')
        k(f'v_mov_b32 v{T+2}, s14'); k(f'buffer_store_dword v{T+2}, v{T+3}, s[16:19], s53 offen sc1'); k('s_mov_b64 exec, -1')
        k(f'{L2}:')
        self.end(L)
        if self.who: self.end(None)
        self.stamp(-27)
        if c.nob2p:
            self.w_wait(c.tr_b3, self.misc); k.wait(tw2); k('s_barrier')
            if self.who: self.wn()
            L=k.label('w1'); k('s_cmp_lg_u32 s3, 1'); k(f's_cbranch_scc1 {L}'); modl(); self.end(L)
            if self.who: self.end(None)
        elif c.iss_b3: k('s_barrier')
        self.stamp(-28)
        self.z_touch('b3')
        if c.shst=='b3': self.sh_store()
        k(f'v_lshlrev_b32 v246, 2, v2')
        self.pf('b3'); self.w_issue(c.iss_b3)
        for u in range(20): k(f'v_mov_b32 v{XV+u}, 0')
        k(f'v_lshlrev_b32 v{T+4}, 1, v2'); k(f'v_lshl_add_u32 v250, v3, 8, v{T+4}'); k(f'v_lshl_add_u32 v251, v3, 6, v{T+4}')
        k('v_add_u32 v250, s72, v250'); k('v_add_u32 v251, s72, v251')
        for ab in range(2):
            for jj in range(8): k(f'ds_read_u16_d16_hi v{XV+10*ab+jj}, v250 offset:{1280*ab+32*jj}')
            for j in range(2): tw=k(f'ds_read_u16_d16_hi v{XV+10*ab+8+j}, v251 offset:{1280*ab+1024+32*j}')
        tw=self.w_tr(c.tr_b3) or tw
        k(f'v_lshrrev_b32 v{T+4}, 2, v2'); k(f'v_lshl_add_u32 v{T+4}, v3, 3, v{T+4}'); k(f'v_mul_u32_u24 v{T+4}, 80, v{T+4}')
        k(f'v_and_b32 v{T+5}, 3, v2'); k(f'v_lshl_add_u32 v248, v{T+5}, 3, v{T+4}')
        k('s_mul_i32 s52, s3, 2560'); k(f'v_mul_u32_u24 v249, 320, v3'); k('v_lshl_add_u32 v249, v2, 2, v249'); k('v_add_u32 v249, s52, v249')
        k(f'v_add_u32 v246, {L_CA}, v246')
        k('s_lshl_b32 s62, s12, 4'); k('s_add_u32 s62, s62, s13'); k('s_mul_i32 s62, s62, 10240'); k(f's_add_u32 s62, s62, {WS_Z}')
        if c.zpar:
            k('s_mul_i32 s4, s70, 1280'); k('s_mul_i32 s5, s71, 1280'); k('v_lshlrev_b32 v245, 2, v1')
        GO=240
        L=self.w0()
        k(f's_mov_b32 s54, {(2**32+39)//40}')
        if self.zo():
            k('s_bfe_u32 s55, s13, 0x10001'); k('s_mul_i32 s55, s55, 7')
            for m in range(5):
                k(f'v_add_u32 v{T}, {64*m}, v1'); k(f'v_mul_hi_u32 v{T+1}, v{T}, s54'); k(f'v_mul_u32_u24 v{T+2}, 40, v{T+1}'); k(f'v_sub_u32 v{T}, v{T}, v{T+2}')
                k(f'v_xor_b32 v{T+1}, s55, v{T+1}'); k(f'v_mul_u32_u24 v{T+1}, 10240, v{T+1}'); k(f'v_add_lshl_u32 v{GO+m}, v{T}, v{T+1}, 4')
            k('s_lshr_b32 s52, s13, 2'); k('s_lshl_b32 s52, s52, 5'); k('s_add_u32 s64, s52, s12')
            k('s_add_u32 s65, s64, 1024'); k('s_add_u32 s52, s52, 16'); k('s_cmp_eq_u32 s12, 0'); k('s_cselect_b32 s65, s52, s65')
            k('s_sub_u32 s52, 1152, s64'); k('s_sub_u32 s53, 1152, s65'); k('s_cmp_lg_u32 s55, 0')
            k('s_cselect_b32 s53, s53, s65'); k('s_cselect_b32 s65, 163840, 0'); k('s_cselect_b32 s52, s52, s64')
            k('s_cselect_b32 s55, s64, 1'); k('s_cmp_eq_u32 s55, 0'); k('s_cselect_b32 s55, 40, 0')
            k(f'v_add_u32 v{T+7}, s65, v{GO}'); k(f'v_lshlrev_b32 v{T}, 4, v1'); k('v_cmp_gt_u32 vcc, s55, v1'); k(f'v_cndmask_b32 v{T+7}, v{T+7}, v{T}, vcc')
            k('s_and_b32 s55, s13, 1'); k('s_mul_i32 s55, s55, 640')
            k('s_mul_i32 s64, s52, 1280'); k('s_add_u32 s64, s64, s55'); k('s_sub_u32 s63, s64, s65'); k('s_mul_i32 s65, s53, 1280'); k('s_add_u32 s65, s65, s55')
            k('v_lshlrev_b32 v245, 2, v1')
        else:
          for m in range(5):
            k(f'v_add_u32 v{T}, {64*m}, v1'); k(f'v_mul_hi_u32 v{T+1}, v{T}, s54'); k(f'v_mul_u32_u24 v{T+1}, {10240-640}, v{T+1}'); k(f'v_lshl_add_u32 v{GO+m}, v{T}, 4, v{T+1}')
        k.wait(*ut); self.end(L)
        k.wait(tw); self.w_wait(c.tr_b4)
        self.stamp(-29)
        k('s_barrier')
        self.stamp(7)
        def rds(ks): return [f'ds_read_b64_tr_b16 v[{BF+12*ks+4*nt+2*hh}:{BF+12*ks+4*nt+2*hh+1}], v248 offset:{L_US+2560*ks+320*hh+2*D2B[nt]}' for nt in range(3) for hh in range(2)]
        for x in rds(0)+rds(1): k(x)
        if c.zpar:
            k(f'v_mov_b32 v{T+1}, {L_CA+640}'); k(f'ds_read_b32 v247, v{T+1}'); k(f's_sub_u32 s52, s72, {L_XR-L_ZS}'); k(f'v_add_u32 v{T+2}, s52, v18'); k(f'v_add_u32 v{T+3}, s52, v245')
        if c.shst=='b4': self.sh_store()
        fill=rds(2)
        for nt in range(3):
            fill.append(f'ds_read2_b32 v[{CAV+2*nt}:{CAV+2*nt+1}], v246 offset0:{D2B[nt]} offset1:{40+D2B[nt]}')
            fill.append(f'ds_read2_b32 v[{CAV+6+2*nt}:{CAV+7+2*nt}], v246 offset0:{80+D2B[nt]} offset1:{120+D2B[nt]}')
        fill+=rds(3)
        cav=[]
        for nt in range(3): cav+=[f'v_add_f32 v{CAV+2*nt}, v{CAV+2*nt}, v{CAV+2*nt+1}', f'v_add_f32 v{CAV+6+2*nt}, v{CAV+6+2*nt}, v{CAV+7+2*nt}']
        for nt in range(3): cav.append(f'v_cvt_pk_bf16_f32 v{CAV+2*nt}, v{CAV+2*nt}, v{CAV+6+2*nt}')
        for nt in range(3): cav.append(f'v_and_b32 v{CAV+6+2*nt}, 0xffff0000, v{CAV+2*nt}')
        for nt in range(3): cav.append(f'v_add_f32 v{CAV+6+2*nt}, 1.0, v{CAV+6+2*nt}')
        for nt in range(3): cav.append(f'v_cvt_pk_bf16_f32 v{CAV+6+2*nt}, v{CAV+6+2*nt}, v{CAV+6+2*nt}')
        for nt in range(3): cav.append(f'v_and_b32 v{CAV+6+2*nt}, 0xffff0000, v{CAV+6+2*nt}')
        fill+=cav
        order=[(mt,nt) for nt in range(3) for mt in range(2)]
        def post(mt,nt):
            a=ACC+12*mt+4*nt; o=[f'v_mul_f32 v{a+j}, v{a+j}, v{CAV+6+2*nt}' for j in range(4)]
            if c.pk2: o=[f'v_pk_mul_f32 v[{a+2*j}:{a+2*j+1}], v[{a+2*j}:{a+2*j+1}], v[{CAV+6+2*nt}:{CAV+7+2*nt}] op_sel_hi:[1,0]' for j in range(2)]
            if mt==0: o.append(f'v_fmac_f32 v{a}, v{T+6}, v{CAV+2*nt}')
            for rr in range(2):
                o.append(f'v_cvt_pk_bf16_f32 v{a+2*rr}, v{a+2*rr}, v{a+2*rr+1}'); o.append(f'ds_write_b32 v249, v{a+2*rr} offset:{L_ZS+1280*mt+160*rr+4*D2B[nt]}')
            return o
        k('s_cmp_eq_u32 s73, 0'); k('s_cselect_b32 s52, 16, 0'); k(f'v_cmp_gt_u32 s[54:55], s52, v1'); k(f'v_mov_b32 v{T+6}, 0x45000000')
        for ks in range(4):
            for mt,nt in order:
                d=f'v[{ACC+12*mt+4*nt}:{ACC+12*mt+4*nt+3}]'
                k(f'v_mfma_f32_16x16x32_bf16 {d}, v[{A2+16*mt+4*ks}:{A2+16*mt+4*ks+3}], v[{BF+12*ks+4*nt}:{BF+12*ks+4*nt+3}], {d if ks else 0}')
                for _ in range(2):
                    if fill: k(fill.pop(0))
        for x in fill: k(x)
        if c.zpar: k('v_readfirstlane_b32 s15, v247')
        for nt in range(3): k(f'v_lshlrev_b32 v{CAV+2*nt}, 16, v{CAV+2*nt}'); k(f'v_cndmask_b32 v{CAV+2*nt}, 0, v{CAV+2*nt}, s[54:55]')
        for mt,nt in order:
            for x in post(mt,nt): t=k(x)
        R=BF; zt=[]
        if c.zpar:
            k.wait(t)
            for u in range(2): k(f'ds_read_b128 v[{R+4*u}:{R+4*u+3}], v{T+2} offset:{1280*u}'); k(f'ds_read_b32 v{R+8+u}, v{T+3} offset:{1280*u+1024}')
            for u in range(2):
                zt.append(k(f'buffer_store_dwordx4 v[{R+4*u}:{R+4*u+3}], v18, s[24:27], s{4+u} offen {c.zfl}')); zt.append(k(f'buffer_store_dword v{R+8+u}, v245, s[24:27], s{4+u} offen offset:1024 {c.zfl}'))
            if c.shst=='z': self.sh_store()
            self.w_issue(c.iss_b4); self.w_tr(c.tr_b4)
            self.stamp(30)
            k(f's_lshl_b32 s52, s13, 2'); k('s_add_u32 s62, s52, s68'); k('v_mov_b32 v252, s14'); k('v_mov_b32 v253, 0')
            k.wait(*zt); self.w_wait(c.tr_b5, self.modt)
            k('s_barrier')
            self.stamp(8)
        else:
            if c.shst=='b4e': self.sh_store()
            self.pf('b4'); self.w_issue(c.iss_b4); self.w_tr(c.tr_b4); self.pf('mid4'); self.w_issue(c.iss_mid4)
            self.stamp(30)
            self.w_wait(c.tr_b5, self.modt); k.wait(t)
            k('s_barrier')
            self.stamp(8)
            R=BF
            k(f'v_mov_b32 v{T+1}, {L_CA+640}'); k(f'ds_read_b32 v247, v{T+1}')
            L=self.w0(); zt=[]
            if self.zo():
                for u in range(8): k(f'ds_read_b128 v[{R+4*u}:{R+4*u+3}], v18 offset:{L_ZS+1280*u}'); k(f'ds_read_b32 v{R+32+u}, v245 offset:{L_ZS+1280*u+1024}')
                for u in range(8):
                    zt.append(k(f'buffer_store_dwordx4 v[{R+4*u}:{R+4*u+3}], v18, s[24:27], s{4+u} offen {c.zfl}')); zt.append(k(f'buffer_store_dword v{R+32+u}, v245, s[24:27], s{4+u} offen offset:1024 {c.zfl}'))
            for u in range(0 if self.zo() else 10): k(f'ds_read_b128 v[{R+4*u}:{R+4*u+3}], v18 offset:{L_ZS+1024*u}')
            for u in range(0 if self.zo() else 10):
                if u%4==0 and u: k('s_add_u32 s62, s62, 4096')
                zt.append(k(f'buffer_store_dwordx4 v[{R+4*u}:{R+4*u+3}], v18, s[16:19], s62 offen offset:{1024*(u%4)} {c.zfl}'))
            self.end(L)
        def addrblk():
            k('s_mul_i32 s52, s3, 160'); k(f's_add_u32 s52, s52, {L_US}'); k(f'v_mul_u32_u24 v248, 2560, v3'); k('v_lshl_add_u32 v248, v2, 2, v248'); k('v_add_u32 v248, s52, v248')
            k('v_add_u32 v249, 1280, v248')
            k('s_lshl_b32 s74, s3, 1')
            k(f'v_and_b32 v{T+8}, 7, v1'); k(f'v_xor_b32 v{T+8}, s74, v{T+8}'); k(f'v_lshlrev_b32 v{T+8}, 4, v{T+8}'); k(f'v_lshl_add_u32 v{T+8}, v1, 7, v{T+8}')
            k(f'v_xor_b32 v{T+9}, 16, v{T+8}')
            k(f'v_bfe_u32 v{T+10}, v1, 2, 3'); k(f'v_xor_b32 v{T+10}, s74, v{T+10}'); k(f'v_lshlrev_b32 v{T+10}, 4, v{T+10}')
            k(f'v_lshrrev_b32 v{T+11}, 2, v1'); k(f'v_lshl_add_u32 v{T+10}, v{T+11}, 7, v{T+10}'); k(f'v_and_b32 v{T+11}, 3, v1'); k(f'v_lshl_add_u32 v{T+10}, v{T+11}, 2, v{T+10}')
            k(f'v_xor_b32 v{T+11}, 16, v{T+10}')
            k('s_lshr_b32 s62, s13, 1'); k('s_lshl_b32 s54, s12, 3'); k('s_add_u32 s62, s62, s54'); k('s_mul_i32 s62, s62, 20480')
            k('s_and_b32 s54, s13, 1'); k('s_lshl_b32 s54, s54, 7'); k('s_add_u32 s62, s62, s54'); k(f's_add_u32 s62, s62, {self.H2}')
            k(f'v_lshrrev_b32 v{T}, 3, v1'); k(f'v_xor_b32 v245, v{T}, v1'); k(f'v_and_b32 v245, 7, v245'); k(f'v_lshlrev_b32 v245, 4, v245'); k(f'v_lshl_add_u32 v245, v{T}, 8, v245')
            self.p3_setup(part=0)
        if c.wnlag and self.who=='wn': addrblk()
        if c.shst=='b5': self.sh_store()
        self.pf('b5'); self.w_issue(c.iss_b5)
        GA,SB,CB=self.GA,self.SB,self.CB; M0=60; M1=200
        def modreads():
            k(f'v_lshlrev_b32 v{T+2}, 2, v2'); k(f'v_lshl_add_u32 v{T+3}, v3, 7, v{T+2}'); k(f'v_lshl_add_u32 v{T+2}, v3, 9, v{T+2}')
            for p,base in ((0,M0),(1,M1)):
                for v in range(3):
                    o=L_MOD+8192*p+2560*v
                    k(f'v_add_u32 v{T+4}, {o}, v{T+2}'); k(f'v_add_u32 v{T+5}, {o+2048}, v{T+3}')
                    for u in range(4): k(f'ds_read2_b32 v[{base+10*v+2*u}:{base+10*v+2*u+1}], v{T+4} offset0:{32*u} offset1:{32*u+16}')
                    k(f'ds_read2_b32 v[{base+10*v+8}:{base+10*v+9}], v{T+5} offset0:0 offset1:16')
        if c.zsh: modreads()
        if not c.zpar: k('v_readfirstlane_b32 s15, v247')
        if c.tr5early: self.w_tr(c.tr_b5)
        if c.w4 and self.who=='w0' and c.w4early: self.w4_setup()
        L=self.w0(); k.wait(*zt); self.stamp(9); self.gpost(0, 's62' if c.zpar else None)
        k(f's_add_u32 s87, s68, 0'); k('v_lshlrev_b32 v253, 2, v2'); k('buffer_load_dword v247, v253, s[16:19], s87 offen sc1')
        self.end(L)
        if not c.zsh: modreads()
        GO=240
        src=lambda v,u: 10*v+u
        for v in range(3):
            for u in range(10): k(f'v_add_f32 v{M0+src(v,u)}, v{M0+src(v,u)}, v{M1+src(v,u)}')
        L=self.w0(); gt=[]; Lo=k.label('ok'); Le=k.label('e')
        k('v_cmp_ne_u32 vcc, s14, v247'); k(f's_cbranch_vccz {Lo}')
        self.poll('buffer_load_dword v247, v253, s[16:19], s87 offen sc1', ['v_cmp_ne_u32 vcc, s14, v247'])
        k(f'{Lo}:')
        k('s_cmp_lg_u32 s15, 0'); k(f's_cbranch_scc1 {Le}'); k('buffer_inv sc1'); k('s_waitcnt vmcnt(0)'); k(f'{Le}:')
        self.stamp(10)
        if not self.zo(): k('s_mul_i32 s53, s12, 163840'); k('s_mul_i32 s54, s13, 640'); k('s_add_u32 s53, s53, s54'); k(f's_add_u32 s53, s53, {WS_Z}')
        k(f's_mov_b32 m0, {L_US}')
        for u in range(10):
            if self.zo(): gt.append(k(f'buffer_load_dwordx4 v{GO+u%5 if u else T+7}, s[24:27], s{63 if u==0 else 64+u//5} offen sc1 lds'))
            else: gt.append(k(f'buffer_load_dwordx4 v{GO+u%5}, s[16:19], s53 offen sc1 lds'))
            k('s_add_u32 m0, m0, 1024')
            if u==4: k(f's_add_u32 s53, s53, {8*10240}')
        self.end(L)
        if c.iss_g or c.tr_g:
            self.w_wait(c.tr_g); k.wait(self.trtok)
            k('s_barrier')
            if c.shst=='g': self.sh_store()
            self.pf('g'); self.w_issue(c.iss_g); self.w_tr(c.tr_g)
        if not c.tr5early: self.w_tr(c.tr_b5)
        for v,dst in enumerate((GA,SB,CB)):
            for u in range(5): k(f'v_cvt_pk_bf16_f32 v{T+u}, v{M0+src(v,2*u)}, v{M0+src(v,2*u+1)}')
            for u in range(5): k(f'v_lshlrev_b32 v{dst+2*u}, 16, v{T+u}'); k(f'v_and_b32 v{dst+2*u+1}, 0xffff0000, v{T+u}')
        for u in range(10): k(f'v_add_f32 v{CB+u}, 1.0, v{CB+u}')
        for u in range(5): k(f'v_cvt_pk_bf16_f32 v{T+u}, v{CB+2*u}, v{CB+2*u+1}')
        for u in range(5): k(f'v_lshlrev_b32 v{CB+2*u}, 16, v{T+u}'); k(f'v_and_b32 v{CB+2*u+1}, 0xffff0000, v{T+u}')
        if not (c.wnlag and self.who=='wn'): addrblk()
        self.w_issue(c.iss_b5b)
        L=self.w0(); k.wait(*gt); self.end(L)
        self.w_wait([], self.sht)
        k.wait(self.trtok)
        k('s_barrier')
        self.stamp(11)
    def z_touch(self, at):
        k=self.k; c=self.c; T=self.T
        if c.ztouch!=at: return
        L=self.wn(); k('s_sub_u32 s52, s3, 1')
        if self.zo():
            L3=k.label('zt'); k('s_cmp_lg_u32 s3, 3'); k(f's_cbranch_scc1 {L3}')
        if c.pretouch:
            k('s_lshl_b32 s53, s12, 4'); k('s_add_u32 s53, s53, s13'); k('s_mul_i32 s53, s53, 10240'); k('s_mul_i32 s54, s52, 5120'); k('s_add_u32 s53, s53, s54')
            k(f's_add_u32 s53, s53, {WS_Z}'); k('s_cmp_eq_u32 s3, 3'); k('s_cselect_b32 s53, s68, s53')
            k(f'v_min_u32 v{T}, 39, v1'); k(f'v_lshlrev_b32 v{T}, 7, v{T}'); k(f'v_and_b32 v{T+1}, 15, v1'); k(f'v_lshlrev_b32 v{T+1}, 11, v{T+1}')
            k(f'v_bfe_u32 v{T+2}, v1, 0, 1'); k(f'v_mul_u32_u24 v{T+2}, {2048-128}, v{T+2}'); k(f'v_sub_u32 v{T+1}, v{T+1}, v{T+2}')
            k('s_cselect_b64 vcc, -1, 0'); k(f'v_cndmask_b32 v{T}, v{T}, v{T+1}, vcc')
            k(f'buffer_load_dword a246, v{T}, s[16:19], s53 offen')
        if self.zo(): k(f'{L3}:')
        self.end(L)
    def out_touch(self):
        k=self.k; c=self.c; T=self.T
        L=self.wn()
        if c.pretouch and c.alias2:
            k('s_sub_u32 s52, s3, 1')
            k('s_mul_i32 s53, s52, 27'); k(f'v_min_u32 v{T}, 26, v1'); k(f'v_add_u32 v{T}, s53, v{T}'); k(f'v_min_u32 v{T}, 79, v{T}')
            k(f's_mov_b32 s53, {(2**32+9)//10}'); k(f'v_mul_hi_u32 v{T+1}, v{T}, s53'); k(f'v_mul_u32_u24 v{T+2}, 10, v{T+1}'); k(f'v_sub_u32 v{T}, v{T}, v{T+2}')
            k(f'v_lshrrev_b32 v{T+2}, 1, v{T+1}'); k(f'v_lshl_add_u32 v{T+2}, v{T+2}, 5, s69'); k(f'v_sub_u32 v{T+3}, 2048, v{T+2}')
            k(f'v_cmp_eq_u32 vcc, 0, v{T+2}'); k(f'v_mov_b32 v{T+4}, 1024'); k(f'v_cndmask_b32 v{T+3}, v{T+3}, v{T+4}, vcc')
            k(f'v_and_b32 v{T+1}, 1, v{T+1}'); k(f'v_cmp_eq_u32 vcc, 1, v{T+1}'); k(f'v_cndmask_b32 v{T+2}, v{T+2}, v{T+3}, vcc')
            k(f'v_mul_u32_u24 v{T+2}, 1280, v{T+2}'); k(f'v_lshl_add_u32 v{T}, v{T}, 7, v{T+2}')
            srd(k,24,46,S*D*2)
            k(f'buffer_load_dword a247, v{T}, s[24:27], 0 offen')
        self.end(L)
    def sh_store(self):
        k=self.k; c=self.c
        L=self.wn()
        if c.defer_sh:
            L4=k.label('sh'); k('s_cmp_lt_u32 s2, 128'); k(f's_cbranch_scc1 {L4}'); self.sht=self.shuf_store(); k(f'{L4}:')
        self.end(L)
    def p2b(self):
        k=self.k; c=self.c; T=self.T; FA=self.FA; TW=self.TW; G4=self.G4; XV=self.XV; GA,SB,CB=self.GA,self.SB,self.CB
        ZF=20; VV=32; PB=80; YY=[ZF,32]
        for mt in range(3):
            for h in range(2): k(f'ds_read2_b32 v[{ZF+4*mt+2*h}:{ZF+4*mt+2*h+1}], v{248+h} offset0:{D2B[mt]} offset1:{160+D2B[mt]}')
        if c.otouch=='b6': self.out_touch()
        if c.shst=='b6': self.sh_store()
        self.pf('b6'); self.w_issue(c.iss_b6)
        def mA(ab,mt,o):
            d=VV+24*ab+8*mt+4*o
            return f'v_mfma_f32_16x16x32_bf16 v[{d}:{d+3}], v[{ZF+4*mt}:{ZF+4*mt+3}], v[{FA+8*ab+4*o}:{FA+8*ab+4*o+3}], 0'
        def mB(ab,mt,et):
            d=f'v[{YY[ab]+4*et}:{YY[ab]+4*et+3}]'
            return f'v_mfma_f32_16x16x32_bf16 {d}, v[{G4+12*et+4*mt}:{G4+12*et+4*mt+3}], v[{PB+12*ab+4*mt}:{PB+12*ab+4*mt+3}], {d if mt else 0}'
        def tw(ab,mt):
            re=VV+24*ab+8*mt; im=re+4; cc=TW+8*mt; s=cc+4; o=[]
            if c.pk2:
                P=lambda r,j: f'v[{r+2*j}:{r+2*j+1}]'
                for j in range(2): o+=[f'v_pk_mul_f32 {P(T,j)}, {P(re,j)}, {P(cc,j)}', f'v_pk_mul_f32 {P(T+4,j)}, {P(im,j)}, {P(cc,j)}']
                for j in range(2): o+=[f'v_pk_fma_f32 {P(T,j)}, {P(im,j)}, {P(s,j)}, {P(T,j)}', f'v_pk_fma_f32 {P(T+4,j)}, {P(re,j)}, {P(s,j)}, {P(T+4,j)} neg_lo:[1,0,0] neg_hi:[1,0,0]']
                for j in range(4): o.append(f'v_cvt_pk_bf16_f32 v{PB+12*ab+4*mt+j}, v{T+j}, v{T+4+j}')
                return o
            for j in range(4): o+=[f'v_mul_f32 v{T+j}, v{re+j}, v{cc+j}', f'v_mul_f32 v{T+4+j}, v{im+j}, v{cc+j}']
            for j in range(4): o+=[f'v_fmac_f32 v{T+j}, v{im+j}, v{s+j}', f'v_fma_f32 v{T+4+j}, -v{re+j}, v{s+j}, v{T+4+j}']
            for j in range(4): o.append(f'v_cvt_pk_bf16_f32 v{PB+12*ab+4*mt+j}, v{T+j}, v{T+4+j}')
            return o
        def mix(valu, mf, first=2, every=4):
            if c.pk2: every=max(1,(every*3+4)//5)
            for n,x in enumerate(valu):
                k(x)
                if mf and n>=first and (n-first)%every==0: k(mf.pop(0))
            for x in mf: k(x)
        for mt in range(3):
            for o in range(2): k(mA(0,mt,o))
        if c.defer_sh:
            L=self.w0()
            sh=c.rec.bit_length()-1
            k(f'v_lshrrev_b32 v253, 2, v1'); k(f'v_lshlrev_b32 v253, {sh+8}, v253'); k(f'v_and_b32 v246, 3, v1'); k(f'v_lshl_add_u32 v253, v246, 4, v253')
            L5=k.label('g2'); k('s_cmp_lt_u32 s2, 128'); k(f's_cbranch_scc1 {L5}')
            k(f's_lshl_b32 s52, s2, {sh}'); k(f's_add_u32 s52, s52, {WS_FLG+FL_GF2}'); self.rpost('s52',96); k(f'{L5}:')
            self.end(L)
        mix(tw(0,0),[mA(1,mt,o) for mt in range(3) for o in range(2)],first=0,every=3)
        mix(tw(0,1),[mB(0,0,et) for et in range(3)])
        mix(tw(0,2),[mB(0,1,et) for et in range(3)])
        mix(tw(1,0),[mB(0,2,et) for et in range(3)])
        mix(tw(1,1),[mB(1,0,et) for et in range(3)])
        mix(tw(1,2),[mB(1,1,et) for et in range(3)])
        SS=[230,231,254,255]
        def st1(ab):
            o=[f'v_fmac_f32 v{XV+10*ab+u}, v{GA+u}, v{YY[ab]+u}' for u in range(10)]
            if c.pk2:
                Q=lambda r,u: f'v[{r+2*u}:{r+2*u+1}]'; X=XV+10*ab; A=T if ab==0 else T+4
                o=[f'v_pk_fma_f32 {Q(X,u)}, {Q(GA,u)}, {Q(YY[ab],u)}, {Q(X,u)}' for u in range(5)]
                o+=[f'v_pk_add_f32 {Q(A,0)}, {Q(X,0)}, {Q(X,1)}', f'v_pk_mul_f32 {Q(A,1)}, {Q(X,0)}, {Q(X,0)}', f'v_pk_fma_f32 {Q(A,1)}, {Q(X,1)}, {Q(X,1)}, {Q(A,1)}']
                for u in range(2,5): o+=[f'v_pk_add_f32 {Q(A,0)}, {Q(A,0)}, {Q(X,u)}', f'v_pk_fma_f32 {Q(A,1)}, {Q(X,u)}, {Q(X,u)}, {Q(A,1)}']
                o+=[f'v_add_f32 v{SS[2*ab]}, v{A}, v{A+1}', f'v_add_f32 v{SS[2*ab+1]}, v{A+2}, v{A+3}']
                return o
            o+=[f'v_add_f32 v{SS[2*ab]}, v{XV+10*ab}, v{XV+10*ab+1}', f'v_mul_f32 v{SS[2*ab+1]}, v{XV+10*ab}, v{XV+10*ab}', f'v_fmac_f32 v{SS[2*ab+1]}, v{XV+10*ab+1}, v{XV+10*ab+1}']
            for u in range(2,10): o+=[f'v_add_f32 v{SS[2*ab]}, v{SS[2*ab]}, v{XV+10*ab+u}', f'v_fmac_f32 v{SS[2*ab+1]}, v{XV+10*ab+u}, v{XV+10*ab+u}']
            return o
        mix(st1(0),[mB(1,2,et) for et in range(3)],first=1,every=2)
        self.stamp(12)
        self.pf('stb'); self.w_issue(c.iss_stb)
        for x in st1(1): k(x)
        k(f'v_permlane16_swap_b32 v{SS[0]}, v{SS[1]}'); k(f'v_permlane16_swap_b32 v{SS[2]}, v{SS[3]}')
        k(f'v_add_f32 v{T}, v{SS[0]}, v{SS[1]}'); k(f'v_add_f32 v{T+2}, v{SS[2]}, v{SS[3]}')
        k(f'v_permlane32_swap_b32 v{T}, v{T+2}'); k(f'v_add_f32 v{T}, v{T}, v{T+2}')
        for sh in (8,4,2,1): k(f'v_add_f32_dpp v{T}, v{T}, v{T} row_ror:{sh} row_mask:0xf bank_mask:0xf')
        k(f'v_mul_f32 v{T}, 0x3acccccd, v{T}')
        for u in range(4): k(f'v_readlane_b32 s{52+u}, v{T}, {16*u}')
        for ab in range(2): k(f'v_mov_b32 v{T+2+ab}, s{53+2*ab}'); k(f'v_mov_b32 v{T+4+ab}, s{52+2*ab}')
        for ab in range(2): k(f'v_fma_f32 v{T+2+ab}, -v{T+4+ab}, v{T+4+ab}, v{T+2+ab}')
        for ab in range(2): k(f'v_max_f32 v{T+2+ab}, 0, v{T+2+ab}')
        for ab in range(2): k(f'v_add_f32 v{T+2+ab}, 0x3727c5ac, v{T+2+ab}')
        for ab in range(2): k(f'v_rsq_f32 v{T+2+ab}, v{T+2+ab}')
        H=48
        for ab in range(2): k(f'v_mul_f32 v{T+4+ab}, -v{T+4+ab}, v{T+2+ab}')
        for ab in range(2):
            if c.pk2:
                Q=lambda r,u: f'v[{r+2*u}:{r+2*u+1}]'
                for u in range(5): k(f'v_pk_fma_f32 {Q(H+12*ab,u)}, {Q(XV+10*ab,u)}, v[{T+2}:{T+3}], v[{T+4}:{T+5}] op_sel:[0,{ab},{ab}] op_sel_hi:[1,{ab},{ab}]')
                for u in range(5): k(f'v_pk_fma_f32 {Q(H+12*ab,u)}, {Q(H+12*ab,u)}, {Q(CB,u)}, {Q(SB,u)}')
            else:
              for u in range(10): k(f'v_fma_f32 v{H+12*ab+u}, v{XV+10*ab+u}, v{T+2+ab}, v{T+4+ab}')
              for u in range(10): k(f'v_fma_f32 v{H+12*ab+u}, v{H+12*ab+u}, v{CB+u}, v{SB+u}')
            for u in range(5): k(f'v_cvt_pk_bf16_f32 v{PB+8*ab+u}, v{H+12*ab+2*u}, v{H+12*ab+2*u+1}')
            k(f'ds_write_b128 v{T+8+ab}, v[{PB+8*ab}:{PB+8*ab+3}] offset:{L_ZS}')
            t=k(f'ds_write_b32 v{T+10+ab}, v{PB+8*ab+4} offset:{L_ZS+8192}')
        self.w_wait(c.tr_b7); k.wait(t)
        k('s_barrier')
        self.stamp(13)
        L=self.w0(); ht=[]
        R=136
        for u in range(10): k(f'ds_read_b128 v[{R+4*u}:{R+4*u+3}], v18 offset:{L_ZS+1024*u}')
        for u in range(10):
            if u%2==0 and u: k('s_add_u32 s62, s62, 4096')
            ht.append(k(f'buffer_store_dwordx4 v[{R+4*u}:{R+4*u+3}], v245, s[16:19], s62 offen offset:{2048*(u%2)} {c.hfl}'))
        self.end(L)
        if c.w4 and c.wnlag and self.who=='wn': self.q_flush(); self.w4_setup()
        self.w_issue(c.iss_b7)
        k(f'v_add_u32 v250, {L_X1-L_XR}, v250'); k(f'v_add_u32 v251, {L_X1-L_XR}, v251'); k(f's_add_u32 s72, s72, {L_X1-L_XR}')
        for ab in range(2):
            for u in range(5): k(f'v_cvt_pk_bf16_f32 v{20+8*ab+u}, v{XV+10*ab+2*u}, v{XV+10*ab+2*u+1}')
            for u in range(10):
                op='ds_write_b16_d16_hi' if u&1 else 'ds_write_b16'
                if u<8: t=k(f'{op} v250, v{20+8*ab+(u>>1)} offset:{1280*ab+32*u}')
                else: t=k(f'{op} v251, v{20+8*ab+(u>>1)} offset:{1280*ab+1024+32*(u-8)}')
        k(f'v_add_u32 v{T+2}, s72, v18'); k(f'v_lshlrev_b32 v107, 2, v1'); k(f'v_add_u32 v{T+3}, s72, v107')
        L=self.w0(); k.wait(*ht); self.stamp(14); self.gpost(1)
        k(f's_add_u32 s63, s68, 4096'); k('v_lshlrev_b32 v253, 2, v2'); k('buffer_load_dword v247, v253, s[16:19], s63 offen sc1')
        self.end(L)
        self.gf2_issue()
        k.wait(t)
        X1R=96
        for ab in range(2):
            k(f'ds_read_b128 v[{X1R+4*ab}:{X1R+4*ab+3}], v{T+2} offset:{1280*ab}'); tx=k(f'ds_read_b32 v{X1R+8+ab}, v{T+3} offset:{1280*ab+1024}')
        tw=self.w_tr(c.tr_b7)
        if c.w4 and not (self.who=='w0' and c.w4early) and not (c.wnlag and self.who=='wn'):
            if self.who=='wn': self.q_flush()
            self.w4_setup()
        L=self.w0(); Lo=k.label('ok'); Le=k.label('e')
        k('v_cmp_ne_u32 vcc, s14, v247'); k(f's_cbranch_vccz {Lo}')
        self.poll('buffer_load_dword v247, v253, s[16:19], s63 offen sc1', ['v_cmp_ne_u32 vcc, s14, v247'])
        k(f'{Lo}:')
        k('s_cmp_lg_u32 s15, 0'); k(f's_cbranch_scc1 {Le}'); k('buffer_inv sc1'); k('s_waitcnt vmcnt(0)'); k(f'{Le}:')
        self.end(L)
        self.gf2_check()
        k.wait(tx)
        if tw: k.wait(tw)
        k('s_barrier')
        self.stamp(15)
    def gf2_issue(self):
        k=self.k; c=self.c; sh=c.rec.bit_length()-1
        if not c.defer_sh: return
        self.G2L='buffer_load_dword v244, v246, s[16:19], s87 offen sc1\nbuffer_load_dword v245, v246, s[16:19], s86 offen sc1'
        L=self.w0(); k(f's_lshl_b32 s87, s12, {sh+8}'); k(f's_add_u32 s87, s87, {WS_FLG+FL_GF2+128*c.rec}'); k(f's_add_u32 s86, s87, {64*c.rec}'); k(f'v_lshlrev_b32 v246, {sh}, v1')
        k(self.G2L); self.end(L)
    def gf2_check(self):
        k=self.k
        if not self.c.defer_sh: return
        L=self.w0(); Lo=k.label('ok'); chk=['v_xor_b32 v244, s14, v244', 'v_xor_b32 v245, s14, v245', 'v_or_b32 v244, v244, v245', 'v_cmp_ne_u32 vcc, 0, v244']
        for x in chk: k(x)
        k(f's_cbranch_vccz {Lo}'); self.poll(self.G2L, chk); k(f'{Lo}:'); self.end(L)

def make(path, **kw):
    c=Cfg()
    for a,b in kw.items():
        assert hasattr(c,a), a
        setattr(c,a,b)
    g=Gen2(c); k=g.build()
    t,d=k.finish(table_text(NAME+'_tab'))
    hdr=open('header.txt').read()
    open(path,'w').write(hdr+'; @launch grid=(256,1,1) block=(256,1,1) lds=163840\n.amdgcn_target "amdgcn-amd-amdhsa--gfx950"\n'+t+d)
    print(path,k.stats)
NOW=dict(iss_early=[],iss_role=[],iss_ld=[],iss_b2=[],iss_b2b=[],iss_b3=[],iss_b4=[],iss_b5=[],iss_g=[],iss_b5b=[],iss_b6=[],iss_stb=[],iss_b7=[],tr_b2=[],tr_b3=[],tr_b4=[],tr_b5=[],tr_b7=[],tr_c0=[],sweep=False)
if __name__=='__main__':
    make('f_dbg.s',prof=True,noalias=True); make('f.s'); make('v_a.s',prof=True); make('v_b.s',prof=True,**NOW)
```

```python
from search import *
d=mk('role b2 b2b b2c b3 b4:1 g b6 stb b9:3',per=[9,17,16],nlate=9,c0bar=88,post0=96,chk0=58,chk3=44,pd3=30,wdlate=True,gap3=4,gap4=4,nwd1=8,ride=True,ep_sp=10)
d.update(tr_b3=[0,1],tr_b4=[2,3,4,5],tr_b5=[6,7],tr_g=[8,9],tr_b7=[10,11,12,13])
if __name__=='__main__':
    print(d)
    make('f.s',**d); make('f_slow.s',force_slow=True,**d); make('v_a.s',prof=True,**d)
```
